```python
import torch

def _softmax(x, axis=-1):
    return torch.softmax(x, dim=axis)
def _gelu(x):
    return torch.nn.functional.gelu(x, approximate="tanh")
def _silu(x):
    return torch.nn.functional.silu(x)
def _sigmoid(x):
    return torch.sigmoid(x)
def _layernorm(x, axis=-1, eps=1e-5):
    m = x.mean(dim=axis, keepdim=True)
    v = x.var(dim=axis, keepdim=True, unbiased=False)
    return (x - m) / torch.sqrt(v + eps)
def _scatter_add(tgt, idx, src, axis=0):
    return tgt.clone().index_add_(axis, idx, src)
def _segment_sum(src, seg, n):
    out = torch.zeros((n,) + src.shape[1:], dtype=src.dtype)
    return out.index_add_(0, seg, src)
def _pad(x, pw):
    flat = tuple(v for pair in reversed(pw) for v in pair)
    return torch.nn.functional.pad(x, flat)

kernel_name = 'sequential_preLN__mha_block__dense_activation_relu__prompt'

def setup_inputs():

    _w = (lambda a: (lambda t: t.to(torch.bfloat16) if t.is_floating_point() else t)(torch.as_tensor(a)))
    def _A_setup():
        B, S, D, H = 1, 2048, 512, 32
        return {
            "x": _w((lambda *s: torch.randn(*s, dtype=torch.bfloat16) * 0.05)(B, S, D)),
            "wqkv": _w((lambda *s: torch.randn(*s, dtype=torch.bfloat16) * 0.05)(D, 3 * D)),
            "wo": _w((lambda *s: torch.randn(*s, dtype=torch.bfloat16) * 0.05)(D, D)),
        }
    _A_in = _A_setup()

    def _B_setup():
        B, S, D, Dff = 1, 2048, 512, 1792
        return {
            "x": _w((lambda *s: torch.randn(*s, dtype=torch.bfloat16) * 0.05)(B, S, D)),
            "w1": _w((lambda *s: torch.randn(*s, dtype=torch.bfloat16) * 0.05)(D, Dff)),
            "w2": _w((lambda *s: torch.randn(*s, dtype=torch.bfloat16) * 0.05)(Dff, D)),
        }
    _B_in = _B_setup()

    return {
        "A_x": _A_in["x"],
        "A_wqkv": _A_in["wqkv"],
        "A_wo": _A_in["wo"],
        "B_x": _B_in["x"],
        "B_w1": _B_in["w1"],
        "B_w2": _B_in["w2"],
    }

def reference(A_x, A_wqkv, A_wo, B_x, B_w1, B_w2):
    def _A_ref(x, wqkv, wo):
        B, S, D = x.shape
        H = 32
        Dh = D // H
        qkv = (lambda x, *d: x.permute(*d))((x @ wqkv).reshape(B, S, 3, H, Dh), 2, 0, 3, 1, 4)
        q, k, v = qkv[0], qkv[1], qkv[2]
        scores = torch.einsum("bhqd,bhkd->bhqk", q, k) * (Dh ** -0.5)
        p = _softmax(scores, axis=-1)
        o = torch.einsum("bhqk,bhkd->bhqd", p, v)
        return (lambda x, *d: x.permute(*d))(o, 0, 2, 1, 3).reshape(B, S, D) @ wo

    def _B_ref(x, w1, w2):
        h = torch.einsum("bsd,df->bsf", x, w1)
        zero = torch.zeros_like(h)
        h = torch.maximum(h, zero)
        return torch.einsum("bsf,fd->bsd", h, w2)

    x = A_x
    h = x + _A_ref(_layernorm(x, axis=-1), A_wqkv, A_wo)
    h2 = h + _B_ref(_layernorm(h, axis=-1), B_w1, B_w2)
    return h2
```

```python
class Kern:
    def __init__(self, name):
        self.name = name
        self.L = []
        self.vn = 1
        self.vmax = 1
        self.sn = 4
        self.smax = 4
        self.nlab = 0
    def e(self, s):
        for line in s.split('\n'):
            line = line.strip()
            if line:
                self.L.append('    ' + line)
    def c(self, s):
        self.L.append('    ; ' + s)
    def label(self, l):
        self.L.append(f'{self.name}_{l}:')
    def lab(self, l):
        return f'{self.name}_{l}'
    def v(self, n=1, align=None):
        if align is None:
            align = 2 if n >= 2 else 1
        b = (self.vn + align - 1) // align * align
        self.vn = b + n
        self.vmax = max(self.vmax, self.vn)
        return b
    def s(self, n=1, align=None):
        if align is None:
            align = 4 if n >= 4 else (2 if n >= 2 else 1)
        b = (self.sn + align - 1) // align * align
        self.sn = b + n
        self.smax = max(self.smax, self.sn)
        assert self.sn <= 100
        return b
    def text(self):
        return (f'.globl {self.name}\n.p2align 8\n.type {self.name},@function\n{self.name}:\n'
                + '\n'.join(self.L) + '\n')
    def desc(self):
        nv = self.vmax
        assert nv <= 256, nv
        acc = (nv + 3) // 4 * 4
        return f'''.p2align 6
.amdhsa_kernel {self.name}
  .amdhsa_next_free_vgpr {nv}
  .amdhsa_next_free_sgpr {max(self.smax, 8)}
  .amdhsa_accum_offset {acc}
  .amdhsa_group_segment_fixed_size 0
  .amdhsa_kernarg_size 72
  .amdhsa_user_sgpr_count 2
  .amdhsa_user_sgpr_kernarg_segment_ptr 1
  .amdhsa_system_sgpr_workgroup_id_x 1
.end_amdhsa_kernel
'''
def vr(b, n):
    return f'v[{b}:{b+n-1}]' if n > 1 else f'v{b}'
def sr(b, n):
    return f's[{b}:{b+n-1}]' if n > 1 else f's{b}'

def srd(k, d, lo, hi, nbytes, off=None):
    if off is None:
        k.e(f's_mov_b32 s{d}, s{lo}')
        k.e(f's_mov_b32 s{d+1}, s{hi}')
    else:
        k.e(f's_add_u32 s{d}, s{lo}, {off}')
        k.e(f's_addc_u32 s{d+1}, s{hi}, 0')
    k.e(f's_mov_b32 s{d+2}, {nbytes}')
    k.e(f's_mov_b32 s{d+3}, 0x20000')
```

```python
from fw import *
MB = 1 << 20
QF, KF, VF, OF, HF, FF = 0, 2*MB, 4*MB, 6*MB, 8*MB, 10*MB
WS_USED = 17*MB
QSCALE = 0.25 * 1.4426950408889634

import struct
def f32(x):
    return '0x%08x' % struct.unpack('<I', struct.pack('<f', x))[0]

def lane_regs(k):
    R = {}
    for n in ('l', 't', 'h'):
        R[n] = k.v()
    k.e(f'v_and_b32 v{R["l"]}, 63, v0')
    k.e(f'v_and_b32 v{R["t"]}, 31, v0')
    k.e(f'v_bfe_u32 v{R["h"]}, v0, 5, 1')
    return R

def round_bf16(k, v):
    k.e(f'v_cvt_pk_bf16_f32 v{v}, v{v}, v{v}')
    k.e(f'v_and_b32 v{v}, 0xffff0000, v{v}')

def ln_stats(k, sx, sxx, tmp, mean, rstd):
    k.e(f'v_mov_b32 v{tmp}, v{sx}')
    k.e(f'v_mov_b32 v{tmp+1}, v{sxx}')
    k.e('s_nop 1')
    k.e(f'v_permlane32_swap_b32 v{sx}, v{tmp}')
    k.e(f'v_permlane32_swap_b32 v{sxx}, v{tmp+1}')
    k.e('s_nop 1')
    k.e(f'v_add_f32 v{sx}, v{sx}, v{tmp}')
    k.e(f'v_add_f32 v{sxx}, v{sxx}, v{tmp+1}')
    k.e(f'v_mul_f32 v{mean}, {f32(1/512)}, v{sx}')
    k.e(f'v_mul_f32 v{sxx}, {f32(1/512)}, v{sxx}')
    k.e(f'v_fma_f32 v{rstd}, -v{mean}, v{mean}, v{sxx}')
    k.e(f'v_max_f32 v{rstd}, 0, v{rstd}')
    round_bf16(k, mean)
    round_bf16(k, rstd)
    k.e(f'v_add_f32 v{rstd}, {f32(1e-5)}, v{rstd}')
    round_bf16(k, rstd)
    k.e(f'v_sqrt_f32 v{rstd}, v{rstd}')
    k.e('s_nop 0')
    round_bf16(k, rstd)
    k.e(f'v_rcp_f32 v{rstd}, v{rstd}')
    k.e('s_nop 0')

def gen_k1(name='qkv_kernel'):
    k = Kern(name)
    SLOT = 28672
    NSLOT = 5
    NCH = 8
    sX, sWS = k.s(4), k.s(2)
    SX, SW, SO = k.s(4), k.s(4), k.s(4)
    sw, srb, sj, sxo, swo, smx, smw, st0, st1, st2, sones, srot = [k.s() for _ in range(12)]
    k.e(f's_cmp_ge_u32 s2, 256')
    k.e(f's_cbranch_scc1 {k.lab("end")}')
    k.e(f's_load_dwordx4 {sr(sX,4)}, s[0:1], 0')
    k.e(f's_load_dwordx2 {sr(sWS,2)}, s[0:1], 64')
    R = lane_regs(k)
    l, t, h = R['l'], R['t'], R['h']
    tmp = k.v(8)
    k.e(f'v_lshrrev_b32 v{tmp}, 6, v0')
    k.e(f's_and_b32 s{st0}, s2, 7')
    k.e(f'v_readfirstlane_b32 s{sw}, v{tmp}')
    k.e(f's_lshr_b32 s{st1}, s2, 3')
    k.e(f's_lshr_b32 s{srb}, s{st0}, 1')
    k.e(f's_lshl_b32 s{srb}, s{srb}, 2')
    k.e(f's_lshr_b32 s{st2}, s{st1}, 3')
    k.e(f's_add_u32 s{srb}, s{srb}, s{st2}')
    k.e(f's_and_b32 s{sj}, s{st0}, 1')
    k.e(f's_lshl_b32 s{sj}, s{sj}, 3')
    k.e(f's_and_b32 s{st2}, s{st1}, 7')
    k.e(f's_add_u32 s{sj}, s{sj}, s{st2}')
    k.e(f's_mov_b32 s{srot}, s{st2}')
    k.e(f's_mov_b32 s{sones}, 0x3f803f80')
    vox = [k.v(), k.v()]
    vow = k.v()
    k.e(f'v_and_b32 v{tmp}, 7, v{l}')
    k.e(f'v_lshrrev_b32 v{tmp+1}, 4, v{l}')
    k.e(f'v_xor_b32 v{tmp}, v{tmp}, v{tmp+1}')
    k.e(f'v_lshlrev_b32 v{tmp}, 4, v{tmp}')
    k.e(f'v_lshrrev_b32 v{tmp+1}, 3, v{l}')
    k.e(f'v_lshl_add_u32 v{vox[0]}, v{tmp+1}, 10, v{tmp}')
    k.e(f'v_xor_b32 v{vox[1]}, 64, v{vox[0]}')
    k.e(f'v_lshrrev_b32 v{tmp}, 2, v{l}')
    k.e(f'v_mul_u32_u24 v{tmp}, 3072, v{tmp}')
    k.e(f'v_and_b32 v{tmp+1}, 3, v{l}')
    k.e(f'v_lshl_add_u32 v{vow}, v{tmp+1}, 4, v{tmp}')
    k.e(f's_lshl_b32 s{sxo}, s{sw}, 15')
    k.e(f's_mul_i32 s{swo}, s{sw}, {16*3072}')
    k.e(f's_lshl_b32 s{st0}, s{sj}, 6')
    k.e(f's_add_u32 s{swo}, s{swo}, s{st0}')
    k.e(f's_lshl_b32 s{smx}, s{sw}, 12')
    k.e(f's_lshl_b32 s{smw}, s{sw}, 10')
    k.e(f's_add_u32 s{smw}, s{smw}, 16384')
    k.e(f's_lshl_b32 s{st0}, s{srb}, 17')
    k.e('s_waitcnt lgkmcnt(0)')
    srd(k, SX, sX, sX+1, 131072, f's{st0}')
    srd(k, SW, sX+2, sX+3, 512*3072)
    srd(k, SO, sWS, sWS+1, 6*MB)

    def dma_chunk(c):
        sb = (c % NSLOT) * SLOT
        k.c(f'DMA chunk {c}')
        k.e(f's_add_u32 s{st0}, s{srot}, {c}')
        k.e(f's_and_b32 s{st0}, s{st0}, 7')
        k.e(f's_lshl_b32 s{st1}, s{st0}, 7')
        k.e(f's_add_u32 s{st1}, s{st1}, s{sxo}')
        k.e(f's_mul_i32 s{st0}, s{st0}, {64*3072}')
        k.e(f's_add_u32 s{st0}, s{st0}, s{swo}')
        for i in range(4):
            k.e(f's_add_u32 m0, s{smx}, {sb + i*1024}')
            k.e(f's_add_u32 s{st2}, s{st1}, {i*8192}')
            k.e(f'buffer_load_dwordx4 v{vox[i&1]}, {sr(SX,4)}, s{st2} offen lds')
        for b in range(3):
            k.e(f's_add_u32 m0, s{smw}, {sb + b*4096}')
            k.e(f's_add_u32 s{st2}, s{st0}, {b*1024}')
            k.e(f'buffer_load_dwordx4 v{vow}, {sr(SW,4)}, s{st2} offen lds')
    for c in range(NSLOT):
        dma_chunk(c)

    ax = [[k.v() for i in range(4)] for s in range(3)]
    aw = [[k.v() for i in range(4)] for s in range(3)]
    k.e(f'v_bfe_u32 v{tmp}, v{t}, 1, 3')
    k.e(f'v_xor_b32 v{tmp}, v{tmp}, v{h}')
    k.e(f'v_lshlrev_b32 v{tmp+1}, 7, v{t}')
    k.e(f'v_add_u32 v{tmp+1}, s{smx}, v{tmp+1}')
    k.e(f'v_bfe_u32 v{tmp+2}, v{l}, 2, 2')
    k.e(f'v_lshl_add_u32 v{tmp+2}, v{h}, 3, v{tmp+2}')
    k.e(f'v_lshlrev_b32 v{tmp+2}, 6, v{tmp+2}')
    k.e(f'v_bfe_u32 v{tmp+3}, v{l}, 4, 1')
    k.e(f'v_lshl_add_u32 v{tmp+2}, v{tmp+3}, 5, v{tmp+2}')
    k.e(f'v_and_b32 v{tmp+3}, 3, v{l}')
    k.e(f'v_lshl_add_u32 v{tmp+2}, v{tmp+3}, 3, v{tmp+2}')
    k.e(f'v_add_u32 v{tmp+2}, 16384, v{tmp+2}')
    for i in range(4):
        k.e(f's_xor_b32 s{st0}, s{sw}, {i}')
        k.e(f's_lshl_b32 s{st1}, s{st0}, 1')
        k.e(f'v_xor_b32 v{tmp+4}, s{st1}, v{tmp}')
        k.e(f'v_lshl_add_u32 v{ax[0][i]}, v{tmp+4}, 4, v{tmp+1}')
        k.e(f's_lshl_b32 s{st1}, s{st0}, 10')
        k.e(f'v_add_u32 v{aw[0][i]}, s{st1}, v{tmp+2}')
        for s in (1, 2):
            k.e(f'v_add_u32 v{ax[s][i]}, {2*SLOT*s}, v{ax[0][i]}')
            k.e(f'v_add_u32 v{aw[s][i]}, {2*SLOT*s}, v{aw[0][i]}')

    XF = [k.v(4), k.v(4)]
    WF = [[k.v(4) for b in range(3)] for s in range(2)]
    ACC = [k.v(16) for b in range(3)]
    sx = [k.v(), k.v()]
    sxx = [k.v(), k.v()]
    cs = [k.v() for b in range(3)]
    for r_ in sx + sxx + cs:
        k.e(f'v_mov_b32 v{r_}, 0')

    def reads(n):
        c, i = n // 4, n % 4
        slot = c % NSLOT
        s, rel = slot // 2, (slot % 2) * SLOT
        p = n & 1
        k.e(f'ds_read_b128 {vr(XF[p],4)}, v{ax[s][i]} offset:{rel}')
        for b in range(3):
            for w2 in range(2):
                k.e(f'ds_read_b64_tr_b16 {vr(WF[p][b]+2*w2,2)}, v{aw[s][i]} offset:{rel + b*4096 + w2*256}')
    vm_wait = {0: 28, 1: 21, 2: 21, 3: 21, 4: 21, 5: 14, 6: 7, 7: 0}
    def sync(c):
        k.e(f's_waitcnt vmcnt({vm_wait[c]}) lgkmcnt(0)')
        k.e('s_barrier')
        if c >= 1 and c + NSLOT - 1 < NCH:
            dma_chunk(c + NSLOT - 1)
    sync(0)
    reads(0)
    NK = 4 * NCH
    for n in range(NK):
        p = n & 1
        i = n % 4
        k.c(f'kstep {n}')
        if n + 1 < NK:
            if (n + 1) % 4 == 0:
                sync((n + 1) // 4)
                reads(n + 1)
            else:
                reads(n + 1)
                k.e('s_waitcnt lgkmcnt(7)')
        else:
            k.e('s_waitcnt lgkmcnt(0)')
        C = (lambda b: '0') if n == 0 else (lambda b: vr(ACC[b], 16))
        k.e(f'v_mfma_f32_32x32x16_bf16 {vr(ACC[0],16)}, {vr(WF[p][0],4)}, {vr(XF[p],4)}, {C(0)}')
        for d in range(4):
            k.e(f'v_dot2c_f32_bf16 v{sx[d&1]}, s{sones}, v{XF[p]+d}')
        k.e(f'v_mfma_f32_32x32x16_bf16 {vr(ACC[1],16)}, {vr(WF[p][1],4)}, {vr(XF[p],4)}, {C(1)}')
        for d in range(4):
            k.e(f'v_dot2c_f32_bf16 v{sxx[d&1]}, v{XF[p]+d}, v{XF[p]+d}')
        k.e(f'v_mfma_f32_32x32x16_bf16 {vr(ACC[2],16)}, {vr(XF[p],4)}, {vr(WF[p][2],4)}, {C(2)}')
        if i == 0:
            for d in range(4):
                for b in range(3):
                    k.e(f'v_dot2c_f32_bf16 v{cs[b]}, s{sones}, v{WF[p][b]+d}')
    k.c('epilogue: column-sum partials')
    a0, a1, a2 = k.v(), k.v(), k.v()
    k.e(f's_mul_i32 s{st0}, s{sw}, 768')
    k.e(f'v_mul_u32_u24 v{a0}, 384, v{h}')
    k.e(f'v_lshl_add_u32 v{a0}, v{t}, 2, v{a0}')
    k.e(f'v_add_u32 v{a0}, s{st0}, v{a0}')
    for b in range(3):
        k.e(f'ds_write_b32 v{a0}, v{cs[b]} offset:{b*128}')
    k.e(f'v_add_f32 v{sx[0]}, v{sx[0]}, v{sx[1]}')
    k.e(f'v_add_f32 v{sxx[0]}, v{sxx[0]}, v{sxx[1]}')
    mean, rstd = k.v(), k.v()
    ln_stats(k, sx[0], sxx[0], tmp, mean, rstd)
    k.e(f's_lshl_b32 s{st0}, s{sw}, 9')
    k.e(f's_add_u32 s{st0}, s{st0}, 4096')
    k.e(f'v_lshlrev_b32 v{a1}, 2, v{t}')
    k.e(f'v_add_u32 v{a1}, s{st0}, v{a1}')
    k.e(f'ds_write_b32 v{a1}, v{mean} offset:256')
    k.e(f'ds_write_b32 v{a1}, v{rstd} offset:384')
    k.e(f'v_lshlrev_b32 v{a2}, 4, v{h}')
    k.e(f'v_add_u32 v{a2}, s{st0}, v{a2}')
    k.e('s_waitcnt lgkmcnt(0)')
    k.e('s_barrier')
    MR = k.v(16); RR = k.v(16); CS = k.v(32)
    P1 = k.v(8); P2 = k.v(8)
    k.e(f'v_lshlrev_b32 v{a0}, 2, v{l}')
    k.e(f'v_lshlrev_b32 v{tmp}, 2, v{t}')
    for p in range(8):
        k.e(f'ds_read_b32 v{P1+p}, v{a0} offset:{p*384}')
    for p in range(8):
        k.e(f'ds_read_b32 v{P2+p}, v{tmp} offset:{256+p*384}')
    for g in range(4):
        k.e(f'ds_read_b128 {vr(MR+4*g,4)}, v{a2} offset:{256+g*32}')
    for g in range(4):
        k.e(f'ds_read_b128 {vr(RR+4*g,4)}, v{a2} offset:{384+g*32}')
    k.e('s_waitcnt lgkmcnt(15)')
    k.e('s_waitcnt lgkmcnt(8)')
    for p in (4, 2, 1):
        for q in range(p):
            k.e(f'v_add_f32 v{P1+q}, v{P1+q}, v{P1+q+p}')
            k.e(f'v_add_f32 v{P2+q}, v{P2+q}, v{P2+q+p}')
    k.e(f'v_add_u32 v{a0}, s{st0}, v{a0}')
    k.e(f'ds_write_b32 v{a0}, v{P1}')
    k.e('s_waitcnt lgkmcnt(0)')
    for b in range(2):
        for g in range(4):
            k.e(f'ds_read_b128 {vr(CS+16*b+4*g,4)}, v{a2} offset:{b*128+g*32}')
    OUT = [k.v(8, 4) for b in range(3)]
    for r_ in range(16):
        k.e(f'v_fma_f32 v{ACC[2]+r_}, -v{MR+r_}, v{P2}, v{ACC[2]+r_}')
    for r_ in range(16):
        k.e(f'v_mul_f32 v{ACC[2]+r_}, v{ACC[2]+r_}, v{RR+r_}')
    for q in range(8):
        k.e(f'v_cvt_pk_bf16_f32 v{OUT[2]+q}, v{ACC[2]+2*q}, v{ACC[2]+2*q+1}')
    vo, vov = k.v(), k.v()
    k.e(f'v_lshlrev_b32 v{vo}, 4, v{l}')
    k.e(f'v_bfe_u32 v{tmp}, v{l}, 4, 1')
    k.e(f'v_lshlrev_b32 v{vov}, 16, v{tmp}')
    k.e(f'v_lshl_add_u32 v{vov}, v{h}, 8, v{vov}')
    k.e(f'v_and_b32 v{tmp}, 15, v{l}')
    k.e(f'v_lshl_add_u32 v{vov}, v{tmp}, 4, v{vov}')
    k.e(f's_lshl_b32 s{st0}, s{sj}, 17')
    k.e(f's_lshl_b32 s{st1}, s{srb}, 2')
    k.e(f's_add_u32 s{st1}, s{st1}, s{sw}')
    k.e(f's_lshl_b32 s{st1}, s{st1}, 10')
    k.e(f's_add_u32 s{st0}, s{st0}, s{st1}')
    k.e(f's_add_u32 s{st1}, s{st0}, {VF}')
    k.e(f'buffer_store_dwordx4 {vr(OUT[2],4)}, v{vov}, {sr(SO,4)}, s{st1} offen')
    k.e(f'buffer_store_dwordx4 {vr(OUT[2]+4,4)}, v{vov}, {sr(SO,4)}, s{st1} offen offset:512')
    rq = k.v()
    k.e(f'v_mul_f32 v{rq}, {f32(QSCALE)}, v{rstd}')
    k.e('s_waitcnt lgkmcnt(0)')
    for b in (1, 0):
        sc = rq if b == 0 else rstd
        for r_ in range(16):
            k.e(f'v_fma_f32 v{ACC[b]+r_}, -v{mean}, v{CS+16*b+r_}, v{ACC[b]+r_}')
        for r_ in range(16):
            k.e(f'v_mul_f32 v{ACC[b]+r_}, v{ACC[b]+r_}, v{sc}')
        for q in range(8):
            k.e(f'v_cvt_pk_bf16_f32 v{OUT[b]+q}, v{ACC[b]+2*q}, v{ACC[b]+2*q+1}')
        base = QF if b == 0 else KF
        k.e(f's_add_u32 s{st1}, s{st0}, {base}')
        k.e(f's_add_u32 s{st2}, s{st0}, {base+65536}')
        k.e(f'buffer_store_dwordx4 {vr(OUT[b],4)}, v{vo}, {sr(SO,4)}, s{st1} offen')
        k.e(f'buffer_store_dwordx4 {vr(OUT[b]+4,4)}, v{vo}, {sr(SO,4)}, s{st2} offen')
    k.label('end')
    k.e('s_endpgm')
    return k, (256, 256, NSLOT*SLOT)
```

```python
from fw import *
from k1 import *

def gen_k2(name='attn_kernel', prefetch=True):
    k = Kern(name)
    KB, VB, ONES = 0, 65536, 131072
    LDS = ONES + 8192
    sWS = k.s(2)
    sW = k.s(4)
    sW1 = k.s(4)
    SKV, SO, SP = k.s(4), k.s(4), k.s(4)
    sw, shead, stb, st0, st1, st2, sit, sidx = [k.s() for _ in range(8)]
    smask = k.s(2)
    k.e('s_cmp_ge_u32 s2, 256')
    k.e(f's_cbranch_scc1 {k.lab("end")}')
    k.e(f's_load_dwordx2 {sr(sWS,2)}, s[0:1], 64')
    k.e(f's_load_dwordx2 {sr(sW,2)}, s[0:1], 16')
    k.e(f's_load_dwordx4 {sr(sW1,4)}, s[0:1], 32')
    R = lane_regs(k)
    l, t, h = R['l'], R['t'], R['h']
    tmp = k.v(4)
    k.e(f'v_lshrrev_b32 v{tmp}, 6, v0')
    k.e(f's_and_b32 s{st0}, s2, 7')
    k.e(f'v_readfirstlane_b32 s{sw}, v{tmp}')
    k.e(f's_lshr_b32 s{sidx}, s2, 3')
    k.e(f's_lshl_b32 s{shead}, s{st0}, 2')
    k.e(f's_lshr_b32 s{st1}, s{sidx}, 3')
    k.e(f's_add_u32 s{shead}, s{shead}, s{st1}')
    k.e(f's_and_b32 s{stb}, s{sidx}, 7')
    k.e(f's_lshl_b32 s{stb}, s{stb}, 3')
    k.e(f's_add_u32 s{stb}, s{stb}, s{sw}')
    vl16 = k.v()
    k.e(f'v_lshlrev_b32 v{vl16}, 4, v{l}')
    ON = k.v(4)
    for d in range(4):
        k.e(f'v_mov_b32 v{ON+d}, 0x3f803f80')
    k.e(f'v_lshlrev_b32 v{tmp}, 4, v0')
    k.e(f'v_add_u32 v{tmp}, {ONES}, v{tmp}')
    k.e(f'ds_write_b128 v{tmp}, {vr(ON,4)}')
    k.e('s_waitcnt lgkmcnt(0)')
    srd(k, SKV, sWS, sWS+1, 6*MB)
    srd(k, SO, sWS, sWS+1, 2*MB, OF)
    Q = k.v(4)
    k.e(f's_lshl_b32 s{st0}, s{shead}, 16')
    k.e(f's_lshl_b32 s{st1}, s{stb}, 10')
    k.e(f's_add_u32 s{st1}, s{st1}, s{st0}')
    k.e(f'buffer_load_dwordx4 {vr(Q,4)}, v{vl16}, {sr(SKV,4)}, s{st1} offen')
    k.e(f's_lshr_b32 s{st1}, s{sw}, 2')
    k.e(f's_and_b32 s{st2}, s{sw}, 3')
    k.e(f's_lshl_b32 s{st2}, s{st2}, 10')
    k.e(f's_lshl_b32 s{sit}, s{st1}, 21')
    k.e(f's_add_u32 s{st0}, s{st0}, s{sit}')
    k.e(f's_add_u32 s{st0}, s{st0}, s{st2}')
    k.e(f's_add_u32 s{st0}, s{st0}, {KF}')
    k.e(f's_lshl_b32 s{st1}, s{st1}, 16')
    k.e(f's_add_u32 s{st1}, s{st1}, s{st2}')
    for r in range(16):
        k.e(f's_add_u32 m0, s{st1}, {r*4096}')
        k.e(f's_add_u32 s{st2}, s{st0}, {r*4096}')
        k.e(f'buffer_load_dwordx4 v{vl16}, {sr(SKV,4)}, s{st2} offen lds')
    vk, vv, vinc = k.v(), k.v(), k.v()
    k.e(f'v_mov_b32 v{vk}, v{vl16}')
    k.e(f'v_and_b32 v{tmp}, 15, v{l}')
    k.e(f'v_lshlrev_b32 v{tmp}, 4, v{tmp}')
    k.e(f'v_lshl_add_u32 v{tmp}, v{h}, 8, v{tmp}')
    k.e(f'v_bfe_u32 v{tmp+1}, v{l}, 4, 1')
    k.e(f'v_lshlrev_b32 v{tmp+2}, 16, v{tmp+1}')
    k.e(f'v_add_u32 v{vv}, v{tmp}, v{tmp+2}')
    k.e(f'v_add_u32 v{vv}, {VB}, v{vv}')
    k.e(f'v_xor_b32 v{tmp+1}, 1, v{tmp+1}')
    k.e(f'v_lshlrev_b32 v{vinc}, 13, v{tmp+1}')
    S = [k.v(16), k.v(16)]
    NM = k.v(16)
    O = k.v(16)
    P = k.v(8)
    KFr = k.v(4); V0 = k.v(4); V1 = k.v(4)
    dummy = k.v()
    k.e('s_waitcnt vmcnt(14)')
    k.e('s_barrier')
    k.e(f'ds_read_b128 {vr(KFr,4)}, v{vk}')
    k.e('s_waitcnt lgkmcnt(0)')
    k.e(f'v_mfma_f32_32x32x16_bf16 {vr(S[0],16)}, {vr(KFr,4)}, {vr(Q,4)}, 0')
    for r_ in range(16):
        k.e(f'v_mov_b32 v{O+r_}, 0')
    def rowmax16(src, dst):
        k.e(f'v_max3_f32 v{dst}, v{src}, v{src+1}, v{src+2}')
        for q in range(3, 15, 2):
            k.e(f'v_max3_f32 v{dst}, v{dst}, v{src+q}, v{src+q+1}')
        k.e(f'v_max_f32 v{dst}, v{dst}, v{src+15}')
    def set_negm(m):
        k.e(f'v_mov_b32 v{tmp+1}, v{m}')
        k.e('s_nop 1')
        k.e(f'v_permlane32_swap_b32 v{m}, v{tmp+1}')
        k.e('s_nop 1')
        k.e(f'v_max_f32 v{m}, v{m}, v{tmp+1}')
        for r_ in range(16):
            k.e(f'v_sub_f32 v{NM+r_}, 0, v{m}')
    rowmax16(S[0], tmp)
    set_negm(tmp)
    k.e('s_nop 1')
    k.e(f'v_mfma_f32_32x32x16_bf16 {vr(S[0],16)}, {vr(KFr,4)}, {vr(Q,4)}, {vr(NM,16)}')
    for d in range(4):
        k.e(f'v_mov_b32 v{P+4+d}, 0')
    k.e(f'ds_read_b128 {vr(KFr,4)}, v{vk} offset:1024')
    k.e(f'ds_read_b128 {vr(V1,4)}, v{vv} offset:512')
    k.e(f'ds_read_b128 {vr(V0,4)}, v{vv}')
    k.e(f's_mov_b32 s{sit}, 0')
    k.e('s_nop 7')
    k.label('loop')
    for i in range(8):
        s = S[i & 1]; sn = S[(i + 1) & 1]
        E = lambda r_: k.e(f'v_exp_f32 v{s+r_}, v{s+r_}')
        C = lambda q: k.e(f'v_cvt_pk_bf16_f32 v{P+q}, v{s+2*q}, v{s+2*q+1}')
        k.c(f'tile {i}')
        if i == 5:
            k.e(f's_cmp_lg_u32 s{sit}, 0')
            k.e(f's_cbranch_scc1 {k.lab("nosync")}')
            k.e('s_waitcnt vmcnt(0)')
            k.e('s_barrier')
            if prefetch:
                k.e(f'v_lshlrev_b32 v{tmp}, 6, v0')
                k.e(f's_lshl_b32 s{st0}, s{sidx}, 14')
                srd(k, SP, sW, sW+1, 512*1024)
                k.e(f'v_cmp_gt_u32 vcc, 256, v0')
                k.e(f's_and_saveexec_b64 {sr(smask,2)}, vcc')
                k.e(f's_cbranch_execz {k.lab("pf1")}')
                k.e(f'buffer_load_dword v{dummy}, v{tmp}, {sr(SP,4)}, s{st0} offen')
                k.label('pf1')
                k.e(f's_mov_b64 exec, {sr(smask,2)}')
                srd(k, SP, sW1, sW1+1, 512*3584)
                k.e(f's_mul_i32 s{st0}, s{sidx}, 57344')
                k.e(f'buffer_load_dword v{dummy}, v{tmp}, {sr(SP,4)}, s{st0} offen')
                k.e(f's_add_u32 s{st0}, s{st0}, 24576')
                k.e(f'buffer_load_dword v{dummy}, v{tmp}, {sr(SP,4)}, s{st0} offen')
            k.label('nosync')
        k.e('s_waitcnt lgkmcnt(2)')
        k.e(f'v_mfma_f32_32x32x16_bf16 {vr(sn,16)}, {vr(KFr,4)}, {vr(Q,4)}, {vr(NM,16)}')
        k.e(f'ds_read_b128 {vr(KFr,4)}, v{vk} offset:{(i+2)*1024}')
        for r_ in range(0, 4): E(r_)
        k.e('s_waitcnt lgkmcnt(2)')
        k.e(f'v_mfma_f32_32x32x16_bf16 {vr(O,16)}, {vr(V1,4)}, {vr(P+4,4)}, {vr(O,16)}')
        k.e(f'ds_read_b128 {vr(V1,4)}, v{vv} offset:{i*1024+512}')
        for r_ in range(4, 8): E(r_)
        for q in range(0, 4): C(q)
        for r_ in range(8, 11): E(r_)
        k.e('s_waitcnt lgkmcnt(2)')
        k.e(f'v_mfma_f32_32x32x16_bf16 {vr(O,16)}, {vr(V0,4)}, {vr(P,4)}, {vr(O,16)}')
        if i == 7:
            k.e(f'v_add_u32 v{vv}, v{vv}, v{vinc}')
            k.e(f'v_add_u32 v{vk}, 8192, v{vk}')
            k.e(f'ds_read_b128 {vr(V0,4)}, v{vv}')
        else:
            k.e(f'ds_read_b128 {vr(V0,4)}, v{vv} offset:{(i+1)*1024}')
        for r_ in range(11, 16): E(r_)
        if i == 7:
            k.e(f's_add_u32 s{sit}, s{sit}, 1')
            k.e(f's_cmp_lt_u32 s{sit}, 8')
        for q in range(4, 8): C(q)
    k.e(f's_cbranch_scc1 {k.lab("loop")}')
    k.e('s_waitcnt lgkmcnt(1)')
    k.e('s_nop 0')
    k.e(f'v_mfma_f32_32x32x16_bf16 {vr(O,16)}, {vr(V1,4)}, {vr(P+4,4)}, {vr(O,16)}')
    k.e('s_nop 15')
    k.e(f's_mov_b32 s{st0}, {f32(2.0**40)}')
    k.e(f'v_cmp_nlt_f32 vcc, v{O+8}, s{st0}')
    k.e('s_waitcnt lgkmcnt(0)')
    k.e(f's_cbranch_vccnz {k.lab("slow")}')
    k.label('fin')
    k.e(f'v_rcp_f32 v{tmp}, v{O+8}')
    k.e(f's_lshl_b32 s{st0}, s{stb}, 15')
    k.e(f's_lshl_b32 s{st1}, s{shead}, 10')
    k.e(f's_add_u32 s{st0}, s{st0}, s{st1}')
    for r_ in range(8):
        k.e(f'v_mul_f32 v{O+r_}, v{O+r_}, v{tmp}')
    for q in range(4):
        k.e(f'v_cvt_pk_bf16_f32 v{P+q}, v{O+2*q}, v{O+2*q+1}')
    k.e(f'buffer_store_dwordx4 {vr(P,4)}, v{vl16}, {sr(SO,4)}, s{st0} offen')
    k.label('end')
    k.e('s_endpgm')
    k.label('slow')
    k.e(f'v_mov_b32 v{vk}, v{vl16}')
    k.e(f'v_mov_b32 v{tmp}, 0xff800000')
    k.e(f's_mov_b32 s{sit}, 0')
    k.label('slow1')
    k.e(f'ds_read_b128 {vr(KFr,4)}, v{vk}')
    k.e(f'v_add_u32 v{vk}, 1024, v{vk}')
    k.e('s_waitcnt lgkmcnt(0)')
    k.e(f'v_mfma_f32_32x32x16_bf16 {vr(S[0],16)}, {vr(KFr,4)}, {vr(Q,4)}, 0')
    k.e('s_nop 15')
    rowmax16(S[0], tmp+2)
    k.e(f'v_max_f32 v{tmp}, v{tmp}, v{tmp+2}')
    k.e(f's_add_u32 s{sit}, s{sit}, 1')
    k.e(f's_cmp_lt_u32 s{sit}, 64')
    k.e(f's_cbranch_scc1 {k.lab("slow1")}')
    set_negm(tmp)
    for r_ in range(16):
        k.e(f'v_mov_b32 v{O+r_}, 0')
    k.e(f'v_mov_b32 v{vk}, v{vl16}')
    k.e(f'v_lshlrev_b32 v{tmp}, 3, v{vinc}')
    k.e(f'v_sub_u32 v{vv}, v{vv}, v{tmp}')
    k.e(f'v_lshrrev_b32 v{vinc}, 3, v{vinc}')
    k.e(f's_mov_b32 s{sit}, 0')
    k.label('slow2')
    k.e(f'ds_read_b128 {vr(KFr,4)}, v{vk}')
    k.e(f'ds_read_b128 {vr(V0,4)}, v{vv}')
    k.e(f'ds_read_b128 {vr(V1,4)}, v{vv} offset:512')
    k.e(f'v_add_u32 v{vk}, 1024, v{vk}')
    k.e(f'v_add_u32 v{vv}, v{vv}, v{vinc}')
    k.e('s_waitcnt lgkmcnt(0)')
    k.e(f'v_mfma_f32_32x32x16_bf16 {vr(S[0],16)}, {vr(KFr,4)}, {vr(Q,4)}, {vr(NM,16)}')
    k.e('s_nop 15')
    for r_ in range(16):
        k.e(f'v_exp_f32 v{S[0]+r_}, v{S[0]+r_}')
    k.e('s_nop 0')
    for q in range(8):
        k.e(f'v_cvt_pk_bf16_f32 v{P+q}, v{S[0]+2*q}, v{S[0]+2*q+1}')
    k.e('s_nop 1')
    k.e(f'v_mfma_f32_32x32x16_bf16 {vr(O,16)}, {vr(V0,4)}, {vr(P,4)}, {vr(O,16)}')
    k.e(f'v_mfma_f32_32x32x16_bf16 {vr(O,16)}, {vr(V1,4)}, {vr(P+4,4)}, {vr(O,16)}')
    k.e(f's_add_u32 s{sit}, s{sit}, 1')
    k.e(f's_cmp_lt_u32 s{sit}, 64')
    k.e(f's_cbranch_scc1 {k.lab("slow2")}')
    k.e('s_nop 15')
    k.e(f's_branch {k.lab("fin")}')
    return k, (256, 512, LDS)
```

```python
from fw import *
from k1 import *

def gen_k35(name, mode):
    k = Kern(name)
    NKS = 32 if mode == 3 else 112
    NCH = NKS // 8
    SLOT = 32768
    NSLOT = 4 if mode == 3 else 5
    NFB = NKS
    XBASE = OF if mode == 3 else FF
    sWS = k.s(2); sWp = k.s(2); sR = k.s(2)
    SX, SW, SR, SO = k.s(4), k.s(4), k.s(4), k.s(4)
    sw, srb, scb, st0, st1, st2, sxo, swo, smx, smw, stq, scq = [k.s() for _ in range(12)]
    k.e('s_cmp_ge_u32 s2, 256')
    k.e(f's_cbranch_scc1 {k.lab("end")}')
    k.e(f's_load_dwordx2 {sr(sWS,2)}, s[0:1], 64')
    k.e(f's_load_dwordx2 {sr(sWp,2)}, s[0:1], {16 if mode == 3 else 40}')
    k.e(f's_load_dwordx2 {sr(sR,2)}, s[0:1], {0 if mode == 3 else 48}')
    R = lane_regs(k)
    l, t, h = R['l'], R['t'], R['h']
    tmp = k.v(4)
    k.e(f'v_lshrrev_b32 v{tmp}, 6, v0')
    k.e(f's_and_b32 s{st0}, s2, 7')
    k.e(f'v_readfirstlane_b32 s{sw}, v{tmp}')
    k.e(f's_lshr_b32 s{st1}, s2, 3')
    k.e(f's_lshl_b32 s{srb}, s{st0}, 2')
    k.e(f's_lshr_b32 s{st2}, s{st1}, 3')
    k.e(f's_add_u32 s{srb}, s{srb}, s{st2}')
    k.e(f's_and_b32 s{scb}, s{st1}, 7')
    k.e(f's_lshr_b32 s{stq}, s{sw}, 1')
    k.e(f's_and_b32 s{scq}, s{sw}, 1')
    vl16, vow = k.v(), k.v()
    k.e(f'v_lshlrev_b32 v{vl16}, 4, v{l}')
    k.e(f'v_bfe_u32 v{tmp}, v{l}, 4, 1')
    k.e(f'v_lshlrev_b32 v{tmp}, 2, v{tmp}')
    k.e(f'v_and_b32 v{tmp+1}, 7, v{l}')
    k.e(f'v_xor_b32 v{tmp}, v{tmp}, v{tmp+1}')
    k.e(f'v_lshlrev_b32 v{tmp}, 4, v{tmp}')
    k.e(f'v_lshrrev_b32 v{tmp+1}, 3, v{l}')
    k.e(f'v_lshl_add_u32 v{vow}, v{tmp+1}, 10, v{tmp}')
    k.e(f's_mul_i32 s{sxo}, s{stq}, {NFB*1024}')
    k.e(f's_lshl_b32 s{st0}, s{scq}, 12')
    k.e(f's_add_u32 s{sxo}, s{sxo}, s{st0}')
    k.e(f's_lshl_b32 s{smx}, s{sw}, 12')
    k.e(f's_lshl_b32 s{swo}, s{sw}, 15')
    k.e(f's_lshl_b32 s{st0}, s{scb}, 7')
    k.e(f's_add_u32 s{swo}, s{swo}, s{st0}')
    k.e(f's_add_u32 s{smw}, s{smx}, 16384')
    k.e(f's_mul_i32 s{st0}, s{srb}, {2*NFB*1024}')
    k.e(f's_add_u32 s{st0}, s{st0}, {XBASE}')
    k.e('s_waitcnt lgkmcnt(0)')
    srd(k, SX, sWS, sWS+1, 2*NFB*1024, f's{st0}')
    srd(k, SW, sWp, sWp+1, NKS*16*1024)
    def dma_chunk(c):
        sb = (c % NSLOT) * SLOT
        k.c(f'DMA chunk {c}')
        for i in range(4):
            k.e(f's_add_u32 m0, s{smx}, {sb + i*1024}')
            k.e(f's_add_u32 s{st2}, s{sxo}, {c*8192 + i*1024}')
            k.e(f'buffer_load_dwordx4 v{vl16}, {sr(SX,4)}, s{st2} offen lds')
            k.e(f's_add_u32 m0, s{smw}, {sb + i*1024}')
            k.e(f's_add_u32 s{st2}, s{swo}, {c*131072 + i*8192}')
            k.e(f'buffer_load_dwordx4 v{vow}, {sr(SW,4)}, s{st2} offen lds')
    NUP = min(NCH, NSLOT)
    dma_chunk(0)
    RES = k.v(8, 4)
    vr_ = k.v()
    if mode == 3:
        k.e(f's_lshl_b32 s{st0}, s{srb}, 16')
        srd(k, SR, sR, sR+1, 65536, f's{st0}')
        k.e(f'v_lshlrev_b32 v{vr_}, 10, v{t}')
        k.e(f'v_lshl_add_u32 v{vr_}, v{h}, 3, v{vr_}')
        k.e(f's_lshl_b32 s{st0}, s{stq}, 15')
        k.e(f's_lshl_b32 s{st1}, s{scb}, 7')
        k.e(f's_add_u32 s{st0}, s{st0}, s{st1}')
        k.e(f's_lshl_b32 s{st1}, s{scq}, 6')
        k.e(f's_add_u32 s{st0}, s{st0}, s{st1}')
        for g in range(4):
            k.e(f'buffer_load_dwordx2 {vr(RES+2*g,2)}, v{vr_}, {sr(SR,4)}, s{st0} offen offset:{g*16}')
        NRES = 4
        srd(k, SO, sWS, sWS+1, 2*MB, HF)
    else:
        srd(k, SR, sWS, sWS+1, 2*MB, HF)
        k.e(f's_lshl_b32 s{st0}, s{srb}, 1')
        k.e(f's_add_u32 s{st0}, s{st0}, s{stq}')
        k.e(f's_lshl_b32 s{st0}, s{st0}, 15')
        k.e(f's_lshl_b32 s{st1}, s{scb}, 12')
        k.e(f's_add_u32 s{st0}, s{st0}, s{st1}')
        k.e(f's_lshl_b32 s{st1}, s{scq}, 11')
        k.e(f's_add_u32 s{st0}, s{st0}, s{st1}')
        k.e(f'buffer_load_dwordx4 {vr(RES,4)}, v{vl16}, {sr(SR,4)}, s{st0} offen')
        k.e(f'buffer_load_dwordx4 {vr(RES+4,4)}, v{vl16}, {sr(SR,4)}, s{st0} offen offset:1024')
        NRES = 2
        k.e(f's_lshl_b32 s{st0}, s{srb}, 16')
        srd(k, SO, sR, sR+1, 65536, f's{st0}')
    for c in range(1, NUP):
        dma_chunk(c)
    NB = (NSLOT + 1) // 2
    axb = [k.v() for _ in range(NB)]
    awb = [k.v() for _ in range(NB)]
    k.e(f's_lshl_b32 s{st0}, s{stq}, 13')
    k.e(f'v_add_u32 v{axb[0]}, s{st0}, v{vl16}')
    k.e(f'v_bfe_u32 v{tmp}, v{l}, 2, 2')
    k.e(f'v_lshl_add_u32 v{tmp+1}, v{h}, 2, v{tmp}')
    k.e(f'v_lshlrev_b32 v{tmp+1}, 7, v{tmp+1}')
    k.e(f'v_lshrrev_b32 v{tmp}, 1, v{tmp}')
    k.e(f'v_xor_b32 v{tmp}, s{scq}, v{tmp}')
    k.e(f'v_lshl_add_u32 v{tmp+1}, v{tmp}, 6, v{tmp+1}')
    k.e(f'v_bfe_u32 v{tmp}, v{l}, 4, 1')
    k.e(f'v_lshl_add_u32 v{tmp+1}, v{tmp}, 5, v{tmp+1}')
    k.e(f'v_and_b32 v{tmp}, 3, v{l}')
    k.e(f'v_lshl_add_u32 v{tmp+1}, v{tmp}, 3, v{tmp+1}')
    k.e(f'v_add_u32 v{awb[0]}, 16384, v{tmp+1}')
    for s in range(1, NB):
        k.e(f'v_add_u32 v{axb[s]}, {2*SLOT*s}, v{axb[0]}')
        k.e(f'v_add_u32 v{awb[s]}, {2*SLOT*s}, v{awb[0]}')
    DEPTH = 4
    XF = [k.v(4) for _ in range(DEPTH)]
    WF = [k.v(4) for _ in range(DEPTH)]
    ACC = k.v(16)
    def reads(n):
        c, i = n // 8, n % 8
        slot = c % NSLOT
        s, rel = slot // 2, (slot % 2) * SLOT
        p = n % DEPTH
        k.e(f'ds_read_b128 {vr(XF[p],4)}, v{axb[s]} offset:{rel + i*1024}')
        for w2 in range(2):
            k.e(f'ds_read_b64_tr_b16 {vr(WF[p]+2*w2,2)}, v{awb[s]} offset:{rel + i*2048 + w2*1024}')
    issued = [NUP]
    def sync(c):
        later = 8 * (issued[0] - 1 - c)
        if c == 0:
            later += NRES
        k.e(f's_waitcnt vmcnt({later}) lgkmcnt(0)')
        k.e('s_barrier')
        if c >= 1 and issued[0] < NCH:
            dma_chunk(issued[0]); issued[0] += 1
    LA = 2
    for c in range(NCH):
        sync(c)
        for i in range(LA):
            reads(8*c + i)
        for i in range(8):
            n = 8*c + i
            if i + LA < 8:
                reads(n + LA)
                k.e(f's_waitcnt lgkmcnt({3*LA})')
            else:
                k.e(f's_waitcnt lgkmcnt({3*(7-i)})')
            Cop = '0' if n == 0 else vr(ACC, 16)
            p = n % DEPTH
            k.e(f'v_mfma_f32_32x32x16_bf16 {vr(ACC,16)}, {vr(WF[p],4)}, {vr(XF[p],4)}, {Cop}')
    U = k.v(16)
    for d in range(8):
        k.e(f'v_lshlrev_b32 v{U+2*d}, 16, v{RES+d}')
        k.e(f'v_and_b32 v{U+2*d+1}, 0xffff0000, v{RES+d}')
    OUT = k.v(8, 4)
    if mode == 3:
        k.e(f's_lshl_b32 s{st0}, s{srb}, 1')
        k.e(f's_add_u32 s{st0}, s{st0}, s{stq}')
        k.e(f's_lshl_b32 s{st0}, s{st0}, 15')
        k.e(f's_lshl_b32 s{st1}, s{scb}, 12')
        k.e(f's_add_u32 s{st0}, s{st0}, s{st1}')
        k.e(f's_lshl_b32 s{st1}, s{scq}, 11')
        k.e(f's_add_u32 s{st0}, s{st0}, s{st1}')
    else:
        k.e(f'v_lshlrev_b32 v{vr_}, 10, v{t}')
        k.e(f'v_lshl_add_u32 v{vr_}, v{h}, 4, v{vr_}')
        k.e(f's_lshl_b32 s{st0}, s{stq}, 15')
        k.e(f's_lshl_b32 s{st1}, s{scb}, 7')
        k.e(f's_add_u32 s{st0}, s{st0}, s{st1}')
        k.e(f's_lshl_b32 s{st1}, s{scq}, 6')
        k.e(f's_add_u32 s{st0}, s{st0}, s{st1}')
    for r_ in range(16):
        k.e(f'v_add_f32 v{U+r_}, v{U+r_}, v{ACC+r_}')
    for q in range(8):
        k.e(f'v_cvt_pk_bf16_f32 v{OUT+q}, v{U+2*q}, v{U+2*q+1}')
    if mode == 3:
        k.e(f'buffer_store_dwordx4 {vr(OUT,4)}, v{vl16}, {sr(SO,4)}, s{st0} offen')
        k.e(f'buffer_store_dwordx4 {vr(OUT+4,4)}, v{vl16}, {sr(SO,4)}, s{st0} offen offset:1024')
    else:
        k.e('s_nop 1')
        for pz in range(2):
            k.e(f'v_permlane32_swap_b32 v{OUT+4*pz}, v{OUT+4*pz+2}')
            k.e(f'v_permlane32_swap_b32 v{OUT+4*pz+1}, v{OUT+4*pz+3}')
        k.e(f'buffer_store_dwordx4 {vr(OUT,4)}, v{vr_}, {sr(SO,4)}, s{st0} offen')
        k.e(f'buffer_store_dwordx4 {vr(OUT+4,4)}, v{vr_}, {sr(SO,4)}, s{st0} offen offset:32')
    k.label('end')
    k.e('s_endpgm')
    return k, (256, 256, NSLOT*SLOT)
```

```python
from fw import *
from k1 import *

def gen_k4(name='ffn1_kernel', prefetch=True):
    k = Kern(name)
    EX = 131072
    LDS = EX + 1024
    sWS = k.s(2); sWp = k.s(4)
    SH, SW, SO, SP = k.s(4), k.s(4), k.s(4), k.s(4)
    sw, srb, scb, st0, st1, st2, swo, smw, sones, stb, sidx = [k.s() for _ in range(11)]
    k.e('s_cmp_ge_u32 s2, 224')
    k.e(f's_cbranch_scc1 {k.lab("end")}')
    k.e(f's_load_dwordx2 {sr(sWS,2)}, s[0:1], 64')
    k.e(f's_load_dwordx4 {sr(sWp,4)}, s[0:1], 32')
    R = lane_regs(k)
    l, t, h = R['l'], R['t'], R['h']
    tmp = k.v(4)
    k.e(f'v_lshrrev_b32 v{tmp}, 6, v0')
    k.e(f's_and_b32 s{st0}, s2, 7')
    k.e(f'v_readfirstlane_b32 s{sw}, v{tmp}')
    k.e(f's_lshr_b32 s{sidx}, s2, 3')
    k.e(f's_cmp_ge_u32 s{sidx}, 14')
    k.e(f's_cselect_b32 s{st1}, 1, 0')
    k.e(f's_lshl_b32 s{srb}, s{st0}, 1')
    k.e(f's_add_u32 s{srb}, s{srb}, s{st1}')
    k.e(f's_mul_i32 s{st1}, s{st1}, 14')
    k.e(f's_sub_u32 s{scb}, s{sidx}, s{st1}')
    k.e(f's_lshl_b32 s{stb}, s{srb}, 2')
    k.e(f's_add_u32 s{stb}, s{stb}, s{sw}')
    k.e(f's_mov_b32 s{sones}, 0x3f803f80')
    vl16, vow = k.v(), k.v()
    k.e(f'v_lshlrev_b32 v{vl16}, 4, v{l}')
    k.e(f'v_lshrrev_b32 v{tmp}, 4, v{l}')
    k.e(f'v_lshlrev_b32 v{tmp+1}, 2, v{tmp}')
    k.e(f'v_and_b32 v{tmp+2}, 15, v{l}')
    k.e(f'v_xor_b32 v{tmp+1}, v{tmp+1}, v{tmp+2}')
    k.e(f'v_lshlrev_b32 v{tmp+1}, 4, v{tmp+1}')
    k.e(f'v_mul_u32_u24 v{tmp}, 3584, v{tmp}')
    k.e(f'v_add_u32 v{vow}, v{tmp}, v{tmp+1}')
    k.e(f's_mul_i32 s{swo}, s{sw}, {16*3584}')
    k.e(f's_lshl_b32 s{st0}, s{scb}, 8')
    k.e(f's_add_u32 s{swo}, s{swo}, s{st0}')
    k.e(f's_lshl_b32 s{smw}, s{sw}, 12')
    k.e(f's_lshl_b32 s{st0}, s{stb}, 15')
    k.e(f's_add_u32 s{st0}, s{st0}, {HF}')
    k.e('s_waitcnt lgkmcnt(0)')
    srd(k, SH, sWS, sWS+1, 32768, f's{st0}')
    srd(k, SW, sWp, sWp+1, 512*3584)
    H = k.v(128, 4)
    def issue(c):
        k.c(f'loads chunk {c}')
        for i in range(4):
            k.e(f's_add_u32 m0, s{smw}, {c*16384 + i*1024}')
            k.e(f's_add_u32 s{st2}, s{swo}, {(64*c + 4*i)*3584}')
            k.e(f'buffer_load_dwordx4 v{vow}, {sr(SW,4)}, s{st2} offen lds')
        k.e(f's_mov_b32 s{st2}, {c*4096}')
        for i in range(4):
            k.e(f'buffer_load_dwordx4 {vr(H+16*c+4*i,4)}, v{vl16}, {sr(SH,4)}, s{st2} offen offset:{i*1024}')
    NUP = 7
    for c in range(NUP):
        issue(c)
    k.e(f's_mul_i32 s{st0}, s{stb}, {112*1024}')
    k.e(f's_add_u32 s{st0}, s{st0}, {FF}')
    srd(k, SO, sWS, sWS+1, 112*1024, f's{st0}')
    aw = [[k.v() for i in range(4)] for s in range(2)]
    k.e(f'v_bfe_u32 v{tmp}, v{l}, 2, 2')
    k.e(f'v_lshl_add_u32 v{tmp+1}, v{h}, 2, v{tmp}')
    k.e(f'v_lshlrev_b32 v{tmp+1}, 8, v{tmp+1}')
    k.e(f'v_bfe_u32 v{tmp+2}, v{l}, 4, 1')
    k.e(f'v_lshl_add_u32 v{tmp+1}, v{tmp+2}, 5, v{tmp+1}')
    k.e(f'v_and_b32 v{tmp+2}, 3, v{l}')
    k.e(f'v_lshl_add_u32 v{tmp+1}, v{tmp+2}, 3, v{tmp+1}')
    for i in range(4):
        k.e(f's_xor_b32 s{st0}, s{sw}, {i}')
        k.e(f'v_xor_b32 v{tmp+2}, s{st0}, v{tmp}')
        k.e(f'v_lshl_add_u32 v{aw[0][i]}, v{tmp+2}, 6, v{tmp+1}')
        k.e(f'v_add_u32 v{aw[1][i]}, 65536, v{aw[0][i]}')
    WF = [[k.v(4) for i in range(4)] for p in range(2)]
    ACC = [k.v(16) for i in range(4)]
    sx = [k.v(), k.v()]; sxx = [k.v(), k.v()]; cs = [k.v(), k.v()]
    for r_ in sx + sxx + cs:
        k.e(f'v_mov_b32 v{r_}, 0')
    def reads(n):
        p = n & 1
        for i in range(4):
            for w2 in range(2):
                k.e(f'ds_read_b64_tr_b16 {vr(WF[p][i]+2*w2,2)}, v{aw[n//16][i]} offset:{(n%16)*4096 + w2*2048}')
    issued = [NUP]
    extra = [0]
    def sync(c):
        k.e(f's_waitcnt vmcnt({8*(issued[0]-1-c) + extra[0]})')
        k.e('s_barrier')
        if c >= 1 and issued[0] < 8:
            issue(issued[0]); issued[0] += 1
    sync(0)
    reads(0)
    for n in range(32):
        p = n & 1
        k.c(f'kstep {n}')
        if n + 1 < 32:
            if (n + 1) % 4 == 0:
                sync((n + 1) // 4)
            reads(n + 1)
            k.e('s_waitcnt lgkmcnt(8)')
        else:
            k.e('s_waitcnt lgkmcnt(0)')
        X = H + 4*n
        for i in range(4):
            Cop = '0' if n == 0 else vr(ACC[i], 16)
            k.e(f'v_mfma_f32_32x32x16_bf16 {vr(ACC[i],16)}, {vr(WF[p][i],4)}, {vr(X,4)}, {Cop}')
            if i == 0:
                for d in range(4):
                    k.e(f'v_dot2c_f32_bf16 v{sx[d&1]}, s{sones}, v{X+d}')
            elif i == 1:
                for d in range(4):
                    k.e(f'v_dot2c_f32_bf16 v{sxx[d&1]}, v{X+d}, v{X+d}')
            elif i == 2:
                for d in range(4):
                    k.e(f'v_dot2c_f32_bf16 v{cs[d&1]}, s{sones}, v{WF[p][0]+d}')
        if n == 8 and prefetch:
            srd(k, SP, sWp+2, sWp+3, 1792*1024)
            k.e(f'v_lshlrev_b32 v{tmp}, 6, v0')
            k.e(f's_lshl_b32 s{st0}, s{sidx}, 16')
            for q in range(4):
                k.e(f'buffer_load_dword v{tmp+3}, v{tmp}, {sr(SP,4)}, s{st0} offen')
                k.e(f's_add_u32 s{st0}, s{st0}, 16384')
            extra[0] = 4
    k.c('epilogue')
    a0, a2 = k.v(), k.v()
    mean, rstd = k.v(), k.v()
    k.e(f'v_add_f32 v{sx[0]}, v{sx[0]}, v{sx[1]}')
    k.e(f'v_add_f32 v{sxx[0]}, v{sxx[0]}, v{sxx[1]}')
    k.e(f'v_add_f32 v{cs[0]}, v{cs[0]}, v{cs[1]}')
    k.e(f'v_mov_b32 v{cs[1]}, v{cs[0]}')
    k.e(f's_lshl_b32 s{st0}, s{sw}, 7')
    k.e(f's_add_u32 s{st0}, s{st0}, {EX}')
    k.e(f'v_permlane32_swap_b32 v{cs[0]}, v{cs[1]}')
    k.e(f'v_lshlrev_b32 v{a0}, 2, v{t}')
    k.e(f'v_add_u32 v{a0}, s{st0}, v{a0}')
    k.e(f'v_add_f32 v{cs[0]}, v{cs[0]}, v{cs[1]}')
    k.e(f'ds_write_b32 v{a0}, v{cs[0]}')
    ln_stats(k, sx[0], sxx[0], H, mean, rstd)
    k.e(f'v_lshlrev_b32 v{a2}, 4, v{h}')
    k.e(f'v_add_u32 v{a2}, {EX}, v{a2}')
    k.e('s_waitcnt lgkmcnt(0)')
    k.e('s_barrier')
    CS = H + 8
    for i in range(4):
        k.e(f's_xor_b32 s{st0}, s{sw}, {i}')
        k.e(f's_lshl_b32 s{st0}, s{st0}, 7')
        k.e(f'v_add_u32 v{a0}, s{st0}, v{a2}')
        for g in range(4):
            k.e(f'ds_read_b128 {vr(CS+16*i+4*g,4)}, v{a0} offset:{g*32}')
    OUT = H + 72
    for i in range(4):
        k.e(f's_waitcnt lgkmcnt({4*(3-i)})')
        for r_ in range(16):
            k.e(f'v_fma_f32 v{ACC[i]+r_}, -v{mean}, v{CS+16*i+r_}, v{ACC[i]+r_}')
        for r_ in range(16):
            k.e(f'v_mul_f32 v{ACC[i]+r_}, v{ACC[i]+r_}, v{rstd}')
        for q in range(8):
            k.e(f'v_cvt_pk_bf16_f32 v{OUT+8*i+q}, v{ACC[i]+2*q}, v{ACC[i]+2*q+1}')
        for q in range(8):
            k.e(f'v_pk_max_i16 v{OUT+8*i+q}, v{OUT+8*i+q}, 0')
        k.e(f's_xor_b32 s{st0}, s{sw}, {i}')
        k.e(f's_lshl_b32 s{st0}, s{st0}, 11')
        k.e(f's_lshl_b32 s{st1}, s{scb}, 13')
        k.e(f's_add_u32 s{st0}, s{st0}, s{st1}')
        k.e(f'buffer_store_dwordx4 {vr(OUT+8*i,4)}, v{vl16}, {sr(SO,4)}, s{st0} offen')
        k.e(f'buffer_store_dwordx4 {vr(OUT+8*i+4,4)}, v{vl16}, {sr(SO,4)}, s{st0} offen offset:1024')
    k.label('end')
    k.e('s_endpgm')
    return k, (224, 256, LDS)
```

```python
import sys
from fw import *
from k1 import gen_k1
from k2 import gen_k2
from k35 import gen_k35
from k4 import gen_k4
NAME = 'sequential_preLN__mha_block__dense_activation_relu__prompt'
def build(out, ks=None):
    if ks is None:
        ks = [gen_k1(), gen_k2(), gen_k35('oproj_kernel', 3), gen_k4(), gen_k35('ffn2_kernel', 5)]
    ref = open(f'cdna_kernels/{NAME}.s.ref').read().split('\n')
    head = [l for l in ref[:10]]
    s = '\n'.join(head) + '\n'
    s += '; Generated by gen/gen.py (hand-designed kernels, emitted by my own generator).\n'
    for k, (g, b, lds) in ks:
        s += f'; @launch kernel={k.name} grid=({g},1,1) block=({b},1,1) lds={lds}\n'
    s += '.amdgcn_target "amdgcn-amd-amdhsa--gfx950"\n.text\n'
    seen = []
    for k, _ in ks:
        if k.name in seen: continue
        seen.append(k.name)
        s += k.text()
    s += '.section .rodata,"a"\n'
    seen = []
    for k, _ in ks:
        if k.name in seen: continue
        seen.append(k.name)
        s += k.desc()
    open(out, 'w').write(s)
    for k, cfg in ks:
        print(k.name, cfg, 'vgpr', k.vmax, 'sgpr', k.smax, 'lines', len(k.L))
if __name__ == '__main__':
    build(sys.argv[1] if len(sys.argv) > 1 else f'cdna_kernels/{NAME}.s')
```

```python
class Kern:
    def __init__(self, name):
        self.name = name
        self.L = []
        self.vn = 1
        self.vmax = 1
        self.sn = 4
        self.smax = 4
        self.nlab = 0
    def e(self, s):
        for line in s.split('\n'):
            line = line.strip()
            if line:
                self.L.append('    ' + line)
    def c(self, s):
        self.L.append('    ; ' + s)
    def label(self, l):
        self.L.append(f'{self.name}_{l}:')
    def lab(self, l):
        return f'{self.name}_{l}'
    def v(self, n=1, align=None):
        if align is None:
            align = 2 if n >= 2 else 1
        b = (self.vn + align - 1) // align * align
        self.vn = b + n
        self.vmax = max(self.vmax, self.vn)
        return b
    def s(self, n=1, align=None):
        if align is None:
            align = 4 if n >= 4 else (2 if n >= 2 else 1)
        b = (self.sn + align - 1) // align * align
        self.sn = b + n
        self.smax = max(self.smax, self.sn)
        assert self.sn <= 100
        return b
    def stamp(self, tag=''):
        self.L.append(f'    ;@STAMP {tag}')
    def instrument(self, idx):
        L = self.L
        pre = ['    s_memrealtime s[90:91]', '    s_memtime s[92:93]', '    s_load_dwordx2 s[94:95], s[0:1], 64', '    s_mov_b32 s89, s2', '    v_mov_b32 v255, v0']
        out = []
        n = 0
        self.tags = []
        for x in L:
            if x.strip().startswith(';@STAMP'):
                assert n < 12
                out.append(f'    s_memtime s[{58+2*n}:{59+2*n}]')
                self.tags.append(x.strip()[8:])
                n += 1
            else:
                out.append(x)
        L = out
        first_end = [i for i, x in enumerate(L) if x.strip() == f'{self.name}_end:'][0]
        post = ['    s_waitcnt vmcnt(0) lgkmcnt(0)', '    s_memrealtime s[96:97]', '    s_memtime s[98:99]', '    s_waitcnt lgkmcnt(0)',
                '    s_sub_u32 s98, s98, s92',
                f'    s_add_u32 s84, s94, {(32<<20) + idx*131072}', '    s_addc_u32 s85, s95, 0', '    s_mov_b32 s86, 131072', '    s_mov_b32 s87, 0x20000',
                '    v_mov_b32 v236, s90', '    v_mov_b32 v237, s96', '    v_mov_b32 v238, s98', '    v_mov_b32 v239, 0']
        for q in range(12):
            if q < n:
                post.append(f'    s_sub_u32 s{58+2*q}, s{58+2*q}, s92')
                post.append(f'    v_mov_b32 v{240+q}, s{58+2*q}')
            else:
                post.append(f'    v_mov_b32 v{240+q}, 0')
        post += ['    v_lshrrev_b32 v254, 6, v255', '    v_lshlrev_b32 v254, 6, v254', '    s_lshl_b32 s89, s89, 9', '    v_add_u32 v254, s89, v254',
                '    v_and_b32 v255, 63, v255', '    v_cmp_eq_u32 vcc, 0, v255', '    s_and_saveexec_b64 s[82:83], vcc']
        for q in range(4):
            post.append(f'    buffer_store_dwordx4 v[{236+4*q}:{239+4*q}], v254, s[84:87], 0 offen offset:{16*q}')
        self.L = pre + L[:first_end] + post + L[first_end:]
        assert self.smax <= 58
        self.vmax = 256
        self.smax = 100
    def text(self):
        return (f'.globl {self.name}\n.p2align 8\n.type {self.name},@function\n{self.name}:\n'
                + '\n'.join(self.L) + '\n')
    def desc(self):
        nv = self.vmax
        assert nv <= 256, nv
        acc = (nv + 3) // 4 * 4
        return f'''.p2align 6
.amdhsa_kernel {self.name}
  .amdhsa_next_free_vgpr {nv}
  .amdhsa_next_free_sgpr {max(self.smax, 8)}
  .amdhsa_accum_offset {acc}
  .amdhsa_group_segment_fixed_size 0
  .amdhsa_kernarg_size 72
  .amdhsa_user_sgpr_count 2
  .amdhsa_user_sgpr_kernarg_segment_ptr 1
  .amdhsa_system_sgpr_workgroup_id_x 1
.end_amdhsa_kernel
'''
def vr(b, n):
    return f'v[{b}:{b+n-1}]' if n > 1 else f'v{b}'
def sr(b, n):
    return f's[{b}:{b+n-1}]' if n > 1 else f's{b}'

def srd(k, d, lo, hi, nbytes, off=None):
    if off is None:
        k.e(f's_mov_b32 s{d}, s{lo}')
        k.e(f's_mov_b32 s{d+1}, s{hi}')
    else:
        k.e(f's_add_u32 s{d}, s{lo}, {off}')
        k.e(f's_addc_u32 s{d+1}, s{hi}, 0')
    k.e(f's_mov_b32 s{d+2}, {nbytes}')
    k.e(f's_mov_b32 s{d+3}, 0x20000')
```

```python
import sys
from fw import *
from k1 import gen_k1
from k2 import gen_k2
from k35 import gen_k35
from k4 import gen_k4
from mega import gen_mega
NAME = 'sequential_preLN__mha_block__dense_activation_relu__prompt'
def build(out, ks=None, instr=False, todebug=None):
    if ks is None:
        ks = [gen_k1(), gen_mega()]
    if instr:
        for i, (k, _) in enumerate(ks):
            assert k.vmax <= 250 or True
            k.instrument(i, todebug[i] if todebug else None)
            print(k.tags)
    ref = open(f'cdna_kernels/{NAME}.s.ref').read().split('\n')
    head = [l for l in ref[:10]]
    s = '\n'.join(head) + '\n'
    s += '; Generated by gen/gen.py (hand-designed kernels, emitted by my own generator).\n'
    for k, (g, b, lds) in ks:
        s += f'; @launch kernel={k.name} grid=({g},1,1) block=({b},1,1) lds={lds}\n'
    s += '.amdgcn_target "amdgcn-amd-amdhsa--gfx950"\n.text\n'
    seen = []
    for k, _ in ks:
        if k.name in seen: continue
        seen.append(k.name)
        s += k.text()
    s += '.section .rodata,"a"\n'
    seen = []
    for k, _ in ks:
        if k.name in seen: continue
        seen.append(k.name)
        s += k.desc()
    open(out, 'w').write(s)
    for k, cfg in ks:
        print(k.name, cfg, 'vgpr', k.vmax, 'sgpr', k.smax, 'lines', len(k.L))
if __name__ == '__main__':
    build(f'cdna_kernels/{NAME}.s')
    build('instr.s', instr=True)
```

```python
from fw import *
MB = 1 << 20
QF, KF, VF, OF, HF, FF = 0, 2*MB, 4*MB, 6*MB, 8*MB, 10*MB
WS_USED = 17*MB
QSCALE = 0.25 * 1.4426950408889634

import struct
def f32(x):
    return '0x%08x' % struct.unpack('<I', struct.pack('<f', x))[0]

def lane_regs(k):
    R = {}
    for n in ('l', 't', 'h'):
        R[n] = k.v()
    k.e(f'v_and_b32 v{R["l"]}, 63, v0')
    k.e(f'v_and_b32 v{R["t"]}, 31, v0')
    k.e(f'v_bfe_u32 v{R["h"]}, v0, 5, 1')
    return R

def round_bf16(k, v):
    k.e(f'v_cvt_pk_bf16_f32 v{v}, v{v}, v{v}')
    k.e(f'v_and_b32 v{v}, 0xffff0000, v{v}')

def ln_stats(k, sx, sxx, tmp, mean, rstd):
    k.e(f'v_mov_b32 v{tmp}, v{sx}')
    k.e(f'v_mov_b32 v{tmp+1}, v{sxx}')
    k.e('s_nop 1')
    k.e(f'v_permlane32_swap_b32 v{sx}, v{tmp}')
    k.e(f'v_permlane32_swap_b32 v{sxx}, v{tmp+1}')
    k.e('s_nop 1')
    k.e(f'v_add_f32 v{sx}, v{sx}, v{tmp}')
    k.e(f'v_add_f32 v{sxx}, v{sxx}, v{tmp+1}')
    k.e(f'v_mul_f32 v{mean}, {f32(1/512)}, v{sx}')
    k.e(f'v_mul_f32 v{sxx}, {f32(1/512)}, v{sxx}')
    k.e(f'v_fma_f32 v{rstd}, -v{mean}, v{mean}, v{sxx}')
    k.e(f'v_max_f32 v{rstd}, 0, v{rstd}')
    round_bf16(k, mean)
    round_bf16(k, rstd)
    k.e(f'v_add_f32 v{rstd}, {f32(1e-5)}, v{rstd}')
    round_bf16(k, rstd)
    k.e(f'v_sqrt_f32 v{rstd}, v{rstd}')
    k.e('s_nop 0')
    round_bf16(k, rstd)
    k.e(f'v_rcp_f32 v{rstd}, v{rstd}')
    k.e('s_nop 0')

def gen_k1(name='qkv_kernel'):
    k = Kern(name)
    SLOT = 28672
    NSLOT = 5
    NCH = 8
    sX, sWS = k.s(4), k.s(2)
    SX, SW, SO = k.s(4), k.s(4), k.s(4)
    sw, srb, sj, sxo, swo, smx, smw, st0, st1, st2, sones, srot = [k.s() for _ in range(12)]
    k.e(f's_cmp_ge_u32 s2, 256')
    k.e(f's_cbranch_scc1 {k.lab("end")}')
    k.e(f's_load_dwordx4 {sr(sX,4)}, s[0:1], 0')
    k.e(f's_load_dwordx2 {sr(sWS,2)}, s[0:1], 64')
    R = lane_regs(k)
    l, t, h = R['l'], R['t'], R['h']
    tmp = k.v(8)
    k.e(f'v_lshrrev_b32 v{tmp}, 6, v0')
    k.e(f's_and_b32 s{st0}, s2, 7')
    k.e(f'v_readfirstlane_b32 s{sw}, v{tmp}')
    k.e(f's_lshr_b32 s{st1}, s2, 3')
    k.e(f's_lshr_b32 s{srb}, s{st0}, 1')
    k.e(f's_lshl_b32 s{srb}, s{srb}, 2')
    k.e(f's_lshr_b32 s{st2}, s{st1}, 3')
    k.e(f's_add_u32 s{srb}, s{srb}, s{st2}')
    k.e(f's_and_b32 s{sj}, s{st0}, 1')
    k.e(f's_lshl_b32 s{sj}, s{sj}, 3')
    k.e(f's_and_b32 s{st2}, s{st1}, 7')
    k.e(f's_add_u32 s{sj}, s{sj}, s{st2}')
    k.e(f's_mov_b32 s{srot}, s{st2}')
    k.e(f's_mov_b32 s{sones}, 0x3f803f80')
    vox = [k.v(), k.v()]
    vow = k.v()
    k.e(f'v_and_b32 v{tmp}, 7, v{l}')
    k.e(f'v_lshrrev_b32 v{tmp+1}, 4, v{l}')
    k.e(f'v_xor_b32 v{tmp}, v{tmp}, v{tmp+1}')
    k.e(f'v_lshlrev_b32 v{tmp}, 4, v{tmp}')
    k.e(f'v_lshrrev_b32 v{tmp+1}, 3, v{l}')
    k.e(f'v_lshl_add_u32 v{vox[0]}, v{tmp+1}, 10, v{tmp}')
    k.e(f'v_xor_b32 v{vox[1]}, 64, v{vox[0]}')
    k.e(f'v_lshrrev_b32 v{tmp}, 2, v{l}')
    k.e(f'v_mul_u32_u24 v{tmp}, 3072, v{tmp}')
    k.e(f'v_and_b32 v{tmp+1}, 3, v{l}')
    k.e(f'v_lshl_add_u32 v{vow}, v{tmp+1}, 4, v{tmp}')
    k.e(f's_lshl_b32 s{sxo}, s{sw}, 15')
    k.e(f's_mul_i32 s{swo}, s{sw}, {16*3072}')
    k.e(f's_lshl_b32 s{st0}, s{sj}, 6')
    k.e(f's_add_u32 s{swo}, s{swo}, s{st0}')
    k.e(f's_lshl_b32 s{smx}, s{sw}, 12')
    k.e(f's_lshl_b32 s{smw}, s{sw}, 10')
    k.e(f's_add_u32 s{smw}, s{smw}, 16384')
    k.e(f's_lshl_b32 s{st0}, s{srb}, 17')
    k.e('s_waitcnt lgkmcnt(0)')
    k.stamp('karg')
    srd(k, SX, sX, sX+1, 131072, f's{st0}')
    srd(k, SW, sX+2, sX+3, 512*3072)
    srd(k, SO, sWS, sWS+1, 6*MB)

    def dma_chunk(c):
        sb = (c % NSLOT) * SLOT
        k.c(f'DMA chunk {c}')
        k.e(f's_add_u32 s{st0}, s{srot}, {c}')
        k.e(f's_and_b32 s{st0}, s{st0}, 7')
        k.e(f's_lshl_b32 s{st1}, s{st0}, 7')
        k.e(f's_add_u32 s{st1}, s{st1}, s{sxo}')
        k.e(f's_mul_i32 s{st0}, s{st0}, {64*3072}')
        k.e(f's_add_u32 s{st0}, s{st0}, s{swo}')
        for i in range(4):
            k.e(f's_add_u32 m0, s{smx}, {sb + i*1024}')
            k.e(f's_add_u32 s{st2}, s{st1}, {i*8192}')
            k.e(f'buffer_load_dwordx4 v{vox[i&1]}, {sr(SX,4)}, s{st2} offen lds')
        for b in range(3):
            k.e(f's_add_u32 m0, s{smw}, {sb + b*4096}')
            k.e(f's_add_u32 s{st2}, s{st0}, {b*1024}')
            k.e(f'buffer_load_dwordx4 v{vow}, {sr(SW,4)}, s{st2} offen lds')
    for c in range(NSLOT):
        dma_chunk(c)

    k.stamp('issued')
    ax = [[k.v() for i in range(4)] for s in range(3)]
    aw = [[k.v() for i in range(4)] for s in range(3)]
    k.e(f'v_bfe_u32 v{tmp}, v{t}, 1, 3')
    k.e(f'v_xor_b32 v{tmp}, v{tmp}, v{h}')
    k.e(f'v_lshlrev_b32 v{tmp+1}, 7, v{t}')
    k.e(f'v_add_u32 v{tmp+1}, s{smx}, v{tmp+1}')
    k.e(f'v_bfe_u32 v{tmp+2}, v{l}, 2, 2')
    k.e(f'v_lshl_add_u32 v{tmp+2}, v{h}, 3, v{tmp+2}')
    k.e(f'v_lshlrev_b32 v{tmp+2}, 6, v{tmp+2}')
    k.e(f'v_bfe_u32 v{tmp+3}, v{l}, 4, 1')
    k.e(f'v_lshl_add_u32 v{tmp+2}, v{tmp+3}, 5, v{tmp+2}')
    k.e(f'v_and_b32 v{tmp+3}, 3, v{l}')
    k.e(f'v_lshl_add_u32 v{tmp+2}, v{tmp+3}, 3, v{tmp+2}')
    k.e(f'v_add_u32 v{tmp+2}, 16384, v{tmp+2}')
    for i in range(4):
        k.e(f's_xor_b32 s{st0}, s{sw}, {i}')
        k.e(f's_lshl_b32 s{st1}, s{st0}, 1')
        k.e(f'v_xor_b32 v{tmp+4}, s{st1}, v{tmp}')
        k.e(f'v_lshl_add_u32 v{ax[0][i]}, v{tmp+4}, 4, v{tmp+1}')
        k.e(f's_lshl_b32 s{st1}, s{st0}, 10')
        k.e(f'v_add_u32 v{aw[0][i]}, s{st1}, v{tmp+2}')
        for s in (1, 2):
            k.e(f'v_add_u32 v{ax[s][i]}, {2*SLOT*s}, v{ax[0][i]}')
            k.e(f'v_add_u32 v{aw[s][i]}, {2*SLOT*s}, v{aw[0][i]}')

    XF = [k.v(4), k.v(4)]
    WF = [[k.v(4) for b in range(3)] for s in range(2)]
    ACC = [k.v(16) for b in range(3)]
    sx = [k.v(), k.v()]
    sxx = [k.v(), k.v()]
    cs = [k.v() for b in range(3)]
    for r_ in sx + sxx + cs:
        k.e(f'v_mov_b32 v{r_}, 0')

    def reads(n):
        c, i = n // 4, n % 4
        slot = c % NSLOT
        s, rel = slot // 2, (slot % 2) * SLOT
        p = n & 1
        k.e(f'ds_read_b128 {vr(XF[p],4)}, v{ax[s][i]} offset:{rel}')
        for b in range(3):
            for w2 in range(2):
                k.e(f'ds_read_b64_tr_b16 {vr(WF[p][b]+2*w2,2)}, v{aw[s][i]} offset:{rel + b*4096 + w2*256}')
    vm_wait = {0: 28, 1: 21, 2: 21, 3: 21, 4: 21, 5: 14, 6: 7, 7: 0}
    def sync(c):
        k.e(f's_waitcnt vmcnt({vm_wait[c]}) lgkmcnt(0)')
        k.e('s_barrier')
        if c >= 1 and c + NSLOT - 1 < NCH:
            dma_chunk(c + NSLOT - 1)
    sync(0)
    k.stamp('first')
    reads(0)
    NK = 4 * NCH
    for n in range(NK):
        p = n & 1
        i = n % 4
        k.c(f'kstep {n}')
        if n in (8, 16, 24): k.stamp(f'k{n}')
        if n + 1 < NK:
            if (n + 1) % 4 == 0:
                sync((n + 1) // 4)
                reads(n + 1)
            else:
                reads(n + 1)
                k.e('s_waitcnt lgkmcnt(7)')
        else:
            k.e('s_waitcnt lgkmcnt(0)')
        C = (lambda b: '0') if n == 0 else (lambda b: vr(ACC[b], 16))
        k.e(f'v_mfma_f32_32x32x16_bf16 {vr(ACC[0],16)}, {vr(WF[p][0],4)}, {vr(XF[p],4)}, {C(0)}')
        for d in range(4):
            k.e(f'v_dot2c_f32_bf16 v{sx[d&1]}, s{sones}, v{XF[p]+d}')
        k.e(f'v_mfma_f32_32x32x16_bf16 {vr(ACC[1],16)}, {vr(WF[p][1],4)}, {vr(XF[p],4)}, {C(1)}')
        for d in range(4):
            k.e(f'v_dot2c_f32_bf16 v{sxx[d&1]}, v{XF[p]+d}, v{XF[p]+d}')
        k.e(f'v_mfma_f32_32x32x16_bf16 {vr(ACC[2],16)}, {vr(XF[p],4)}, {vr(WF[p][2],4)}, {C(2)}')
        if i == 0:
            for d in range(4):
                for b in range(3):
                    k.e(f'v_dot2c_f32_bf16 v{cs[b]}, s{sones}, v{WF[p][b]+d}')
    k.stamp('loopend')
    k.c('epilogue: column-sum partials')
    a0, a1, a2 = k.v(), k.v(), k.v()
    k.e(f's_mul_i32 s{st0}, s{sw}, 768')
    k.e(f'v_mul_u32_u24 v{a0}, 384, v{h}')
    k.e(f'v_lshl_add_u32 v{a0}, v{t}, 2, v{a0}')
    k.e(f'v_add_u32 v{a0}, s{st0}, v{a0}')
    for b in range(3):
        k.e(f'ds_write_b32 v{a0}, v{cs[b]} offset:{b*128}')
    k.e(f'v_add_f32 v{sx[0]}, v{sx[0]}, v{sx[1]}')
    k.e(f'v_add_f32 v{sxx[0]}, v{sxx[0]}, v{sxx[1]}')
    mean, rstd = k.v(), k.v()
    ln_stats(k, sx[0], sxx[0], tmp, mean, rstd)
    k.e(f's_lshl_b32 s{st0}, s{sw}, 9')
    k.e(f's_add_u32 s{st0}, s{st0}, 4096')
    k.e(f'v_lshlrev_b32 v{a1}, 2, v{t}')
    k.e(f'v_add_u32 v{a1}, s{st0}, v{a1}')
    k.e(f'ds_write_b32 v{a1}, v{mean} offset:256')
    k.e(f'ds_write_b32 v{a1}, v{rstd} offset:384')
    k.e(f'v_lshlrev_b32 v{a2}, 4, v{h}')
    k.e(f'v_add_u32 v{a2}, s{st0}, v{a2}')
    k.e('s_waitcnt lgkmcnt(0)')
    k.e('s_barrier')
    MR = k.v(16); RR = k.v(16); CS = k.v(32)
    P1 = k.v(8); P2 = k.v(8)
    k.e(f'v_lshlrev_b32 v{a0}, 2, v{l}')
    k.e(f'v_lshlrev_b32 v{tmp}, 2, v{t}')
    for p in range(8):
        k.e(f'ds_read_b32 v{P1+p}, v{a0} offset:{p*384}')
    for p in range(8):
        k.e(f'ds_read_b32 v{P2+p}, v{tmp} offset:{256+p*384}')
    for g in range(4):
        k.e(f'ds_read_b128 {vr(MR+4*g,4)}, v{a2} offset:{256+g*32}')
    for g in range(4):
        k.e(f'ds_read_b128 {vr(RR+4*g,4)}, v{a2} offset:{384+g*32}')
    k.e('s_waitcnt lgkmcnt(15)')
    k.e('s_waitcnt lgkmcnt(8)')
    for p in (4, 2, 1):
        for q in range(p):
            k.e(f'v_add_f32 v{P1+q}, v{P1+q}, v{P1+q+p}')
            k.e(f'v_add_f32 v{P2+q}, v{P2+q}, v{P2+q+p}')
    k.e(f'v_add_u32 v{a0}, s{st0}, v{a0}')
    k.e(f'ds_write_b32 v{a0}, v{P1}')
    k.e('s_waitcnt lgkmcnt(0)')
    for b in range(2):
        for g in range(4):
            k.e(f'ds_read_b128 {vr(CS+16*b+4*g,4)}, v{a2} offset:{b*128+g*32}')
    OUT = [k.v(8, 4) for b in range(3)]
    for r_ in range(16):
        k.e(f'v_fma_f32 v{ACC[2]+r_}, -v{MR+r_}, v{P2}, v{ACC[2]+r_}')
    for r_ in range(16):
        k.e(f'v_mul_f32 v{ACC[2]+r_}, v{ACC[2]+r_}, v{RR+r_}')
    for q in range(8):
        k.e(f'v_cvt_pk_bf16_f32 v{OUT[2]+q}, v{ACC[2]+2*q}, v{ACC[2]+2*q+1}')
    vo, vov = k.v(), k.v()
    k.e(f'v_lshlrev_b32 v{vo}, 4, v{l}')
    k.e(f'v_bfe_u32 v{tmp}, v{l}, 4, 1')
    k.e(f'v_lshlrev_b32 v{vov}, 16, v{tmp}')
    k.e(f'v_lshl_add_u32 v{vov}, v{h}, 8, v{vov}')
    k.e(f'v_and_b32 v{tmp}, 15, v{l}')
    k.e(f'v_lshl_add_u32 v{vov}, v{tmp}, 4, v{vov}')
    k.e(f's_lshl_b32 s{st0}, s{sj}, 17')
    k.e(f's_lshl_b32 s{st1}, s{srb}, 2')
    k.e(f's_add_u32 s{st1}, s{st1}, s{sw}')
    k.e(f's_lshl_b32 s{st1}, s{st1}, 10')
    k.e(f's_add_u32 s{st0}, s{st0}, s{st1}')
    k.e(f's_add_u32 s{st1}, s{st0}, {VF}')
    k.e(f'buffer_store_dwordx4 {vr(OUT[2],4)}, v{vov}, {sr(SO,4)}, s{st1} offen')
    k.e(f'buffer_store_dwordx4 {vr(OUT[2]+4,4)}, v{vov}, {sr(SO,4)}, s{st1} offen offset:512')
    rq = k.v()
    k.e(f'v_mul_f32 v{rq}, {f32(QSCALE)}, v{rstd}')
    k.e('s_waitcnt lgkmcnt(0)')
    for b in (1, 0):
        sc = rq if b == 0 else rstd
        for r_ in range(16):
            k.e(f'v_fma_f32 v{ACC[b]+r_}, -v{mean}, v{CS+16*b+r_}, v{ACC[b]+r_}')
        for r_ in range(16):
            k.e(f'v_mul_f32 v{ACC[b]+r_}, v{ACC[b]+r_}, v{sc}')
        for q in range(8):
            k.e(f'v_cvt_pk_bf16_f32 v{OUT[b]+q}, v{ACC[b]+2*q}, v{ACC[b]+2*q+1}')
        base = QF if b == 0 else KF
        k.e(f's_add_u32 s{st1}, s{st0}, {base}')
        k.e(f's_add_u32 s{st2}, s{st0}, {base+65536}')
        k.e(f'buffer_store_dwordx4 {vr(OUT[b],4)}, v{vo}, {sr(SO,4)}, s{st1} offen')
        k.e(f'buffer_store_dwordx4 {vr(OUT[b]+4,4)}, v{vo}, {sr(SO,4)}, s{st2} offen')
    k.stamp('stored')
    k.label('end')
    k.e('s_endpgm')
    return k, (256, 256, NSLOT*SLOT)
```

```python
from fw import *
from k1 import *

def gen_k2(name='attn_kernel', prefetch=True):
    k = Kern(name)
    KB, VB, ONES = 0, 65536, 131072
    LDS = ONES + 8192
    sWS = k.s(2)
    sW = k.s(4)
    sW1 = k.s(4)
    SKV, SO, SP = k.s(4), k.s(4), k.s(4)
    sw, shead, stb, st0, st1, st2, sit, sidx = [k.s() for _ in range(8)]
    smask = k.s(2)
    k.e('s_cmp_ge_u32 s2, 256')
    k.e(f's_cbranch_scc1 {k.lab("end")}')
    k.e(f's_load_dwordx2 {sr(sWS,2)}, s[0:1], 64')
    k.e(f's_load_dwordx2 {sr(sW,2)}, s[0:1], 16')
    k.e(f's_load_dwordx4 {sr(sW1,4)}, s[0:1], 32')
    R = lane_regs(k)
    l, t, h = R['l'], R['t'], R['h']
    tmp = k.v(4)
    k.e(f'v_lshrrev_b32 v{tmp}, 6, v0')
    k.e(f's_and_b32 s{st0}, s2, 7')
    k.e(f'v_readfirstlane_b32 s{sw}, v{tmp}')
    k.e(f's_lshr_b32 s{sidx}, s2, 3')
    k.e(f's_lshl_b32 s{shead}, s{st0}, 2')
    k.e(f's_lshr_b32 s{st1}, s{sidx}, 3')
    k.e(f's_add_u32 s{shead}, s{shead}, s{st1}')
    k.e(f's_and_b32 s{stb}, s{sidx}, 7')
    k.e(f's_lshl_b32 s{stb}, s{stb}, 3')
    k.e(f's_add_u32 s{stb}, s{stb}, s{sw}')
    vl16 = k.v()
    k.e(f'v_lshlrev_b32 v{vl16}, 4, v{l}')
    ON = k.v(4)
    for d in range(4):
        k.e(f'v_mov_b32 v{ON+d}, 0x3f803f80')
    k.e(f'v_lshlrev_b32 v{tmp}, 4, v0')
    k.e(f'v_add_u32 v{tmp}, {ONES}, v{tmp}')
    k.e(f'ds_write_b128 v{tmp}, {vr(ON,4)}')
    k.e('s_waitcnt lgkmcnt(0)')
    k.stamp('karg')
    srd(k, SKV, sWS, sWS+1, 6*MB)
    srd(k, SO, sWS, sWS+1, 2*MB, OF)
    Q = k.v(4)
    k.e(f's_lshl_b32 s{st0}, s{shead}, 16')
    k.e(f's_lshl_b32 s{st1}, s{stb}, 10')
    k.e(f's_add_u32 s{st1}, s{st1}, s{st0}')
    k.e(f'buffer_load_dwordx4 {vr(Q,4)}, v{vl16}, {sr(SKV,4)}, s{st1} offen')
    k.e(f's_lshr_b32 s{st1}, s{sw}, 2')
    k.e(f's_and_b32 s{st2}, s{sw}, 3')
    k.e(f's_lshl_b32 s{st2}, s{st2}, 10')
    k.e(f's_lshl_b32 s{sit}, s{st1}, 21')
    k.e(f's_add_u32 s{st0}, s{st0}, s{sit}')
    k.e(f's_add_u32 s{st0}, s{st0}, s{st2}')
    k.e(f's_add_u32 s{st0}, s{st0}, {KF}')
    k.e(f's_lshl_b32 s{st1}, s{st1}, 16')
    k.e(f's_add_u32 s{st1}, s{st1}, s{st2}')
    for r in range(16):
        k.e(f's_add_u32 m0, s{st1}, {r*4096}')
        k.e(f's_add_u32 s{st2}, s{st0}, {r*4096}')
        k.e(f'buffer_load_dwordx4 v{vl16}, {sr(SKV,4)}, s{st2} offen lds')
    k.stamp('issued')
    vk, vv, vinc = k.v(), k.v(), k.v()
    k.e(f'v_mov_b32 v{vk}, v{vl16}')
    k.e(f'v_and_b32 v{tmp}, 15, v{l}')
    k.e(f'v_lshlrev_b32 v{tmp}, 4, v{tmp}')
    k.e(f'v_lshl_add_u32 v{tmp}, v{h}, 8, v{tmp}')
    k.e(f'v_bfe_u32 v{tmp+1}, v{l}, 4, 1')
    k.e(f'v_lshlrev_b32 v{tmp+2}, 16, v{tmp+1}')
    k.e(f'v_add_u32 v{vv}, v{tmp}, v{tmp+2}')
    k.e(f'v_add_u32 v{vv}, {VB}, v{vv}')
    k.e(f'v_xor_b32 v{tmp+1}, 1, v{tmp+1}')
    k.e(f'v_lshlrev_b32 v{vinc}, 13, v{tmp+1}')
    S = [k.v(16), k.v(16)]
    NM = k.v(16)
    O = k.v(16)
    P = k.v(8)
    KFr = k.v(4); V0 = k.v(4); V1 = k.v(4)
    dummy = k.v()
    k.e('s_waitcnt vmcnt(14)')
    k.e('s_barrier')
    k.stamp('first')
    k.e(f'ds_read_b128 {vr(KFr,4)}, v{vk}')
    k.e('s_waitcnt lgkmcnt(0)')
    k.e(f'v_mfma_f32_32x32x16_bf16 {vr(S[0],16)}, {vr(KFr,4)}, {vr(Q,4)}, 0')
    for r_ in range(16):
        k.e(f'v_mov_b32 v{O+r_}, 0')
    def rowmax16(src, dst):
        k.e(f'v_max3_f32 v{dst}, v{src}, v{src+1}, v{src+2}')
        for q in range(3, 15, 2):
            k.e(f'v_max3_f32 v{dst}, v{dst}, v{src+q}, v{src+q+1}')
        k.e(f'v_max_f32 v{dst}, v{dst}, v{src+15}')
    def set_negm(m):
        k.e(f'v_mov_b32 v{tmp+1}, v{m}')
        k.e('s_nop 1')
        k.e(f'v_permlane32_swap_b32 v{m}, v{tmp+1}')
        k.e('s_nop 1')
        k.e(f'v_max_f32 v{m}, v{m}, v{tmp+1}')
        for r_ in range(16):
            k.e(f'v_sub_f32 v{NM+r_}, 0, v{m}')
    rowmax16(S[0], tmp)
    set_negm(tmp)
    k.e('s_nop 1')
    k.e(f'v_mfma_f32_32x32x16_bf16 {vr(S[0],16)}, {vr(KFr,4)}, {vr(Q,4)}, {vr(NM,16)}')
    for d in range(4):
        k.e(f'v_mov_b32 v{P+4+d}, 0')
    k.e(f'ds_read_b128 {vr(KFr,4)}, v{vk} offset:1024')
    k.e(f'ds_read_b128 {vr(V1,4)}, v{vv} offset:512')
    k.e(f'ds_read_b128 {vr(V0,4)}, v{vv}')
    k.e(f's_mov_b32 s{sit}, 0')
    k.e('s_nop 7')
    k.stamp('loop')
    k.label('loop')
    for i in range(8):
        s = S[i & 1]; sn = S[(i + 1) & 1]
        E = lambda r_: k.e(f'v_exp_f32 v{s+r_}, v{s+r_}')
        C = lambda q: k.e(f'v_cvt_pk_bf16_f32 v{P+q}, v{s+2*q}, v{s+2*q+1}')
        k.c(f'tile {i}')
        if i == 5:
            k.e(f's_cmp_lg_u32 s{sit}, 0')
            k.e(f's_cbranch_scc1 {k.lab("nosync")}')
            k.stamp('presync')
            k.e('s_waitcnt vmcnt(0)')
            k.e('s_barrier')
            k.stamp('postsync')
            if prefetch:
                k.e(f'v_lshlrev_b32 v{tmp}, 6, v0')
                k.e(f's_lshl_b32 s{st0}, s{sidx}, 14')
                srd(k, SP, sW, sW+1, 512*1024)
                k.e(f'v_cmp_gt_u32 vcc, 256, v0')
                k.e(f's_and_saveexec_b64 {sr(smask,2)}, vcc')
                k.e(f's_cbranch_execz {k.lab("pf1")}')
                k.e(f'buffer_load_dword v{dummy}, v{tmp}, {sr(SP,4)}, s{st0} offen')
                k.label('pf1')
                k.e(f's_mov_b64 exec, {sr(smask,2)}')
                srd(k, SP, sW1, sW1+1, 512*3584)
                k.e(f's_mul_i32 s{st0}, s{sidx}, 57344')
                k.e(f'buffer_load_dword v{dummy}, v{tmp}, {sr(SP,4)}, s{st0} offen')
                k.e(f's_add_u32 s{st0}, s{st0}, 24576')
                k.e(f'buffer_load_dword v{dummy}, v{tmp}, {sr(SP,4)}, s{st0} offen')
            k.label('nosync')
        k.e('s_waitcnt lgkmcnt(2)')
        k.e(f'v_mfma_f32_32x32x16_bf16 {vr(sn,16)}, {vr(KFr,4)}, {vr(Q,4)}, {vr(NM,16)}')
        k.e(f'ds_read_b128 {vr(KFr,4)}, v{vk} offset:{(i+2)*1024}')
        for r_ in range(0, 4): E(r_)
        k.e('s_waitcnt lgkmcnt(2)')
        k.e(f'v_mfma_f32_32x32x16_bf16 {vr(O,16)}, {vr(V1,4)}, {vr(P+4,4)}, {vr(O,16)}')
        k.e(f'ds_read_b128 {vr(V1,4)}, v{vv} offset:{i*1024+512}')
        for r_ in range(4, 8): E(r_)
        for q in range(0, 4): C(q)
        for r_ in range(8, 11): E(r_)
        k.e('s_waitcnt lgkmcnt(2)')
        k.e(f'v_mfma_f32_32x32x16_bf16 {vr(O,16)}, {vr(V0,4)}, {vr(P,4)}, {vr(O,16)}')
        if i == 7:
            k.e(f'v_add_u32 v{vv}, v{vv}, v{vinc}')
            k.e(f'v_add_u32 v{vk}, 8192, v{vk}')
            k.e(f'ds_read_b128 {vr(V0,4)}, v{vv}')
        else:
            k.e(f'ds_read_b128 {vr(V0,4)}, v{vv} offset:{(i+1)*1024}')
        for r_ in range(11, 16): E(r_)
        if i == 7:
            k.e(f's_add_u32 s{sit}, s{sit}, 1')
            k.e(f's_cmp_lt_u32 s{sit}, 8')
        for q in range(4, 8): C(q)
    k.e(f's_cbranch_scc1 {k.lab("loop")}')
    k.stamp('loopend')
    k.e('s_waitcnt lgkmcnt(1)')
    k.e('s_nop 0')
    k.e(f'v_mfma_f32_32x32x16_bf16 {vr(O,16)}, {vr(V1,4)}, {vr(P+4,4)}, {vr(O,16)}')
    k.e('s_nop 15')
    k.e(f's_mov_b32 s{st0}, {f32(2.0**40)}')
    k.e(f'v_cmp_nlt_f32 vcc, v{O+8}, s{st0}')
    k.e('s_waitcnt lgkmcnt(0)')
    k.e(f's_cbranch_vccnz {k.lab("slow")}')
    k.label('fin')
    k.e(f'v_rcp_f32 v{tmp}, v{O+8}')
    k.e(f's_lshl_b32 s{st0}, s{stb}, 15')
    k.e(f's_lshl_b32 s{st1}, s{shead}, 10')
    k.e(f's_add_u32 s{st0}, s{st0}, s{st1}')
    for r_ in range(8):
        k.e(f'v_mul_f32 v{O+r_}, v{O+r_}, v{tmp}')
    for q in range(4):
        k.e(f'v_cvt_pk_bf16_f32 v{P+q}, v{O+2*q}, v{O+2*q+1}')
    k.e(f'buffer_store_dwordx4 {vr(P,4)}, v{vl16}, {sr(SO,4)}, s{st0} offen')
    k.label('end')
    k.e('s_endpgm')
    k.label('slow')
    k.e(f'v_mov_b32 v{vk}, v{vl16}')
    k.e(f'v_mov_b32 v{tmp}, 0xff800000')
    k.e(f's_mov_b32 s{sit}, 0')
    k.label('slow1')
    k.e(f'ds_read_b128 {vr(KFr,4)}, v{vk}')
    k.e(f'v_add_u32 v{vk}, 1024, v{vk}')
    k.e('s_waitcnt lgkmcnt(0)')
    k.e(f'v_mfma_f32_32x32x16_bf16 {vr(S[0],16)}, {vr(KFr,4)}, {vr(Q,4)}, 0')
    k.e('s_nop 15')
    rowmax16(S[0], tmp+2)
    k.e(f'v_max_f32 v{tmp}, v{tmp}, v{tmp+2}')
    k.e(f's_add_u32 s{sit}, s{sit}, 1')
    k.e(f's_cmp_lt_u32 s{sit}, 64')
    k.e(f's_cbranch_scc1 {k.lab("slow1")}')
    set_negm(tmp)
    for r_ in range(16):
        k.e(f'v_mov_b32 v{O+r_}, 0')
    k.e(f'v_mov_b32 v{vk}, v{vl16}')
    k.e(f'v_lshlrev_b32 v{tmp}, 3, v{vinc}')
    k.e(f'v_sub_u32 v{vv}, v{vv}, v{tmp}')
    k.e(f'v_lshrrev_b32 v{vinc}, 3, v{vinc}')
    k.e(f's_mov_b32 s{sit}, 0')
    k.label('slow2')
    k.e(f'ds_read_b128 {vr(KFr,4)}, v{vk}')
    k.e(f'ds_read_b128 {vr(V0,4)}, v{vv}')
    k.e(f'ds_read_b128 {vr(V1,4)}, v{vv} offset:512')
    k.e(f'v_add_u32 v{vk}, 1024, v{vk}')
    k.e(f'v_add_u32 v{vv}, v{vv}, v{vinc}')
    k.e('s_waitcnt lgkmcnt(0)')
    k.e(f'v_mfma_f32_32x32x16_bf16 {vr(S[0],16)}, {vr(KFr,4)}, {vr(Q,4)}, {vr(NM,16)}')
    k.e('s_nop 15')
    for r_ in range(16):
        k.e(f'v_exp_f32 v{S[0]+r_}, v{S[0]+r_}')
    k.e('s_nop 0')
    for q in range(8):
        k.e(f'v_cvt_pk_bf16_f32 v{P+q}, v{S[0]+2*q}, v{S[0]+2*q+1}')
    k.e('s_nop 1')
    k.e(f'v_mfma_f32_32x32x16_bf16 {vr(O,16)}, {vr(V0,4)}, {vr(P,4)}, {vr(O,16)}')
    k.e(f'v_mfma_f32_32x32x16_bf16 {vr(O,16)}, {vr(V1,4)}, {vr(P+4,4)}, {vr(O,16)}')
    k.e(f's_add_u32 s{sit}, s{sit}, 1')
    k.e(f's_cmp_lt_u32 s{sit}, 64')
    k.e(f's_cbranch_scc1 {k.lab("slow2")}')
    k.e('s_nop 15')
    k.e(f's_branch {k.lab("fin")}')
    return k, (256, 512, LDS)
```

```python
from fw import *
from k1 import *

def gen_k35(name, mode):
    k = Kern(name)
    NKS = 32 if mode == 3 else 112
    NCH = NKS // 8
    SLOT = 32768
    NSLOT = 4 if mode == 3 else 5
    NFB = NKS
    XBASE = OF if mode == 3 else FF
    sWS = k.s(2); sWp = k.s(2); sR = k.s(2)
    SX, SW, SR, SO = k.s(4), k.s(4), k.s(4), k.s(4)
    sw, srb, scb, st0, st1, st2, sxo, swo, smx, smw, stq, scq = [k.s() for _ in range(12)]
    k.e('s_cmp_ge_u32 s2, 256')
    k.e(f's_cbranch_scc1 {k.lab("end")}')
    k.e(f's_load_dwordx2 {sr(sWS,2)}, s[0:1], 64')
    k.e(f's_load_dwordx2 {sr(sWp,2)}, s[0:1], {16 if mode == 3 else 40}')
    k.e(f's_load_dwordx2 {sr(sR,2)}, s[0:1], {0 if mode == 3 else 48}')
    R = lane_regs(k)
    l, t, h = R['l'], R['t'], R['h']
    tmp = k.v(4)
    k.e(f'v_lshrrev_b32 v{tmp}, 6, v0')
    k.e(f's_and_b32 s{st0}, s2, 7')
    k.e(f'v_readfirstlane_b32 s{sw}, v{tmp}')
    k.e(f's_lshr_b32 s{st1}, s2, 3')
    k.e(f's_lshl_b32 s{srb}, s{st0}, 2')
    k.e(f's_lshr_b32 s{st2}, s{st1}, 3')
    k.e(f's_add_u32 s{srb}, s{srb}, s{st2}')
    k.e(f's_and_b32 s{scb}, s{st1}, 7')
    k.e(f's_lshr_b32 s{stq}, s{sw}, 1')
    k.e(f's_and_b32 s{scq}, s{sw}, 1')
    vl16, vow = k.v(), k.v()
    k.e(f'v_lshlrev_b32 v{vl16}, 4, v{l}')
    k.e(f'v_bfe_u32 v{tmp}, v{l}, 4, 1')
    k.e(f'v_lshlrev_b32 v{tmp}, 2, v{tmp}')
    k.e(f'v_and_b32 v{tmp+1}, 7, v{l}')
    k.e(f'v_xor_b32 v{tmp}, v{tmp}, v{tmp+1}')
    k.e(f'v_lshlrev_b32 v{tmp}, 4, v{tmp}')
    k.e(f'v_lshrrev_b32 v{tmp+1}, 3, v{l}')
    k.e(f'v_lshl_add_u32 v{vow}, v{tmp+1}, 10, v{tmp}')
    k.e(f's_mul_i32 s{sxo}, s{stq}, {NFB*1024}')
    k.e(f's_lshl_b32 s{st0}, s{scq}, 12')
    k.e(f's_add_u32 s{sxo}, s{sxo}, s{st0}')
    k.e(f's_lshl_b32 s{smx}, s{sw}, 12')
    k.e(f's_lshl_b32 s{swo}, s{sw}, 15')
    k.e(f's_lshl_b32 s{st0}, s{scb}, 7')
    k.e(f's_add_u32 s{swo}, s{swo}, s{st0}')
    k.e(f's_add_u32 s{smw}, s{smx}, 16384')
    k.e(f's_mul_i32 s{st0}, s{srb}, {2*NFB*1024}')
    k.e(f's_add_u32 s{st0}, s{st0}, {XBASE}')
    k.e('s_waitcnt lgkmcnt(0)')
    k.stamp('karg')
    srd(k, SX, sWS, sWS+1, 2*NFB*1024, f's{st0}')
    srd(k, SW, sWp, sWp+1, NKS*16*1024)
    def dma_chunk(c):
        sb = (c % NSLOT) * SLOT
        k.c(f'DMA chunk {c}')
        for i in range(4):
            k.e(f's_add_u32 m0, s{smx}, {sb + i*1024}')
            k.e(f's_add_u32 s{st2}, s{sxo}, {c*8192 + i*1024}')
            k.e(f'buffer_load_dwordx4 v{vl16}, {sr(SX,4)}, s{st2} offen lds')
            k.e(f's_add_u32 m0, s{smw}, {sb + i*1024}')
            k.e(f's_add_u32 s{st2}, s{swo}, {c*131072 + i*8192}')
            k.e(f'buffer_load_dwordx4 v{vow}, {sr(SW,4)}, s{st2} offen lds')
    NUP = min(NCH, NSLOT)
    dma_chunk(0)
    RES = k.v(8, 4)
    vr_ = k.v()
    if mode == 3:
        k.e(f's_lshl_b32 s{st0}, s{srb}, 16')
        srd(k, SR, sR, sR+1, 65536, f's{st0}')
        k.e(f'v_lshlrev_b32 v{vr_}, 10, v{t}')
        k.e(f'v_lshl_add_u32 v{vr_}, v{h}, 3, v{vr_}')
        k.e(f's_lshl_b32 s{st0}, s{stq}, 15')
        k.e(f's_lshl_b32 s{st1}, s{scb}, 7')
        k.e(f's_add_u32 s{st0}, s{st0}, s{st1}')
        k.e(f's_lshl_b32 s{st1}, s{scq}, 6')
        k.e(f's_add_u32 s{st0}, s{st0}, s{st1}')
        for g in range(4):
            k.e(f'buffer_load_dwordx2 {vr(RES+2*g,2)}, v{vr_}, {sr(SR,4)}, s{st0} offen offset:{g*16}')
        NRES = 4
        srd(k, SO, sWS, sWS+1, 2*MB, HF)
    else:
        srd(k, SR, sWS, sWS+1, 2*MB, HF)
        k.e(f's_lshl_b32 s{st0}, s{srb}, 1')
        k.e(f's_add_u32 s{st0}, s{st0}, s{stq}')
        k.e(f's_lshl_b32 s{st0}, s{st0}, 15')
        k.e(f's_lshl_b32 s{st1}, s{scb}, 12')
        k.e(f's_add_u32 s{st0}, s{st0}, s{st1}')
        k.e(f's_lshl_b32 s{st1}, s{scq}, 11')
        k.e(f's_add_u32 s{st0}, s{st0}, s{st1}')
        k.e(f'buffer_load_dwordx4 {vr(RES,4)}, v{vl16}, {sr(SR,4)}, s{st0} offen')
        k.e(f'buffer_load_dwordx4 {vr(RES+4,4)}, v{vl16}, {sr(SR,4)}, s{st0} offen offset:1024')
        NRES = 2
        k.e(f's_lshl_b32 s{st0}, s{srb}, 16')
        srd(k, SO, sR, sR+1, 65536, f's{st0}')
    for c in range(1, NUP):
        dma_chunk(c)
    k.stamp('issued')
    NB = (NSLOT + 1) // 2
    axb = [k.v() for _ in range(NB)]
    awb = [k.v() for _ in range(NB)]
    k.e(f's_lshl_b32 s{st0}, s{stq}, 13')
    k.e(f'v_add_u32 v{axb[0]}, s{st0}, v{vl16}')
    k.e(f'v_bfe_u32 v{tmp}, v{l}, 2, 2')
    k.e(f'v_lshl_add_u32 v{tmp+1}, v{h}, 2, v{tmp}')
    k.e(f'v_lshlrev_b32 v{tmp+1}, 7, v{tmp+1}')
    k.e(f'v_lshrrev_b32 v{tmp}, 1, v{tmp}')
    k.e(f'v_xor_b32 v{tmp}, s{scq}, v{tmp}')
    k.e(f'v_lshl_add_u32 v{tmp+1}, v{tmp}, 6, v{tmp+1}')
    k.e(f'v_bfe_u32 v{tmp}, v{l}, 4, 1')
    k.e(f'v_lshl_add_u32 v{tmp+1}, v{tmp}, 5, v{tmp+1}')
    k.e(f'v_and_b32 v{tmp}, 3, v{l}')
    k.e(f'v_lshl_add_u32 v{tmp+1}, v{tmp}, 3, v{tmp+1}')
    k.e(f'v_add_u32 v{awb[0]}, 16384, v{tmp+1}')
    for s in range(1, NB):
        k.e(f'v_add_u32 v{axb[s]}, {2*SLOT*s}, v{axb[0]}')
        k.e(f'v_add_u32 v{awb[s]}, {2*SLOT*s}, v{awb[0]}')
    DEPTH = 4
    XF = [k.v(4) for _ in range(DEPTH)]
    WF = [k.v(4) for _ in range(DEPTH)]
    ACC = k.v(16)
    def reads(n):
        c, i = n // 8, n % 8
        slot = c % NSLOT
        s, rel = slot // 2, (slot % 2) * SLOT
        p = n % DEPTH
        k.e(f'ds_read_b128 {vr(XF[p],4)}, v{axb[s]} offset:{rel + i*1024}')
        for w2 in range(2):
            k.e(f'ds_read_b64_tr_b16 {vr(WF[p]+2*w2,2)}, v{awb[s]} offset:{rel + i*2048 + w2*1024}')
    issued = [NUP]
    def sync(c):
        later = 8 * (issued[0] - 1 - c)
        if c == 0:
            later += NRES
        k.e(f's_waitcnt vmcnt({later}) lgkmcnt(0)')
        k.e('s_barrier')
        if c >= 1 and issued[0] < NCH:
            dma_chunk(issued[0]); issued[0] += 1
    LA = 2
    for c in range(NCH):
        sync(c)
        if c in (0, 1, 2, 3, 7, 11): k.stamp(f'c{c}')
        for i in range(LA):
            reads(8*c + i)
        for i in range(8):
            n = 8*c + i
            if i + LA < 8:
                reads(n + LA)
                k.e(f's_waitcnt lgkmcnt({3*LA})')
            else:
                k.e(f's_waitcnt lgkmcnt({3*(7-i)})')
            Cop = '0' if n == 0 else vr(ACC, 16)
            p = n % DEPTH
            k.e(f'v_mfma_f32_32x32x16_bf16 {vr(ACC,16)}, {vr(WF[p],4)}, {vr(XF[p],4)}, {Cop}')
    k.stamp('loopend')
    U = k.v(16)
    for d in range(8):
        k.e(f'v_lshlrev_b32 v{U+2*d}, 16, v{RES+d}')
        k.e(f'v_and_b32 v{U+2*d+1}, 0xffff0000, v{RES+d}')
    OUT = k.v(8, 4)
    if mode == 3:
        k.e(f's_lshl_b32 s{st0}, s{srb}, 1')
        k.e(f's_add_u32 s{st0}, s{st0}, s{stq}')
        k.e(f's_lshl_b32 s{st0}, s{st0}, 15')
        k.e(f's_lshl_b32 s{st1}, s{scb}, 12')
        k.e(f's_add_u32 s{st0}, s{st0}, s{st1}')
        k.e(f's_lshl_b32 s{st1}, s{scq}, 11')
        k.e(f's_add_u32 s{st0}, s{st0}, s{st1}')
    else:
        k.e(f'v_lshlrev_b32 v{vr_}, 10, v{t}')
        k.e(f'v_lshl_add_u32 v{vr_}, v{h}, 4, v{vr_}')
        k.e(f's_lshl_b32 s{st0}, s{stq}, 15')
        k.e(f's_lshl_b32 s{st1}, s{scb}, 7')
        k.e(f's_add_u32 s{st0}, s{st0}, s{st1}')
        k.e(f's_lshl_b32 s{st1}, s{scq}, 6')
        k.e(f's_add_u32 s{st0}, s{st0}, s{st1}')
    for r_ in range(16):
        k.e(f'v_add_f32 v{U+r_}, v{U+r_}, v{ACC+r_}')
    for q in range(8):
        k.e(f'v_cvt_pk_bf16_f32 v{OUT+q}, v{U+2*q}, v{U+2*q+1}')
    if mode == 3:
        k.e(f'buffer_store_dwordx4 {vr(OUT,4)}, v{vl16}, {sr(SO,4)}, s{st0} offen')
        k.e(f'buffer_store_dwordx4 {vr(OUT+4,4)}, v{vl16}, {sr(SO,4)}, s{st0} offen offset:1024')
    else:
        k.e('s_nop 1')
        for pz in range(2):
            k.e(f'v_permlane32_swap_b32 v{OUT+4*pz}, v{OUT+4*pz+2}')
            k.e(f'v_permlane32_swap_b32 v{OUT+4*pz+1}, v{OUT+4*pz+3}')
        k.e(f'buffer_store_dwordx4 {vr(OUT,4)}, v{vr_}, {sr(SO,4)}, s{st0} offen')
        k.e(f'buffer_store_dwordx4 {vr(OUT+4,4)}, v{vr_}, {sr(SO,4)}, s{st0} offen offset:32')
    k.stamp('stored')
    k.label('end')
    k.e('s_endpgm')
    return k, (256, 256, NSLOT*SLOT)
```

```python
from fw import *
from k1 import *

def gen_k4(name='ffn1_kernel', prefetch=True):
    k = Kern(name)
    EX = 131072
    LDS = EX + 1024
    sWS = k.s(2); sWp = k.s(4)
    SH, SW, SO, SP = k.s(4), k.s(4), k.s(4), k.s(4)
    sw, srb, scb, st0, st1, st2, swo, smw, sones, stb, sidx = [k.s() for _ in range(11)]
    k.e('s_cmp_ge_u32 s2, 224')
    k.e(f's_cbranch_scc1 {k.lab("end")}')
    k.e(f's_load_dwordx2 {sr(sWS,2)}, s[0:1], 64')
    k.e(f's_load_dwordx4 {sr(sWp,4)}, s[0:1], 32')
    R = lane_regs(k)
    l, t, h = R['l'], R['t'], R['h']
    tmp = k.v(4)
    k.e(f'v_lshrrev_b32 v{tmp}, 6, v0')
    k.e(f's_and_b32 s{st0}, s2, 7')
    k.e(f'v_readfirstlane_b32 s{sw}, v{tmp}')
    k.e(f's_lshr_b32 s{sidx}, s2, 3')
    k.e(f's_cmp_ge_u32 s{sidx}, 14')
    k.e(f's_cselect_b32 s{st1}, 1, 0')
    k.e(f's_lshl_b32 s{srb}, s{st0}, 1')
    k.e(f's_add_u32 s{srb}, s{srb}, s{st1}')
    k.e(f's_mul_i32 s{st1}, s{st1}, 14')
    k.e(f's_sub_u32 s{scb}, s{sidx}, s{st1}')
    k.e(f's_lshl_b32 s{stb}, s{srb}, 2')
    k.e(f's_add_u32 s{stb}, s{stb}, s{sw}')
    k.e(f's_mov_b32 s{sones}, 0x3f803f80')
    vl16, vow = k.v(), k.v()
    k.e(f'v_lshlrev_b32 v{vl16}, 4, v{l}')
    k.e(f'v_lshrrev_b32 v{tmp}, 4, v{l}')
    k.e(f'v_lshlrev_b32 v{tmp+1}, 2, v{tmp}')
    k.e(f'v_and_b32 v{tmp+2}, 15, v{l}')
    k.e(f'v_xor_b32 v{tmp+1}, v{tmp+1}, v{tmp+2}')
    k.e(f'v_lshlrev_b32 v{tmp+1}, 4, v{tmp+1}')
    k.e(f'v_mul_u32_u24 v{tmp}, 3584, v{tmp}')
    k.e(f'v_add_u32 v{vow}, v{tmp}, v{tmp+1}')
    k.e(f's_mul_i32 s{swo}, s{sw}, {16*3584}')
    k.e(f's_lshl_b32 s{st0}, s{scb}, 8')
    k.e(f's_add_u32 s{swo}, s{swo}, s{st0}')
    k.e(f's_lshl_b32 s{smw}, s{sw}, 12')
    k.e(f's_lshl_b32 s{st0}, s{stb}, 15')
    k.e(f's_add_u32 s{st0}, s{st0}, {HF}')
    k.e('s_waitcnt lgkmcnt(0)')
    k.stamp('karg')
    srd(k, SH, sWS, sWS+1, 32768, f's{st0}')
    srd(k, SW, sWp, sWp+1, 512*3584)
    H = k.v(128, 4)
    def issue(c):
        k.c(f'loads chunk {c}')
        for i in range(4):
            k.e(f's_add_u32 m0, s{smw}, {c*16384 + i*1024}')
            k.e(f's_add_u32 s{st2}, s{swo}, {(64*c + 4*i)*3584}')
            k.e(f'buffer_load_dwordx4 v{vow}, {sr(SW,4)}, s{st2} offen lds')
        k.e(f's_mov_b32 s{st2}, {c*4096}')
        for i in range(4):
            k.e(f'buffer_load_dwordx4 {vr(H+16*c+4*i,4)}, v{vl16}, {sr(SH,4)}, s{st2} offen offset:{i*1024}')
    NUP = 7
    for c in range(NUP):
        issue(c)
    k.stamp('issued')
    k.e(f's_mul_i32 s{st0}, s{stb}, {112*1024}')
    k.e(f's_add_u32 s{st0}, s{st0}, {FF}')
    srd(k, SO, sWS, sWS+1, 112*1024, f's{st0}')
    aw = [[k.v() for i in range(4)] for s in range(2)]
    k.e(f'v_bfe_u32 v{tmp}, v{l}, 2, 2')
    k.e(f'v_lshl_add_u32 v{tmp+1}, v{h}, 2, v{tmp}')
    k.e(f'v_lshlrev_b32 v{tmp+1}, 8, v{tmp+1}')
    k.e(f'v_bfe_u32 v{tmp+2}, v{l}, 4, 1')
    k.e(f'v_lshl_add_u32 v{tmp+1}, v{tmp+2}, 5, v{tmp+1}')
    k.e(f'v_and_b32 v{tmp+2}, 3, v{l}')
    k.e(f'v_lshl_add_u32 v{tmp+1}, v{tmp+2}, 3, v{tmp+1}')
    for i in range(4):
        k.e(f's_xor_b32 s{st0}, s{sw}, {i}')
        k.e(f'v_xor_b32 v{tmp+2}, s{st0}, v{tmp}')
        k.e(f'v_lshl_add_u32 v{aw[0][i]}, v{tmp+2}, 6, v{tmp+1}')
        k.e(f'v_add_u32 v{aw[1][i]}, 65536, v{aw[0][i]}')
    WF = [[k.v(4) for i in range(4)] for p in range(2)]
    ACC = [k.v(16) for i in range(4)]
    sx = [k.v(), k.v()]; sxx = [k.v(), k.v()]; cs = [k.v(), k.v()]
    for r_ in sx + sxx + cs:
        k.e(f'v_mov_b32 v{r_}, 0')
    def reads(n):
        p = n & 1
        for i in range(4):
            for w2 in range(2):
                k.e(f'ds_read_b64_tr_b16 {vr(WF[p][i]+2*w2,2)}, v{aw[n//16][i]} offset:{(n%16)*4096 + w2*2048}')
    issued = [NUP]
    extra = [0]
    def sync(c):
        k.e(f's_waitcnt vmcnt({8*(issued[0]-1-c) + extra[0]})')
        k.e('s_barrier')
        if c >= 1 and issued[0] < 8:
            issue(issued[0]); issued[0] += 1
    sync(0)
    k.stamp('first')
    reads(0)
    for n in range(32):
        p = n & 1
        k.c(f'kstep {n}')
        if n in (8, 16, 24): k.stamp(f'k{n}')
        if n + 1 < 32:
            if (n + 1) % 4 == 0:
                sync((n + 1) // 4)
            reads(n + 1)
            k.e('s_waitcnt lgkmcnt(8)')
        else:
            k.e('s_waitcnt lgkmcnt(0)')
        X = H + 4*n
        for i in range(4):
            Cop = '0' if n == 0 else vr(ACC[i], 16)
            k.e(f'v_mfma_f32_32x32x16_bf16 {vr(ACC[i],16)}, {vr(WF[p][i],4)}, {vr(X,4)}, {Cop}')
            if i == 0:
                for d in range(4):
                    k.e(f'v_dot2c_f32_bf16 v{sx[d&1]}, s{sones}, v{X+d}')
            elif i == 1:
                for d in range(4):
                    k.e(f'v_dot2c_f32_bf16 v{sxx[d&1]}, v{X+d}, v{X+d}')
            elif i == 2:
                for d in range(4):
                    k.e(f'v_dot2c_f32_bf16 v{cs[d&1]}, s{sones}, v{WF[p][0]+d}')
        if n == 8 and prefetch:
            srd(k, SP, sWp+2, sWp+3, 1792*1024)
            k.e(f'v_lshlrev_b32 v{tmp}, 6, v0')
            k.e(f's_lshl_b32 s{st0}, s{sidx}, 16')
            for q in range(4):
                k.e(f'buffer_load_dword v{tmp+3}, v{tmp}, {sr(SP,4)}, s{st0} offen')
                k.e(f's_add_u32 s{st0}, s{st0}, 16384')
            extra[0] = 4
    k.stamp('loopend')
    k.c('epilogue')
    a0, a2 = k.v(), k.v()
    mean, rstd = k.v(), k.v()
    k.e(f'v_add_f32 v{sx[0]}, v{sx[0]}, v{sx[1]}')
    k.e(f'v_add_f32 v{sxx[0]}, v{sxx[0]}, v{sxx[1]}')
    k.e(f'v_add_f32 v{cs[0]}, v{cs[0]}, v{cs[1]}')
    k.e(f'v_mov_b32 v{cs[1]}, v{cs[0]}')
    k.e(f's_lshl_b32 s{st0}, s{sw}, 7')
    k.e(f's_add_u32 s{st0}, s{st0}, {EX}')
    k.e(f'v_permlane32_swap_b32 v{cs[0]}, v{cs[1]}')
    k.e(f'v_lshlrev_b32 v{a0}, 2, v{t}')
    k.e(f'v_add_u32 v{a0}, s{st0}, v{a0}')
    k.e(f'v_add_f32 v{cs[0]}, v{cs[0]}, v{cs[1]}')
    k.e(f'ds_write_b32 v{a0}, v{cs[0]}')
    ln_stats(k, sx[0], sxx[0], H, mean, rstd)
    k.e(f'v_lshlrev_b32 v{a2}, 4, v{h}')
    k.e(f'v_add_u32 v{a2}, {EX}, v{a2}')
    k.e('s_waitcnt lgkmcnt(0)')
    k.e('s_barrier')
    CS = H + 8
    for i in range(4):
        k.e(f's_xor_b32 s{st0}, s{sw}, {i}')
        k.e(f's_lshl_b32 s{st0}, s{st0}, 7')
        k.e(f'v_add_u32 v{a0}, s{st0}, v{a2}')
        for g in range(4):
            k.e(f'ds_read_b128 {vr(CS+16*i+4*g,4)}, v{a0} offset:{g*32}')
    OUT = H + 72
    for i in range(4):
        k.e(f's_waitcnt lgkmcnt({4*(3-i)})')
        for r_ in range(16):
            k.e(f'v_fma_f32 v{ACC[i]+r_}, -v{mean}, v{CS+16*i+r_}, v{ACC[i]+r_}')
        for r_ in range(16):
            k.e(f'v_mul_f32 v{ACC[i]+r_}, v{ACC[i]+r_}, v{rstd}')
        for q in range(8):
            k.e(f'v_cvt_pk_bf16_f32 v{OUT+8*i+q}, v{ACC[i]+2*q}, v{ACC[i]+2*q+1}')
        for q in range(8):
            k.e(f'v_pk_max_i16 v{OUT+8*i+q}, v{OUT+8*i+q}, 0')
        k.e(f's_xor_b32 s{st0}, s{sw}, {i}')
        k.e(f's_lshl_b32 s{st0}, s{st0}, 11')
        k.e(f's_lshl_b32 s{st1}, s{scb}, 13')
        k.e(f's_add_u32 s{st0}, s{st0}, s{st1}')
        k.e(f'buffer_store_dwordx4 {vr(OUT+8*i,4)}, v{vl16}, {sr(SO,4)}, s{st0} offen')
        k.e(f'buffer_store_dwordx4 {vr(OUT+8*i+4,4)}, v{vl16}, {sr(SO,4)}, s{st0} offen offset:1024')
    k.stamp('stored')
    k.label('end')
    k.e('s_endpgm')
    return k, (224, 256, LDS)
```

```python
import gen
from gen import *
def triv(name='nop_kernel'):
    k = Kern(name)
    k.label('end')
    k.e('s_endpgm')
    return k, (256, 256, 0)
base = lambda: [gen_k1(), gen_k2(), gen_k35('oproj_kernel', 3), gen_k4(), gen_k35('ffn2_kernel', 5)]
t = triv()
build('var_plus4.s', base() + [t]*4)
build('var_pre4.s', [t]*4 + base())
build('var_base.s', base())
```

```python
class Kern:
    def __init__(self, name):
        self.name = name
        self.L = []
        self.vn = 1
        self.vmax = 1
        self.sn = 4
        self.smax = 4
        self.nlab = 0
        self.an = 0
    def e(self, s):
        for line in s.split('\n'):
            line = line.strip()
            if line:
                self.L.append('    ' + line)
    def c(self, s):
        self.L.append('    ; ' + s)
    def label(self, l):
        self.L.append(f'{self.name}_{l}:')
    def lab(self, l):
        return f'{self.name}_{l}'
    def v(self, n=1, align=None):
        if align is None:
            align = 2 if n >= 2 else 1
        b = (self.vn + align - 1) // align * align
        self.vn = b + n
        self.vmax = max(self.vmax, self.vn)
        return b
    def a(self, n):
        b = (self.an + 3) // 4 * 4
        self.an = b + n
        assert self.an <= 256
        return b
    def s(self, n=1, align=None):
        if align is None:
            align = 4 if n >= 4 else (2 if n >= 2 else 1)
        b = (self.sn + align - 1) // align * align
        self.sn = b + n
        self.smax = max(self.smax, self.sn)
        assert self.sn <= 100
        return b
    def stamp(self, tag=''):
        self.L.append(f'    ;@STAMP {tag}')
    def instrument(self, idx):
        NS = 18
        L = self.L
        pre = ['    s_memrealtime s[88:89]', '    s_memtime s[90:91]', '    s_mov_b32 s87, s2'] + [f'    s_mov_b32 s{50+2*q}, 0' for q in range(NS)]
        out = []
        n = 0
        self.tags = []
        for x in L:
            if x.strip().startswith(';@STAMP'):
                import os
                tag = x.strip()[8:]
                drop = os.environ.get('DROP', '').split(',')
                if tag.startswith('+') != bool(os.environ.get('FINE')) and (tag.startswith('+') or tag in ('karg', 'loop', 'j15', 'L:b3end', 'poll3', 'p3:c0', 'flag3', 'L:pollA', 'L:w2')):
                    continue
                assert n < NS
                out.append(f'    s_memtime s[{50+2*n}:{51+2*n}]')
                self.tags.append(x.strip()[8:])
                n += 1
            else:
                out.append(x)
        L = out
        first_end = [i for i, x in enumerate(L) if x.strip() == f'{self.name}_end:'][0]
        post = ['    s_waitcnt vmcnt(0) lgkmcnt(0)', '    s_memrealtime s[92:93]', '    s_memtime s[94:95]', '    s_load_dwordx2 s[100:101], s[0:1], 64', '    s_waitcnt lgkmcnt(0)',
                '    s_sub_u32 s94, s94, s90',
                f'    s_add_u32 s96, s100, {(32<<20) + idx*262144}', '    s_addc_u32 s97, s101, 0', '    s_mov_b32 s98, 262144', '    s_mov_b32 s99, 0x20000',
                '    v_mov_b32 v4, s88', '    v_mov_b32 v5, s92', '    v_mov_b32 v6, s94', f'    v_mov_b32 v7, {getattr(self, "dbgreg", "0")}']
        for q in range(20):
            if q < n:
                post.append(f'    s_sub_u32 s{50+2*q}, s{50+2*q}, s90')
                post.append(f'    v_mov_b32 v{8+q}, s{50+2*q}')
            else:
                post.append(f'    v_mov_b32 v{8+q}, 0')
        post += ['    v_lshrrev_b32 v1, 6, v0', '    v_lshlrev_b32 v1, 7, v1', '    s_lshl_b32 s100, s87, 10', '    v_add_u32 v1, s100, v1',
                '    s_mov_b64 exec, 1']
        for q in range(6):
            post.append(f'    buffer_store_dwordx4 v[{4+4*q}:{7+4*q}], v1, s[96:99], 0 offen offset:{16*q}')
        self.L = pre + L[:first_end] + post + L[first_end:]
        assert self.smax <= 50, self.smax
        self.vmax = max(self.vmax, 28)
        self.smax = 102
    def text(self):
        return (f'.globl {self.name}\n.p2align 8\n.type {self.name},@function\n{self.name}:\n'
                + '\n'.join(self.L) + '\n')
    def desc(self):
        nv = self.vmax
        assert nv <= 256, nv
        acc = (nv + 3) // 4 * 4
        return f'''.p2align 6
.amdhsa_kernel {self.name}
  .amdhsa_next_free_vgpr {acc + self.an if self.an else nv}
  .amdhsa_next_free_sgpr {max(self.smax, 8)}
  .amdhsa_accum_offset {acc}
  .amdhsa_group_segment_fixed_size 0
  .amdhsa_kernarg_size 72
  .amdhsa_user_sgpr_count 2
  .amdhsa_user_sgpr_kernarg_segment_ptr 1
  .amdhsa_system_sgpr_workgroup_id_x 1
.end_amdhsa_kernel
'''
def vr(b, n):
    return f'v[{b}:{b+n-1}]' if n > 1 else f'v{b}'
def ar(b, n):
    return f'a[{b}:{b+n-1}]' if n > 1 else f'a{b}'
def sr(b, n):
    return f's[{b}:{b+n-1}]' if n > 1 else f's{b}'

def srd(k, d, lo, hi, nbytes, off=None):
    if off is None:
        k.e(f's_mov_b32 s{d}, s{lo}')
        k.e(f's_mov_b32 s{d+1}, s{hi}')
    else:
        k.e(f's_add_u32 s{d}, s{lo}, {off}')
        k.e(f's_addc_u32 s{d+1}, s{hi}, 0')
    k.e(f's_mov_b32 s{d+2}, {nbytes}')
    k.e(f's_mov_b32 s{d+3}, 0x20000')
```

```python
from fw import *
MB = 1 << 20
QF, KF, VF, OF, HF, FF = 0, 2*MB, 4*MB, 6*MB, 8*MB, 10*MB
ST = 17*MB
FL = 17*MB + 512*1024
FLB = 65536
WS_USED = 18*MB
QSCALE = 0.25 * 1.4426950408889634

import struct
def f32(x):
    return '0x%08x' % struct.unpack('<I', struct.pack('<f', x))[0]

def lane_regs(k):
    R = {}
    for n in ('l', 't', 'h'):
        R[n] = k.v()
    k.e(f'v_and_b32 v{R["l"]}, 63, v0')
    k.e(f'v_and_b32 v{R["t"]}, 31, v0')
    k.e(f'v_bfe_u32 v{R["h"]}, v0, 5, 1')
    return R

def round_bf16(k, v):
    k.e(f'v_cvt_pk_bf16_f32 v{v}, v{v}, v{v}')
    k.e(f'v_and_b32 v{v}, 0xffff0000, v{v}')

def half_sum(k, regs, tmp):
    for i, r_ in enumerate(regs):
        k.e(f'v_mov_b32 v{tmp+i}, v{r_}')
    k.e('s_nop 1')
    for i, r_ in enumerate(regs):
        k.e(f'v_permlane32_swap_b32 v{r_}, v{tmp+i}')
    k.e('s_nop 1')
    for i, r_ in enumerate(regs):
        k.e(f'v_add_f32 v{r_}, v{r_}, v{tmp+i}')

def ln_finish(k, sx, sxx, mean, rstd):
    k.e(f'v_mul_f32 v{mean}, {f32(1/512)}, v{sx}')
    k.e(f'v_mul_f32 v{sxx}, {f32(1/512)}, v{sxx}')
    k.e(f'v_fma_f32 v{rstd}, -v{mean}, v{mean}, v{sxx}')
    k.e(f'v_max_f32 v{rstd}, 0, v{rstd}')
    round_bf16(k, mean)
    round_bf16(k, rstd)
    k.e(f'v_add_f32 v{rstd}, {f32(1e-5)}, v{rstd}')
    round_bf16(k, rstd)
    k.e(f'v_sqrt_f32 v{rstd}, v{rstd}')
    k.e('s_nop 0')
    round_bf16(k, rstd)
    k.e(f'v_rcp_f32 v{rstd}, v{rstd}')
    k.e('s_nop 0')

def ln_stats(k, sx, sxx, tmp, mean, rstd):
    half_sum(k, [sx, sxx], tmp)
    ln_finish(k, sx, sxx, mean, rstd)

def selector(k, l, tmp):
    SEL = k.v(4)
    k.e(f'v_lshrrev_b32 v{tmp}, 2, v{l}')
    k.e(f'v_lshrrev_b32 v{tmp+1}, 4, v{l}')
    k.e(f'v_xor_b32 v{tmp}, v{tmp}, v{tmp+1}')
    k.e(f'v_and_b32 v{tmp}, 1, v{tmp}')
    k.e(f'v_add_u32 v{tmp}, -1, v{tmp}')
    k.e(f'v_and_b32 v{SEL}, 0x3f803f80, v{tmp}')
    for d in range(1, 4):
        k.e(f'v_mov_b32 v{SEL+d}, v{SEL}')
    return SEL

def gen_k1(name='qkv_kernel', SCHED=((0, 1), (2, 3), (4,), (5,), (6,), (7,)), ROT=6, TOUCH=0, ZAT=4, ZPOL=None):
    k = Kern(name)
    SLOT = 32768
    NSLOT = 5
    NCH = 8
    sX, sWS = k.s(4), k.s(2)
    SX, SW, SO = k.s(4), k.s(4), k.s(4)
    sw, srb, sj, sxo, swo, smx, st0, st1, st2, srot, stq, scg, sdx, sdw, srole = [k.s() for _ in range(15)]
    k.e(f's_cmp_ge_u32 s2, 256')
    k.e(f's_cbranch_scc1 {k.lab("end")}')
    k.e(f's_load_dwordx4 {sr(sX,4)}, s[0:1], 0')
    k.e(f's_load_dwordx2 {sr(sWS,2)}, s[0:1], 64')
    R = lane_regs(k)
    l, t, h = R['l'], R['t'], R['h']
    tmp = k.v(8)
    k.e(f'v_lshrrev_b32 v{tmp}, 6, v0')
    k.e(f's_and_b32 s{st0}, s2, 7')
    k.e(f'v_readfirstlane_b32 s{sw}, v{tmp}')
    k.e(f's_lshr_b32 s{st1}, s2, 3')
    k.e(f's_lshr_b32 s{srole}, s{sw}, 2')
    k.e(f's_and_b32 s{sw}, s{sw}, 3')
    k.e(f's_lshr_b32 s{srb}, s{st0}, 1')
    k.e(f's_lshl_b32 s{srb}, s{srb}, 3')
    k.e(f's_lshr_b32 s{st2}, s{st1}, 2')
    k.e(f's_add_u32 s{srb}, s{srb}, s{st2}')
    k.e(f's_and_b32 s{sj}, s{st0}, 1')
    k.e(f's_lshl_b32 s{sj}, s{sj}, 2')
    k.e(f's_and_b32 s{st1}, s{st1}, 3')
    k.e(f's_add_u32 s{sj}, s{sj}, s{st1}')
    k.e(f's_lshl_b32 s{srot}, s{st1}, 1')
    k.e(f's_add_u32 s{srot}, s{srot}, s{st2}')
    if ROT == 0:
        k.e(f's_mov_b32 s{srot}, 0')
    elif ROT == 2:
        k.e(f's_and_b32 s{srot}, s{st2}, 1')
    elif ROT == 4:
        k.e(f's_and_b32 s{srot}, s{srot}, 1')
        k.e(f's_lshl_b32 s{srot}, s{srot}, 2')
    elif ROT == 5:
        k.e(f's_add_u32 s{srot}, s{st1}, s{st2}')
        k.e(f's_and_b32 s{srot}, s{srot}, 3')
        k.e(f's_lshl_b32 s{srot}, s{srot}, 1')
    elif ROT == 6:
        k.e(f's_add_u32 s{srot}, s{st1}, s{st2}')
        k.e(f's_and_b32 s{srot}, s{srot}, 1')
        k.e(f's_lshl_b32 s{srot}, s{srot}, 2')
        k.e(f's_lshr_b32 s{sdx}, s{st0}, 1')
        k.e(f's_add_u32 s{srot}, s{srot}, s{sdx}')
    elif ROT == 3:
        k.e(f's_lshr_b32 s{srot}, s{st0}, 1')
        k.e(f's_lshl_b32 s{srot}, s{srot}, 1')
    k.e(f's_lshr_b32 s{stq}, s{sw}, 1')
    k.e(f's_and_b32 s{scg}, s{sw}, 1')
    vox = [k.v(), k.v()]
    vow = [k.v(), k.v()]
    k.e(f'v_and_b32 v{tmp}, 7, v{l}')
    k.e(f'v_lshrrev_b32 v{tmp+1}, 4, v{l}')
    k.e(f'v_xor_b32 v{tmp+2}, v{tmp}, v{tmp+1}')
    k.e(f'v_lshlrev_b32 v{tmp+2}, 4, v{tmp+2}')
    k.e(f'v_lshrrev_b32 v{tmp+3}, 3, v{l}')
    k.e(f'v_lshl_add_u32 v{vox[0]}, v{tmp+3}, 10, v{tmp+2}')
    k.e(f'v_xor_b32 v{vox[1]}, 64, v{vox[0]}')
    k.e(f'v_add_u32 v{vox[1]}, {8192-1024}, v{vox[1]}')
    k.e(f'v_and_b32 v{tmp+1}, 1, v{tmp+1}')
    k.e(f'v_lshlrev_b32 v{tmp+1}, 2, v{tmp+1}')
    k.e(f'v_xor_b32 v{tmp}, v{tmp}, v{tmp+1}')
    k.e(f'v_lshlrev_b32 v{tmp}, 4, v{tmp}')
    k.e(f'v_mul_u32_u24 v{tmp+3}, 3072, v{tmp+3}')
    k.e(f'v_add_u32 v{vow[0]}, v{tmp}, v{tmp+3}')
    k.e(f'v_add_u32 v{vow[1]}, {8*3072-1024}, v{vow[0]}')
    k.e(f's_lshl_b32 s{sxo}, s{sw}, 14')
    k.e(f's_mul_i32 s{swo}, s{sw}, {16*3072}')
    k.e(f's_lshl_b32 s{st0}, s{sj}, 7')
    k.e(f's_add_u32 s{swo}, s{swo}, s{st0}')
    k.e(f's_lshl_b32 s{smx}, s{sw}, 11')
    k.e(f's_lshl_b32 s{st0}, s{srb}, 16')
    k.e(f's_cmp_eq_u32 s{srole}, 0')
    k.e(f's_cbranch_scc1 {k.lab("compute")}')
    k.e('s_waitcnt lgkmcnt(0)')
    srd(k, SX, sX, sX+1, 65536, f's{st0}')
    srd(k, SW, sX+2, sX+3, 512*3072)
    nvm = [0]; done_at = {}
    def piece(c, j):
        sb = (c % NSLOT) * SLOT
        if j == 0:
            k.e(f's_add_u32 s{st0}, s{srot}, {c}')
            k.e(f's_and_b32 s{st0}, s{st0}, 7')
            k.e(f's_lshl_b32 s{sdx}, s{st0}, 7')
            k.e(f's_add_u32 m0, s{smx}, {sb}')
            k.e(f's_add_u32 s{sdx}, s{sdx}, s{sxo}')
            k.e(f'buffer_load_dwordx4 v{vox[0]}, {sr(SX,4)}, s{sdx} offen lds')
            k.e(f'buffer_load_dwordx4 v{vox[1]}, {sr(SX,4)}, s{sdx} offen offset:1024 lds')
            k.e(f's_mul_i32 s{sdw}, s{st0}, {64*3072}')
            k.e(f's_add_u32 s{sdw}, s{sdw}, s{swo}')
        else:
            k.e(f's_add_u32 m0, s{smx}, {sb + j*8192}')
            if j > 1:
                k.e(f's_add_u32 s{sdw}, s{sdw}, 1024')
            else:
                k.e('s_nop 0')
            k.e(f'buffer_load_dwordx4 v{vow[0]}, {sr(SW,4)}, s{sdw} offen lds')
            k.e(f'buffer_load_dwordx4 v{vow[1]}, {sr(SW,4)}, s{sdw} offen offset:1024 lds')
        nvm[0] += 2
        if j == 3: done_at[c] = nvm[0]
    for c in SCHED[0]:
        for j in range(4): piece(c, j)
    def zero_fill():
        srd(k, SO, sWS, sWS+1, 12*MB, OF)
        for d in range(4):
            k.e(f'v_mov_b32 v{tmp+4+d}, 0')
        k.e(f's_lshl_b32 s{st0}, s2, 2')
        k.e(f's_add_u32 s{st0}, s{st0}, s{sw}')
        k.e(f's_mul_i32 s{st0}, s{st0}, 12288')
        k.e(f'v_lshlrev_b32 v{tmp+1}, 4, v{l}')
        if ZPOL is None:
            k.e(f's_lshl_b32 s{st0}, s2, 2')
            k.e(f's_add_u32 s{st0}, s{st0}, s{sw}')
            k.e(f's_lshl_b32 s{st0}, s{st0}, 10')
            srd(k, SO, sWS, sWS+1, FLB, FL)
            k.e(f'buffer_store_dwordx4 {vr(tmp+4,4)}, v{tmp+1}, {sr(SO,4)}, s{st0} offen')
            nvm[0] += 1
            return
        for q in range(3):
            for i in range(4):
                k.e(f'buffer_store_dwordx4 {vr(tmp+4,4)}, v{tmp+1}, {sr(SO,4)}, s{st0} offen offset:{i*1024}{ZPOL}')
            k.e(f's_add_u32 s{st0}, s{st0}, 4096')
        nvm[0] += 12
    if ZAT < 0: zero_fill()
    for c in range(NCH):
        k.e(f's_waitcnt vmcnt({nvm[0] - done_at[c]})')
        k.e('s_barrier')
        for q in (SCHED[c+1] if c + 1 < len(SCHED) else ()):
            assert q - NSLOT <= c - 1
            for j in range(4): piece(q, j)
        if c == ZAT: zero_fill()
    k.e('s_endpgm')
    k.label('compute')
    if TOUCH:
        sidx, stx, stw = k.s(), k.s(), k.s()
        vtx, vtw, vtd = k.v(), k.v(), k.v()
        k.e(f's_lshr_b32 s{sidx}, s2, 3')
        k.e(f'v_lshlrev_b32 v{vtx}, 10, v{l}')
        k.e(f'v_lshrrev_b32 v{tmp+1}, 4, v{l}')
        k.e(f'v_lshl_add_u32 v{vtx}, v{tmp+1}, 20, v{vtx}')
        k.e(f's_and_b32 s{stx}, s{sidx}, 3')
        k.e(f's_lshl_b32 s{stx}, s{stx}, 14')
        k.e(f's_lshl_b32 s{st2}, s{sw}, 7')
        k.e(f's_add_u32 s{stx}, s{stx}, s{st2}')
        k.e(f'v_and_b32 v{vtw}, 7, v{l}')
        k.e(f'v_mul_u32_u24 v{vtw}, 3072, v{vtw}')
        k.e(f'v_lshrrev_b32 v{tmp+2}, 3, v{l}')
        k.e(f'v_lshl_add_u32 v{vtw}, v{tmp+2}, 10, v{vtw}')
        k.e(f'v_cmp_lt_u32 vcc, 2, v{tmp+2}')
        k.e(f'v_mov_b32 v{tmp+3}, 0x2000000')
        k.e(f's_lshr_b32 s{stw}, s{sidx}, 2')
        k.e(f'v_cndmask_b32 v{vtw}, v{vtw}, v{tmp+3}, vcc')
        k.e(f's_mul_i32 s{stw}, s{stw}, {8*3072}')
        k.e(f's_mul_i32 s{sdw}, s{sw}, {64*3072}')
        k.e(f's_add_u32 s{stw}, s{stw}, s{sdw}')
        k.e(f's_lshl_b32 s{sdw}, s{sj}, 7')
        k.e(f's_add_u32 s{stw}, s{stw}, s{sdw}')
        k.e('s_waitcnt lgkmcnt(0)')
        srd(k, SX, sX, sX+1, 65536, f's{st0}')
        srd(k, SW, sX+2, sX+3, 512*3072)
        def touch():
            k.e(f'buffer_load_dword v{vtd}, v{vtx}, {sr(SX,4)}, s{stx} offen')
            k.e(f'buffer_load_dword v{vtd}, v{vtw}, {sr(SW,4)}, s{stw} offen')
        if TOUCH == 1:
            touch()
        else:
            k.e(f's_cmp_ge_u32 s{sw}, 2')
            k.e(f's_cbranch_scc1 {k.lab("t1")}')
            touch()
            k.label('t1')
    POOL = k.v(64, 4)
    ax = [[POOL + 4*s + i for i in range(4)] for s in range(3)]
    aw = [[POOL + 12 + 4*s + i for i in range(4)] for s in range(3)]
    k.e(f'v_bfe_u32 v{tmp}, v{t}, 1, 3')
    k.e(f'v_xor_b32 v{tmp}, v{tmp}, v{h}')
    k.e(f'v_lshlrev_b32 v{tmp+1}, 7, v{t}')
    k.e(f's_lshl_b32 s{st0}, s{stq}, 12')
    k.e(f'v_add_u32 v{tmp+1}, s{st0}, v{tmp+1}')
    k.e(f'v_bfe_u32 v{tmp+3}, v{l}, 2, 2')
    k.e(f'v_lshl_add_u32 v{tmp+2}, v{h}, 3, v{tmp+3}')
    k.e(f'v_lshlrev_b32 v{tmp+2}, 7, v{tmp+2}')
    k.e(f'v_lshrrev_b32 v{tmp+3}, 1, v{tmp+3}')
    k.e(f'v_xor_b32 v{tmp+3}, s{scg}, v{tmp+3}')
    k.e(f'v_lshl_add_u32 v{tmp+2}, v{tmp+3}, 6, v{tmp+2}')
    k.e(f'v_bfe_u32 v{tmp+3}, v{l}, 4, 1')
    k.e(f'v_lshl_add_u32 v{tmp+2}, v{tmp+3}, 5, v{tmp+2}')
    k.e(f'v_and_b32 v{tmp+3}, 3, v{l}')
    k.e(f'v_lshl_add_u32 v{tmp+2}, v{tmp+3}, 3, v{tmp+2}')
    k.e(f'v_add_u32 v{tmp+2}, 8192, v{tmp+2}')
    for i in range(4):
        k.e(f's_xor_b32 s{st0}, s{sw}, {i}')
        k.e(f's_lshl_b32 s{st1}, s{st0}, 1')
        k.e(f'v_xor_b32 v{tmp+4}, s{st1}, v{tmp}')
        k.e(f'v_lshl_add_u32 v{ax[0][i]}, v{tmp+4}, 4, v{tmp+1}')
        k.e(f's_lshl_b32 s{st1}, s{st0}, 11')
        k.e(f'v_add_u32 v{aw[0][i]}, s{st1}, v{tmp+2}')
        for s in (1, 2):
            k.e(f'v_add_u32 v{ax[s][i]}, {2*SLOT*s}, v{ax[0][i]}')
            k.e(f'v_add_u32 v{aw[s][i]}, {2*SLOT*s}, v{aw[0][i]}')
    SEL = selector(k, l, tmp)
    XF = [POOL + 24, POOL + 28]
    WF = [[POOL + 32 + 12*s + 4*b for b in range(3)] for s in range(2)]
    ACC = [k.v(16) for b in range(3)]
    SXA = k.v(4)
    CSA = [k.v(4) for b in range(3)]
    sxx = [k.v(), k.v()]
    UP = POOL + 56
    for r_ in sxx:
        k.e(f'v_mov_b32 v{r_}, 0')
    def rd(n, part):
        c, i = n // 4, n % 4
        slot = c % NSLOT
        s, rel = slot // 2, (slot % 2) * SLOT
        p = n & 1
        if part == 0:
            k.e(f'ds_read_b128 {vr(XF[p],4)}, v{ax[s][i]} offset:{rel}')
        for w2 in range(2):
            k.e(f'ds_read_b64_tr_b16 {vr(WF[p][part]+2*w2,2)}, v{aw[s][i]} offset:{rel + part*8192 + w2*512}')
    def sync(c):
        k.e('s_waitcnt lgkmcnt(0)')
        k.e('s_barrier')
    if TOUCH == 2:
        k.e(f's_cmp_lt_u32 s{sw}, 2')
        k.e(f's_cbranch_scc1 {k.lab("t2")}')
        touch()
        k.label('t2')
    sync(0)
    if TOUCH:
        k.e(f's_add_u32 s{stx}, s{stx}, 512')
        k.e(f's_add_u32 s{stw}, s{stw}, {4*64*3072}')
        touch()
    srd(k, SO, sWS, sWS+1, 6*MB)
    k.stamp('first')
    for part in range(3): rd(0, part)
    NK = 4 * NCH
    for n in range(NK):
        p = n & 1
        c, i = n // 4, n % 4
        last = n + 1 == NK
        k.c(f'kstep {n}')
        if n in (8, 16, 24): k.stamp(f'k{n}')
        C = (lambda b: '0') if n == 0 else (lambda b: vr(ACC[b], 16))
        xs = i in (0, 2)
        k.e('s_waitcnt lgkmcnt(4)')
        k.e(f'v_mfma_f32_32x32x16_bf16 {vr(ACC[0],16)}, {vr(WF[p][0],4)}, {vr(XF[p],4)}, {C(0)}')
        if i == 3 and not last:
            sync(c + 1)
        if not last: rd(n + 1, 0)
        if xs:
            for d in range(2):
                k.e(f'v_lshlrev_b32 v{UP+2*d}, 16, v{XF[p]+d}')
                k.e(f'v_and_b32 v{UP+2*d+1}, 0xffff0000, v{XF[p]+d}')
        if i != 3 or last:
            k.e(f's_waitcnt lgkmcnt({2 if last else 5})')
        k.e(f'v_mfma_f32_32x32x16_bf16 {vr(ACC[1],16)}, {vr(WF[p][1],4)}, {vr(XF[p],4)}, {C(1)}')
        if not last: rd(n + 1, 1)
        if xs:
            for d in range(2, 4):
                k.e(f'v_lshlrev_b32 v{UP+2*d}, 16, v{XF[p]+d}')
                k.e(f'v_and_b32 v{UP+2*d+1}, 0xffff0000, v{XF[p]+d}')
        if i != 3 or last:
            k.e(f's_waitcnt lgkmcnt({0 if last else 5})')
        k.e(f'v_mfma_f32_32x32x16_bf16 {vr(ACC[2],16)}, {vr(XF[p],4)}, {vr(WF[p][2],4)}, {C(2)}')
        if not last: rd(n + 1, 2)
        if xs:
            for d in range(4):
                k.e(f'v_fmac_f32 v{sxx[d&1]}, v{UP+d}, v{UP+d}')
            Cx = '0' if n == 0 else vr(SXA, 4)
            k.e(f'v_mfma_f32_16x16x32_bf16 {vr(SXA,4)}, {vr(SEL,4)}, {vr(XF[p],4)}, {Cx}')
            for d in range(4, 8):
                k.e(f'v_fmac_f32 v{sxx[d&1]}, v{UP+d}, v{UP+d}')
        if i in (0, 1):
            for b in range(3):
                Cx = '0' if n == 0 else vr(CSA[b], 4)
                k.e(f'v_mfma_f32_16x16x32_bf16 {vr(CSA[b],4)}, {vr(SEL,4)}, {vr(WF[p][b],4)}, {Cx}')
    k.stamp('loopend')
    a0, a1, a2, a3 = k.v(), k.v(), k.v(), k.v()
    STT = k.v(2); PS = k.v(2); pcv = k.v()
    k.e(f'v_add_f32 v{STT+1}, v{sxx[0]}, v{sxx[1]}')
    k.e(f's_lshl_b32 s{st0}, s{sw}, 10')
    k.e(f'v_lshlrev_b32 v{a0}, 2, v{t}')
    k.e(f'v_add_u32 v{a1}, s{st0}, v{a0}')
    for b in range(3):
        k.e(f'ds_write_b32 v{a1}, v{CSA[b]} offset:{b*128}')
    half_sum(k, [STT+1], tmp)
    k.e(f'v_mov_b32 v{STT}, v{SXA}')
    k.e(f'v_add_u32 v{a2}, v{a1}, v{a0}')
    k.e(f'ds_write_b64 v{a2}, {vr(STT,2)} offset:384')
    k.e(f'v_xor_b32 v{a2}, 1024, v{a2}')
    k.e(f'v_xor_b32 v{a0}, 2048, v{a1}')
    k.e(f'v_lshlrev_b32 v{a3}, 4, v{h}')
    k.e(f'v_add_u32 v{a3}, s{st0}, v{a3}')
    k.e(f'v_xor_b32 v{tmp}, 2048, v{a3}')
    k.e('s_waitcnt lgkmcnt(0)')
    k.e('s_barrier')
    MR = k.v(16); RR = k.v(16); CS = POOL; CS2 = POOL + 32
    k.e(f'ds_read_b64 {vr(PS,2)}, v{a2} offset:384')
    k.e(f'ds_read_b32 v{pcv}, v{a0} offset:256')
    for b in range(2):
        for g in range(4):
            k.e(f'ds_read_b128 {vr(CS+16*b+4*g,4)}, v{a3} offset:{b*128+g*32}')
    for g in range(4):
        k.e(f'ds_read_b128 {vr(CS2+16+4*g,4)}, v{tmp} offset:{128+g*32}')
    k.e('s_waitcnt lgkmcnt(12)')
    mean, rstd = k.v(2), k.v(2)
    k.e(f'v_add_f32 v{STT}, v{STT}, v{PS}')
    k.e(f'v_add_f32 v{STT+1}, v{STT+1}, v{PS+1}')
    k.e(f'v_add_f32 v{pcv}, v{pcv}, v{CSA[2]}')
    for g in range(4):
        k.e(f'ds_read_b128 {vr(CS2+4*g,4)}, v{tmp} offset:{g*32}')
    ln_finish(k, STT, STT+1, mean, rstd)
    k.e(f'v_sub_f32 v{mean}, 0, v{mean}')
    k.e(f'ds_write_b32 v{a1}, v{mean} offset:640')
    k.e(f'ds_write_b32 v{a1}, v{rstd} offset:768')
    rq = k.v(2)
    k.e(f'v_mul_f32 v{rq}, {f32(QSCALE)}, v{rstd}')
    vo, vov = k.v(), k.v()
    k.e(f'v_lshlrev_b32 v{vo}, 4, v{l}')
    k.e(f'v_bfe_u32 v{tmp}, v{l}, 4, 1')
    k.e(f'v_lshlrev_b32 v{vov}, 16, v{tmp}')
    k.e(f'v_lshl_add_u32 v{vov}, v{h}, 8, v{vov}')
    k.e(f'v_and_b32 v{tmp}, 15, v{l}')
    k.e(f'v_lshl_add_u32 v{vov}, v{tmp}, 4, v{vov}')
    k.e(f's_lshl_b32 s{st0}, s{sj}, 1')
    k.e(f's_add_u32 s{st0}, s{st0}, s{scg}')
    k.e(f's_lshl_b32 s{st0}, s{st0}, 17')
    k.e(f's_lshl_b32 s{st1}, s{srb}, 1')
    k.e(f's_add_u32 s{st1}, s{st1}, s{stq}')
    k.e(f's_lshl_b32 s{st1}, s{st1}, 10')
    k.e(f's_add_u32 s{st0}, s{st0}, s{st1}')
    k.e('s_waitcnt lgkmcnt(0)')
    for g in range(4):
        k.e(f'ds_read_b128 {vr(MR+4*g,4)}, v{a3} offset:{640+g*32}')
    for g in range(4):
        k.e(f'ds_read_b128 {vr(RR+4*g,4)}, v{a3} offset:{768+g*32}')
    OUT = [k.v(8, 4) for b in range(3)]
    for b in (1, 0):
        sc = rq if b == 0 else rstd
        for r_ in range(0, 16, 2):
            k.e(f'v_pk_add_f32 {vr(CS+16*b+r_,2)}, {vr(CS+16*b+r_,2)}, {vr(CS2+16*b+r_,2)}')
        for r_ in range(0, 16, 2):
            k.e(f'v_pk_fma_f32 {vr(ACC[b]+r_,2)}, {vr(CS+16*b+r_,2)}, {vr(mean,2)}, {vr(ACC[b]+r_,2)} op_sel_hi:[1,0,1]')
        for r_ in range(0, 16, 2):
            k.e(f'v_pk_mul_f32 {vr(ACC[b]+r_,2)}, {vr(ACC[b]+r_,2)}, {vr(sc,2)} op_sel_hi:[1,0]')
        for q in range(8):
            k.e(f'v_cvt_pk_bf16_f32 v{OUT[b]+q}, v{ACC[b]+2*q}, v{ACC[b]+2*q+1}')
        base = QF if b == 0 else KF
        k.e(f's_add_u32 s{st1}, s{st0}, {base}')
        k.e(f's_add_u32 s{st2}, s{st0}, {base+65536}')
        k.e(f'buffer_store_dwordx4 {vr(OUT[b],4)}, v{vo}, {sr(SO,4)}, s{st1} offen')
        k.e(f'buffer_store_dwordx4 {vr(OUT[b]+4,4)}, v{vo}, {sr(SO,4)}, s{st2} offen')
    pc2 = k.v(2)
    k.e(f'v_mov_b32 v{pc2}, v{pcv}')
    k.e('s_waitcnt lgkmcnt(0)')
    for r_ in range(0, 16, 2):
        k.e(f'v_pk_fma_f32 {vr(ACC[2]+r_,2)}, {vr(MR+r_,2)}, {vr(pc2,2)}, {vr(ACC[2]+r_,2)} op_sel_hi:[1,0,1]')
    for r_ in range(0, 16, 2):
        k.e(f'v_pk_mul_f32 {vr(ACC[2]+r_,2)}, {vr(ACC[2]+r_,2)}, {vr(RR+r_,2)}')
    for q in range(8):
        k.e(f'v_cvt_pk_bf16_f32 v{OUT[2]+q}, v{ACC[2]+2*q}, v{ACC[2]+2*q+1}')
    k.e(f's_add_u32 s{st1}, s{st0}, {VF}')
    k.e(f'buffer_store_dwordx4 {vr(OUT[2],4)}, v{vov}, {sr(SO,4)}, s{st1} offen')
    k.e(f'buffer_store_dwordx4 {vr(OUT[2]+4,4)}, v{vov}, {sr(SO,4)}, s{st1} offen offset:512')
    k.stamp('stored')
    k.label('end')
    k.e('s_endpgm')
    return k, (256, 512, NSLOT*SLOT)
```

```python
from fw import *
from k1 import *

def gen_k2(name='attn_kernel', prefetch=True, prio=True):
    k = Kern(name)
    KB, VB, ONES = 0, 65536, 131072
    UN = 4
    EXA = ONES + UN*1024
    LDS = EXA + 8*3072
    sWS = k.s(2)
    sW = k.s(2)
    sW1 = k.s(4)
    SKV, SO, SP = k.s(4), k.s(4), k.s(4)
    sw, shead, stb, st0, st1, st2, sit, sidx, skh, sga, sla = [k.s() for _ in range(11)]
    smask = k.s(2)
    k.e('s_cmp_ge_u32 s2, 256')
    k.e(f's_cbranch_scc1 {k.lab("end")}')
    k.e(f's_load_dwordx2 {sr(sWS,2)}, s[0:1], 64')
    k.e(f's_load_dwordx2 {sr(sW,2)}, s[0:1], 16')
    k.e(f's_load_dwordx4 {sr(sW1,4)}, s[0:1], 32')
    R = lane_regs(k)
    l, t, h = R['l'], R['t'], R['h']
    tmp = k.v(4)
    k.e(f'v_lshrrev_b32 v{tmp}, 6, v0')
    k.e(f's_and_b32 s{st0}, s2, 7')
    k.e(f'v_readfirstlane_b32 s{sw}, v{tmp}')
    k.e(f's_lshr_b32 s{sidx}, s2, 3')
    k.e(f's_lshl_b32 s{shead}, s{st0}, 2')
    k.e(f's_lshr_b32 s{st1}, s{sidx}, 3')
    k.e(f's_add_u32 s{shead}, s{shead}, s{st1}')
    k.e(f's_lshr_b32 s{skh}, s{sw}, 2')
    k.e(f's_and_b32 s{stb}, s{sidx}, 7')
    k.e(f's_lshl_b32 s{stb}, s{stb}, 3')
    k.e(f's_and_b32 s{st1}, s{sw}, 3')
    k.e(f's_lshl_b32 s{st1}, s{st1}, 1')
    k.e(f's_add_u32 s{stb}, s{stb}, s{st1}')
    k.e(f's_add_u32 s{stb}, s{stb}, s{skh}')
    vl16 = k.v()
    k.e(f'v_lshlrev_b32 v{vl16}, 4, v{l}')
    ON = k.v(4)
    k.e(f'v_and_b32 v{tmp}, 11, v0')
    k.e(f'v_cmp_eq_u32 vcc, 0, v{tmp}')
    k.e(f'v_mov_b32 v{tmp+1}, 0x3f803f80')
    k.e(f'v_lshlrev_b32 v{tmp}, 4, v0')
    k.e(f'v_cndmask_b32 v{ON}, 0, v{tmp+1}, vcc')
    k.e(f'v_and_b32 v{tmp}, {UN*1024-1}, v{tmp}')
    for d in range(1, 4):
        k.e(f'v_mov_b32 v{ON+d}, v{ON}')
    k.e(f'v_add_u32 v{tmp}, {ONES}, v{tmp}')
    k.e(f'ds_write_b128 v{tmp}, {vr(ON,4)}')
    k.e(f's_lshl_b32 s{st0}, s{shead}, 16')
    k.e(f's_and_b32 s{st1}, s{sw}, 1')
    k.e(f's_lshl_b32 s{sla}, s{st1}, 16')
    k.e(f's_lshl_b32 s{sga}, s{st1}, 21')
    k.e(f's_bfe_u32 s{st1}, s{sw}, 0x10001')
    k.e(f's_lshl_b32 s{st1}, s{st1}, 15')
    k.e(f's_lshl_b32 s{st2}, s{skh}, 10')
    k.e(f's_add_u32 s{st1}, s{st1}, s{st2}')
    k.e(f's_add_u32 s{sla}, s{sla}, s{st1}')
    k.e(f's_add_u32 s{sga}, s{sga}, s{st1}')
    k.e(f's_add_u32 s{sga}, s{sga}, s{st0}')
    k.e(f's_add_u32 s{sga}, s{sga}, {KF}')
    k.e(f's_lshl_b32 s{st1}, s{stb}, 10')
    k.e(f's_add_u32 s{st1}, s{st1}, s{st0}')
    k.e(f's_xor_b32 s{st2}, s{st1}, 1024')
    k.e('s_waitcnt lgkmcnt(0)')
    k.stamp('karg')
    srd(k, SKV, sWS, sWS+1, 6*MB)
    Q = [k.v(4), k.v(4)]
    def dma_pair(r):
        k.e(f's_add_u32 m0, s{sla}, {r*2048}')
        k.e(f's_add_u32 s{st0}, s{sga}, {r*2048}')
        k.e(f'buffer_load_dwordx4 v{vl16}, {sr(SKV,4)}, s{st0} offen lds')
        k.e(f'buffer_load_dwordx4 v{vl16}, {sr(SKV,4)}, s{st0} offen offset:2048 lds')
    k.e(f'buffer_load_dwordx4 {vr(Q[0],4)}, v{vl16}, {sr(SKV,4)}, s{st1} offen')
    k.e(f'buffer_load_dwordx4 {vr(Q[1],4)}, v{vl16}, {sr(SKV,4)}, s{st2} offen')
    dma_pair(0)
    dma_pair(2)
    srd(k, SO, sWS, sWS+1, 2*MB, OF)
    k.stamp('issued')
    vk, vv, vinc = k.v(), k.v(), k.v()
    k.e(f's_lshl_b32 s{st0}, s{skh}, 15')
    k.e(f'v_add_u32 v{vk}, s{st0}, v{vl16}')
    k.e(f'v_and_b32 v{tmp}, 15, v{l}')
    k.e(f'v_lshlrev_b32 v{tmp}, 4, v{tmp}')
    k.e(f'v_lshl_add_u32 v{tmp}, v{h}, 8, v{tmp}')
    k.e(f'v_bfe_u32 v{tmp+1}, v{l}, 4, 1')
    k.e(f'v_xor_b32 v{tmp+2}, 1, v{tmp+1}')
    k.e(f'v_lshlrev_b32 v{vinc}, 12, v{tmp+2}')
    k.e(f'v_mul_u32_u24 v{tmp+2}, s{st0}, v{tmp+2}')
    k.e(f'v_lshl_add_u32 v{vv}, v{tmp+1}, 16, v{tmp}')
    k.e(f'v_add_u32 v{vv}, v{vv}, v{tmp+2}')
    k.e(f'v_add_u32 v{vv}, {VB}, v{vv}')
    S = [k.v(16), k.v(16)]
    NM = [k.v(16), k.v(16)]
    O = [k.v(16), k.v(16)]
    P = [k.v(8), k.v(8)]
    KFr = k.v(4); V0 = k.v(4); V1 = k.v(4)
    dummy = k.v()
    for s_ in range(2):
        for r_ in range(16):
            k.e(f'v_mov_b32 v{O[s_]+r_}, 0')
        for d in range(4):
            k.e(f'v_mov_b32 v{P[s_]+4+d}, 0')
    if prio:
        k.e('s_setprio 3')
    k.e('s_waitcnt vmcnt(2)')
    k.e('s_barrier')
    k.stamp('first')
    k.e(f'ds_read_b128 {vr(V0,4)}, v{vl16}')
    k.e(f'ds_read_b128 {vr(KFr,4)}, v{vk}')
    k.e(f'ds_read_b128 {vr(V1,4)}, v{vv} offset:512')
    k.e('s_waitcnt lgkmcnt(2)')
    k.e(f'v_mfma_f32_32x32x16_bf16 {vr(S[0],16)}, {vr(V0,4)}, {vr(Q[0],4)}, 0')
    k.e(f'v_mfma_f32_32x32x16_bf16 {vr(S[1],16)}, {vr(V0,4)}, {vr(Q[1],4)}, 0')
    dma_pair(4)
    k.e(f'ds_read_b128 {vr(V0,4)}, v{vv}')
    k.e('s_nop 5')
    def rowmax16(src, dst):
        k.e(f'v_max3_f32 v{dst}, v{src}, v{src+1}, v{src+2}')
        for q in range(3, 15, 2):
            k.e(f'v_max3_f32 v{dst}, v{dst}, v{src+q}, v{src+q+1}')
        k.e(f'v_max_f32 v{dst}, v{dst}, v{src+15}')
    def set_negm(m, nm):
        k.e(f'v_mov_b32 v{m+1}, v{m}')
        k.e('s_nop 1')
        k.e(f'v_permlane32_swap_b32 v{m}, v{m+1}')
        k.e('s_nop 1')
        k.e(f'v_max_f32 v{m}, v{m}, v{m+1}')
        for r_ in range(16):
            k.e(f'v_sub_f32 v{nm+r_}, 0, v{m}')
    rowmax16(S[0], tmp)
    set_negm(tmp, NM[0])
    rowmax16(S[1], tmp+2)
    k.e('s_waitcnt lgkmcnt(0)')
    k.e(f'v_mfma_f32_32x32x16_bf16 {vr(S[0],16)}, {vr(KFr,4)}, {vr(Q[0],4)}, {vr(NM[0],16)}')
    set_negm(tmp+2, NM[1])
    k.e(f's_mov_b32 s{sit}, 0')
    k.e('s_nop 0')
    k.stamp('loop')
    k.stamp('@loop')

    def MQK(s_): k.e(f'v_mfma_f32_32x32x16_bf16 {vr(S[s_],16)}, {vr(KFr,4)}, {vr(Q[s_],4)}, {vr(NM[s_],16)}')
    def MP(s_, u): k.e(f'v_mfma_f32_32x32x16_bf16 {vr(O[s_],16)}, {vr(V1 if u else V0,4)}, {vr(P[s_]+4*u,4)}, {vr(O[s_],16)}')
    def E(s_, a, b):
        for r_ in range(a, b): k.e(f'v_exp_f32 v{S[s_]+r_}, v{S[s_]+r_}')
    def C(s_, a, b):
        for q in range(a, b): k.e(f'v_cvt_pk_bf16_f32 v{P[s_]+q}, v{S[s_]+2*q}, v{S[s_]+2*q+1}')
    def keytile(i, hook=None):
        k.c(f'key tile {i}')
        MQK(1)
        E(0, 0, 3)
        MP(1, 1)
        k.e(f'ds_read_b128 {vr(V1,4)}, v{vv} offset:{i*1024+512}')
        k.e(f'ds_read_b128 {vr(KFr,4)}, v{vk} offset:{(i+1)*1024}')
        E(0, 3, 8)
        C(0, 0, 4)
        if hook: hook(0)
        E(0, 8, 11)
        k.e('s_waitcnt lgkmcnt(2)')
        MP(0, 0)
        E(0, 11, 16)
        C(0, 4, 8)
        k.e('s_waitcnt lgkmcnt(0)')
        E(1, 0, 2)
        MQK(0)
        E(1, 2, 5)
        MP(0, 1)
        E(1, 5, 8)
        C(1, 0, 4)
        if hook: hook(1)
        E(1, 8, 11)
        MP(1, 0)
        if i == UN - 1:
            k.e(f'v_add_u32 v{vv}, v{vv}, v{vinc}')
            k.e(f'v_add_u32 v{vk}, {UN*1024}, v{vk}')
            k.e(f'ds_read_b128 {vr(V0,4)}, v{vv}')
        else:
            k.e(f'ds_read_b128 {vr(V0,4)}, v{vv} offset:{(i+1)*1024}')
        E(1, 11, 16)
        if i == UN - 1:
            k.e(f's_add_u32 s{sit}, s{sit}, 1')
            k.e(f's_cmp_lt_u32 s{sit}, {32//UN}')
        C(1, 4, 8)
    pend = [6, 8, 10, 12, 14]
    def hook_first(i):
        def hk(z):
            if i < 3 and pend and not (i == 2 and z == 1):
                dma_pair(pend.pop(0))
            if i == 0 and z == 1:
                pass
            if i == 2 and z == 1:
                assert not pend
                k.stamp('presync')
                k.e('s_waitcnt vmcnt(12)')
                k.e('s_barrier')
                k.stamp('postsync')
            if i == 3 and z == 2:
                k.e('s_waitcnt vmcnt(0)')
                k.e('s_barrier')
                k.stamp('sync2')
                if prefetch:
                    k.e(f'v_lshlrev_b32 v{tmp}, 7, v0')
                    k.e(f's_lshl_b32 s{st0}, s{sidx}, 14')
                    srd(k, SP, sW, sW+1, 512*1024)
                    k.e(f'v_cmp_gt_u32 vcc, 128, v0')
                    k.e(f's_and_saveexec_b64 {sr(smask,2)}, vcc')
                    k.e(f's_cbranch_execz {k.lab("pf1")}')
                    k.e(f'buffer_load_dword v{dummy}, v{tmp}, {sr(SP,4)}, s{st0} offen')
                    k.label('pf1')
                    k.e(f's_mov_b64 exec, {sr(smask,2)}')
                    srd(k, SP, sW1, sW1+1, 512*3584)
                    k.e(f's_mul_i32 s{st0}, s{sidx}, 57344')
                    k.e(f'buffer_load_dword v{dummy}, v{tmp}, {sr(SP,4)}, s{st0} offen')
        return hk
    for i in range(UN):
        keytile(i, hook_first(i))
    hook_first(3)(2)
    k.label('loop')
    if prio:
        for it, pr in ((2, 2), (4, 1), (6, 0)):
            k.e(f's_cmp_lg_u32 s{sit}, {it}')
            k.e(f's_cbranch_scc1 {k.lab(f"np{it}")}')
            k.e(f's_setprio {pr}')
            k.label(f'np{it}')
    for i in range(UN):
        keytile(i)
    k.e(f's_cbranch_scc1 {k.lab("loop")}')
    k.stamp('loopend')
    k.stamp('@loopend')
    k.e('s_nop 0')
    MP(1, 1)
    k.e(f's_mul_i32 s{st0}, s{sw}, 3072')
    k.e(f's_add_u32 s{st0}, s{st0}, {EXA}')
    k.e(f'v_add_u32 v{tmp}, s{st0}, v{vl16}')
    k.e(f's_xor_b32 s{st1}, s{sw}, 4')
    k.e(f's_mul_i32 s{st1}, s{st1}, 3072')
    k.e(f's_add_u32 s{st1}, s{st1}, {EXA}')
    k.e(f'v_add_u32 v{tmp+1}, s{st1}, v{vl16}')
    k.e('s_nop 5')
    for q in range(3):
        k.e(f'ds_write_b128 v{tmp}, {vr(O[1]+4*q,4)} offset:{q*1024}')
    k.e('s_waitcnt lgkmcnt(0)')
    k.e('s_barrier')
    for q in range(3):
        k.e(f'ds_read_b128 {vr(S[0]+4*q,4)}, v{tmp+1} offset:{q*1024}')
    k.e(f's_mov_b32 s{st0}, {f32(2.0**40)}')
    k.e('s_waitcnt lgkmcnt(0)')
    for r_ in (8, 0, 1, 2, 3, 4, 5, 6, 7):
        k.e(f'v_add_f32 v{O[0]+r_}, v{O[0]+r_}, v{S[0]+r_}')
    k.e(f'v_cmp_nlt_f32 vcc, v{O[0]+8}, s{st0}')
    k.e('s_nop 0')
    k.e(f's_cbranch_vccnz {k.lab("slow")}')
    k.label('fin')
    k.e(f'v_rcp_f32 v{tmp}, v{O[0]+8}')
    k.e(f's_lshl_b32 s{st0}, s{stb}, 15')
    k.e(f's_lshl_b32 s{st1}, s{shead}, 10')
    k.e(f's_add_u32 s{st0}, s{st0}, s{st1}')
    for r_ in range(8):
        k.e(f'v_mul_f32 v{O[0]+r_}, v{O[0]+r_}, v{tmp}')
    for q in range(4):
        k.e(f'v_cvt_pk_bf16_f32 v{P[0]+q}, v{O[0]+2*q}, v{O[0]+2*q+1}')
    k.e(f'buffer_store_dwordx4 {vr(P[0],4)}, v{vl16}, {sr(SO,4)}, s{st0} offen')
    k.label('end')
    k.e('s_endpgm')
    k.label('slow')
    k.e(f'v_mov_b32 v{vk}, v{vl16}')
    k.e(f'v_mov_b32 v{tmp}, 0xff800000')
    k.e(f's_mov_b32 s{sit}, 0')
    k.label('slow1')
    k.e(f'ds_read_b128 {vr(KFr,4)}, v{vk}')
    k.e(f'v_add_u32 v{vk}, 1024, v{vk}')
    k.e('s_waitcnt lgkmcnt(0)')
    k.e(f'v_mfma_f32_32x32x16_bf16 {vr(S[0],16)}, {vr(KFr,4)}, {vr(Q[0],4)}, 0')
    k.e('s_nop 15')
    rowmax16(S[0], tmp+2)
    k.e(f'v_max_f32 v{tmp}, v{tmp}, v{tmp+2}')
    k.e(f's_add_u32 s{sit}, s{sit}, 1')
    k.e(f's_cmp_lt_u32 s{sit}, 64')
    k.e(f's_cbranch_scc1 {k.lab("slow1")}')
    set_negm(tmp, NM[0])
    for r_ in range(16):
        k.e(f'v_mov_b32 v{O[0]+r_}, 0')
    k.e(f'v_mov_b32 v{vk}, v{vl16}')
    k.e(f's_add_u32 s{st0}, s{skh}, 1')
    k.e(f's_lshl_b32 s{st0}, s{st0}, 3')
    k.e(f'v_mul_u32_u24 v{tmp}, s{st0}, v{vinc}')
    k.e(f'v_sub_u32 v{vv}, v{vv}, v{tmp}')
    k.e(f'v_lshrrev_b32 v{vinc}, 2, v{vinc}')
    k.e(f's_mov_b32 s{sit}, 0')
    k.label('slow2')
    k.e(f'ds_read_b128 {vr(KFr,4)}, v{vk}')
    k.e(f'ds_read_b128 {vr(V0,4)}, v{vv}')
    k.e(f'ds_read_b128 {vr(V1,4)}, v{vv} offset:512')
    k.e(f'v_add_u32 v{vk}, 1024, v{vk}')
    k.e(f'v_add_u32 v{vv}, v{vv}, v{vinc}')
    k.e('s_waitcnt lgkmcnt(0)')
    k.e(f'v_mfma_f32_32x32x16_bf16 {vr(S[0],16)}, {vr(KFr,4)}, {vr(Q[0],4)}, {vr(NM[0],16)}')
    k.e('s_nop 15')
    E(0, 0, 16)
    k.e('s_nop 0')
    C(0, 0, 8)
    k.e('s_nop 1')
    MP(0, 0)
    MP(0, 1)
    k.e(f's_add_u32 s{sit}, s{sit}, 1')
    k.e(f's_cmp_lt_u32 s{sit}, 64')
    k.e(f's_cbranch_scc1 {k.lab("slow2")}')
    k.e('s_nop 15')
    k.e(f's_branch {k.lab("fin")}')
    return k, (256, 512, LDS)
```

```python
from fw import *
from k1 import *

def gen_k35(name, mode, NUP=None):
    k = Kern(name)
    NKS = 32 if mode == 3 else 112
    NCH = NKS // 8
    SLOT = 32768
    NSLOT = 4 if mode == 3 else 5
    RESB = NSLOT * SLOT
    LDS = RESB + (8192 if mode == 3 else 0)
    if NUP is None:
        NUP = 2 if mode == 3 else 3
    NFB = NKS
    XBASE = OF if mode == 3 else FF
    sWS = k.s(2); sWp = k.s(2); sR = k.s(2)
    SX, SW, SR, SO, SS = k.s(4), k.s(4), k.s(4), k.s(4), k.s(4)
    sw, srb, scb, st0, st1, st2, sxo, swo, smx, smw, stq, scq = [k.s() for _ in range(12)]
    k.e('s_cmp_ge_u32 s2, 256')
    k.e(f's_cbranch_scc1 {k.lab("end")}')
    k.e(f's_load_dwordx2 {sr(sWS,2)}, s[0:1], 64')
    k.e(f's_load_dwordx2 {sr(sWp,2)}, s[0:1], {16 if mode == 3 else 40}')
    k.e(f's_load_dwordx2 {sr(sR,2)}, s[0:1], {0 if mode == 3 else 48}')
    R = lane_regs(k)
    l, t, h = R['l'], R['t'], R['h']
    tmp = k.v(4)
    k.e(f'v_lshrrev_b32 v{tmp}, 6, v0')
    k.e(f's_and_b32 s{st0}, s2, 7')
    k.e(f'v_readfirstlane_b32 s{sw}, v{tmp}')
    k.e(f's_lshr_b32 s{st1}, s2, 3')
    k.e(f's_lshl_b32 s{srb}, s{st0}, 2')
    k.e(f's_lshr_b32 s{st2}, s{st1}, 3')
    k.e(f's_add_u32 s{srb}, s{srb}, s{st2}')
    k.e(f's_and_b32 s{scb}, s{st1}, 7')
    k.e(f's_lshr_b32 s{stq}, s{sw}, 1')
    k.e(f's_and_b32 s{scq}, s{sw}, 1')
    vl16 = k.v()
    vow = [k.v() for _ in range(4)]
    k.e(f'v_lshlrev_b32 v{vl16}, 4, v{l}')
    k.e(f'v_bfe_u32 v{tmp}, v{l}, 4, 1')
    k.e(f'v_lshlrev_b32 v{tmp}, 2, v{tmp}')
    k.e(f'v_and_b32 v{tmp+1}, 7, v{l}')
    k.e(f'v_xor_b32 v{tmp}, v{tmp}, v{tmp+1}')
    k.e(f'v_lshlrev_b32 v{tmp}, 4, v{tmp}')
    k.e(f'v_lshrrev_b32 v{tmp+2}, 3, v{l}')
    k.e(f'v_lshl_add_u32 v{vow[0]}, v{tmp+2}, 10, v{tmp}')
    for i in range(1, 4):
        k.e(f'v_add_u32 v{vow[i]}, {i*(8192-1024)}, v{vow[0]}')
    k.e(f's_mul_i32 s{sxo}, s{stq}, {NFB*1024}')
    k.e(f's_lshl_b32 s{st0}, s{scq}, 12')
    k.e(f's_add_u32 s{sxo}, s{sxo}, s{st0}')
    k.e(f's_lshl_b32 s{smx}, s{sw}, 12')
    k.e(f's_lshl_b32 s{swo}, s{sw}, 15')
    k.e(f's_lshl_b32 s{st0}, s{scb}, 7')
    k.e(f's_add_u32 s{swo}, s{swo}, s{st0}')
    k.e(f's_add_u32 s{smw}, s{smx}, 16384')
    if mode == 3:
        vox = [k.v(), k.v()]
        k.e(f'v_lshrrev_b32 v{tmp}, 4, v{l}')
        k.e(f'v_xor_b32 v{tmp}, v{tmp}, v{tmp+1}')
        k.e(f'v_lshlrev_b32 v{tmp}, 4, v{tmp}')
        k.e(f'v_lshl_add_u32 v{vox[0]}, v{tmp+2}, 10, v{tmp}')
        k.e(f'v_xor_b32 v{vox[1]}, 64, v{vox[0]}')
        k.e(f'v_add_u32 v{vox[1]}, {8192-1024}, v{vox[1]}')
    k.e(f's_mul_i32 s{st0}, s{srb}, {2*NFB*1024}')
    k.e(f's_add_u32 s{st0}, s{st0}, {XBASE}')
    k.e('s_waitcnt lgkmcnt(0)')
    k.stamp('karg')
    srd(k, SX, sWS, sWS+1, 2*NFB*1024, f's{st0}')
    srd(k, SW, sWp, sWp+1, NKS*16*1024)
    sdx, sdw = k.s(), k.s()
    def dma_piece(c, j):
        sb = (c % NSLOT) * SLOT
        if j == 0:
            k.e(f's_add_u32 m0, s{smx}, {sb}')
            k.e(f's_add_u32 s{sdx}, s{sxo}, {c*8192}')
        if j == 4:
            k.e(f's_add_u32 m0, s{smw}, {sb}')
            k.e(f's_add_u32 s{sdw}, s{swo}, {c*131072}')
        if j < 4:
            k.e(f'buffer_load_dwordx4 v{vl16}, {sr(SX,4)}, s{sdx} offen offset:{j*1024} lds')
        else:
            k.e(f'buffer_load_dwordx4 v{vow[j-4]}, {sr(SW,4)}, s{sdw} offen offset:{(j-4)*1024} lds')
    nvm = [0]
    done_at = {}
    def dma_chunk(c):
        for j in range(8):
            dma_piece(c, j)
        nvm[0] += 8; done_at[c] = nvm[0]
    dma_chunk(0)
    RES = k.v(8, 4)
    vr_ = k.v()
    if mode == 3:
        k.e(f's_lshl_b32 s{st0}, s{srb}, 16')
        srd(k, SR, sR, sR+1, 65536, f's{st0}')
        k.e(f's_lshl_b32 s{st0}, s{sw}, 11')
        k.e(f's_add_u32 m0, s{st0}, {RESB}')
        k.e(f's_lshl_b32 s{st0}, s{sw}, 14')
        k.e(f's_lshl_b32 s{st1}, s{scb}, 7')
        k.e(f's_add_u32 s{st0}, s{st0}, s{st1}')
        k.e(f'buffer_load_dwordx4 v{vox[0]}, {sr(SR,4)}, s{st0} offen lds')
        k.e(f'buffer_load_dwordx4 v{vox[1]}, {sr(SR,4)}, s{st0} offen offset:1024 lds')
        nvm[0] += 2
        srd(k, SO, sWS, sWS+1, 2*MB, HF)
        srd(k, SS, sWS, sWS+1, 256*1024, ST)
    else:
        srd(k, SR, sWS, sWS+1, 2*MB, HF)
        k.e(f's_lshl_b32 s{st0}, s{srb}, 1')
        k.e(f's_add_u32 s{st0}, s{st0}, s{stq}')
        k.e(f's_lshl_b32 s{st0}, s{st0}, 15')
        k.e(f's_lshl_b32 s{st1}, s{scb}, 12')
        k.e(f's_add_u32 s{st0}, s{st0}, s{st1}')
        k.e(f's_lshl_b32 s{st1}, s{scq}, 11')
        k.e(f's_add_u32 s{st0}, s{st0}, s{st1}')
        k.e(f'buffer_load_dwordx4 {vr(RES,4)}, v{vl16}, {sr(SR,4)}, s{st0} offen')
        k.e(f'buffer_load_dwordx4 {vr(RES+4,4)}, v{vl16}, {sr(SR,4)}, s{st0} offen offset:1024')
        nvm[0] += 2
        k.e(f's_lshl_b32 s{st0}, s{srb}, 16')
        srd(k, SO, sR, sR+1, 65536, f's{st0}')
    for c in range(1, NUP):
        dma_chunk(c)
    k.stamp('issued')
    NB = (NSLOT + 1) // 2
    axb = [k.v() for _ in range(NB)]
    awb = [k.v() for _ in range(NB)]
    k.e(f's_lshl_b32 s{st0}, s{stq}, 13')
    k.e(f'v_add_u32 v{axb[0]}, s{st0}, v{vl16}')
    k.e(f'v_bfe_u32 v{tmp}, v{l}, 2, 2')
    k.e(f'v_lshl_add_u32 v{tmp+1}, v{h}, 2, v{tmp}')
    k.e(f'v_lshlrev_b32 v{tmp+1}, 7, v{tmp+1}')
    k.e(f'v_lshrrev_b32 v{tmp}, 1, v{tmp}')
    k.e(f'v_xor_b32 v{tmp}, s{scq}, v{tmp}')
    k.e(f'v_lshl_add_u32 v{tmp+1}, v{tmp}, 6, v{tmp+1}')
    k.e(f'v_bfe_u32 v{tmp}, v{l}, 4, 1')
    k.e(f'v_lshl_add_u32 v{tmp+1}, v{tmp}, 5, v{tmp+1}')
    k.e(f'v_and_b32 v{tmp}, 3, v{l}')
    k.e(f'v_lshl_add_u32 v{tmp+1}, v{tmp}, 3, v{tmp+1}')
    k.e(f'v_add_u32 v{awb[0]}, 16384, v{tmp+1}')
    for s in range(1, NB):
        k.e(f'v_add_u32 v{axb[s]}, {2*SLOT*s}, v{axb[0]}')
        k.e(f'v_add_u32 v{awb[s]}, {2*SLOT*s}, v{awb[0]}')
    if mode == 3:
        axr = [k.v() for _ in range(4)]
        k.e(f'v_bfe_u32 v{tmp}, v{t}, 1, 3')
        k.e(f's_lshl_b32 s{st0}, s{scq}, 2')
        k.e(f'v_xor_b32 v{tmp}, s{st0}, v{tmp}')
        k.e(f'v_lshlrev_b32 v{tmp+1}, 7, v{t}')
        k.e(f'v_lshl_add_u32 v{tmp+1}, v{h}, 3, v{tmp+1}')
        k.e(f's_lshl_b32 s{st0}, s{stq}, 12')
        k.e(f's_add_u32 s{st0}, s{st0}, {RESB}')
        k.e(f'v_add_u32 v{tmp+1}, s{st0}, v{tmp+1}')
        for g in range(4):
            k.e(f'v_xor_b32 v{tmp+2}, {g}, v{tmp}')
            k.e(f'v_lshl_add_u32 v{axr[g]}, v{tmp+2}, 4, v{tmp+1}')
    DEPTH = 4
    XF = [k.v(4) for _ in range(DEPTH)]
    WF = [k.v(4) for _ in range(DEPTH)]
    ACC = k.v(16)
    def reads(n):
        c, i = n // 8, n % 8
        slot = c % NSLOT
        s, rel = slot // 2, (slot % 2) * SLOT
        p = n % DEPTH
        k.e(f'ds_read_b128 {vr(XF[p],4)}, v{axb[s]} offset:{rel + i*1024}')
        for w2 in range(2):
            k.e(f'ds_read_b64_tr_b16 {vr(WF[p]+2*w2,2)}, v{awb[s]} offset:{rel + i*2048 + w2*1024}')
    def sync(c):
        k.e(f's_waitcnt vmcnt({nvm[0] - done_at[c]}) lgkmcnt(0)')
        k.e('s_barrier')
    LA = 2
    nxt = [NUP]
    sync(0)
    k.stamp('c0')
    reads(0); reads(1)
    for n in range(NKS):
        c, i = n // 8, n % 8
        can = nxt[0] < NCH and nxt[0] <= c + NSLOT - 1
        if n + LA < NKS:
            if (n + LA) % 8 == 0:
                sync(c + 1)
                if c + 1 in (1, 2, 3, 7, 11): k.stamp(f'c{c+1}')
                reads(n + LA)
            else:
                reads(n + LA)
                if (n + LA) % 8 != 1:
                    k.e(f's_waitcnt lgkmcnt({3*LA})')
        else:
            k.e(f's_waitcnt lgkmcnt({3*(NKS-1-n)})')
        Cop = '0' if n == 0 else vr(ACC, 16)
        p = n % DEPTH
        k.e(f'v_mfma_f32_32x32x16_bf16 {vr(ACC,16)}, {vr(WF[p],4)}, {vr(XF[p],4)}, {Cop}')
        if can:
            dma_piece(nxt[0], i); nvm[0] += 1
            if i == 7:
                done_at[nxt[0]] = nvm[0]; nxt[0] += 1
        if mode == 3 and n == NKS - 4:
            for g in range(4):
                k.e(f'ds_read_b64 {vr(RES+2*g,2)}, v{axr[g]}')
    k.stamp('loopend')
    U = k.v(16)
    if mode == 3:
        k.e('s_waitcnt lgkmcnt(0)')
    for d in range(8):
        k.e(f'v_lshlrev_b32 v{U+2*d}, 16, v{RES+d}')
        k.e(f'v_and_b32 v{U+2*d+1}, 0xffff0000, v{RES+d}')
    OUT = k.v(8, 4)
    if mode == 3:
        k.e(f's_lshl_b32 s{st0}, s{srb}, 1')
        k.e(f's_add_u32 s{st0}, s{st0}, s{stq}')
        k.e(f's_lshl_b32 s{st2}, s{st0}, 12')
        k.e(f's_lshl_b32 s{st0}, s{st0}, 15')
        k.e(f's_lshl_b32 s{st1}, s{scb}, 12')
        k.e(f's_add_u32 s{st0}, s{st0}, s{st1}')
        k.e(f's_lshl_b32 s{st1}, s{scq}, 11')
        k.e(f's_add_u32 s{st0}, s{st0}, s{st1}')
    else:
        k.e(f'v_lshlrev_b32 v{vr_}, 10, v{t}')
        k.e(f'v_lshl_add_u32 v{vr_}, v{h}, 4, v{vr_}')
        k.e(f's_lshl_b32 s{st0}, s{stq}, 15')
        k.e(f's_lshl_b32 s{st1}, s{scb}, 7')
        k.e(f's_add_u32 s{st0}, s{st0}, s{st1}')
        k.e(f's_lshl_b32 s{st1}, s{scq}, 6')
        k.e(f's_add_u32 s{st0}, s{st0}, s{st1}')
    for r_ in range(0, 16, 2):
        k.e(f'v_pk_add_f32 {vr(U+r_,2)}, {vr(U+r_,2)}, {vr(ACC+r_,2)}')
    for q in range(8):
        k.e(f'v_cvt_pk_bf16_f32 v{OUT+q}, v{U+2*q}, v{U+2*q+1}')
    if mode == 3:
        k.e(f'buffer_store_dwordx4 {vr(OUT,4)}, v{vl16}, {sr(SO,4)}, s{st0} offen')
        k.e(f'buffer_store_dwordx4 {vr(OUT+4,4)}, v{vl16}, {sr(SO,4)}, s{st0} offen offset:1024')
        SQ = ACC
        k.e(f'v_pk_mul_f32 {vr(SQ,2)}, {vr(U,2)}, {vr(U,2)}')
        for r_ in range(2, 16, 2):
            k.e(f'v_pk_fma_f32 {vr(SQ,2)}, {vr(U+r_,2)}, {vr(U+r_,2)}, {vr(SQ,2)}')
        for r_ in range(2, 16, 2):
            k.e(f'v_pk_add_f32 {vr(U,2)}, {vr(U,2)}, {vr(U+r_,2)}')
        k.e(f'v_add_f32 v{SQ+2}, v{U}, v{U+1}')
        k.e(f'v_add_f32 v{SQ+3}, v{SQ}, v{SQ+1}')
        k.e(f'v_mov_b32 v{SQ+4}, v{SQ+2}')
        k.e(f'v_mov_b32 v{SQ+5}, v{SQ+3}')
        k.e(f's_lshl_b32 s{st1}, s{scb}, 9')
        k.e(f's_add_u32 s{st2}, s{st2}, s{st1}')
        k.e(f'v_permlane32_swap_b32 v{SQ+2}, v{SQ+4}')
        k.e(f'v_permlane32_swap_b32 v{SQ+3}, v{SQ+5}')
        k.e(f's_lshl_b32 s{st1}, s{scq}, 8')
        k.e(f's_add_u32 s{st2}, s{st2}, s{st1}')
        k.e(f'v_lshlrev_b32 v{tmp}, 3, v{t}')
        k.e(f'v_pk_add_f32 {vr(SQ+2,2)}, {vr(SQ+2,2)}, {vr(SQ+4,2)}')
        k.e(f'buffer_store_dwordx2 {vr(SQ+2,2)}, v{tmp}, {sr(SS,4)}, s{st2} offen')
    else:
        k.e('s_nop 1')
        for pz in range(2):
            k.e(f'v_permlane32_swap_b32 v{OUT+4*pz}, v{OUT+4*pz+2}')
            k.e(f'v_permlane32_swap_b32 v{OUT+4*pz+1}, v{OUT+4*pz+3}')
        k.e(f'buffer_store_dwordx4 {vr(OUT,4)}, v{vr_}, {sr(SO,4)}, s{st0} offen')
        k.e(f'buffer_store_dwordx4 {vr(OUT+4,4)}, v{vr_}, {sr(SO,4)}, s{st0} offen offset:32')
    k.stamp('stored')
    k.label('end')
    k.e('s_endpgm')
    return k, (256, 256, LDS)
```

```python
from fw import *
from k1 import *

def gen_k4(name='ffn1_kernel', prefetch=True, NUP=3, PPK=3):
    k = Kern(name)
    EX = 131072
    LDS = EX + 1024
    sWS = k.s(2); sWp = k.s(4)
    SH, SW, SO, SP = k.s(4), k.s(4), k.s(4), k.s(4)
    sw, srb, scb, st0, st1, st2, swo, smw, stb, sidx, sdw, sdh = [k.s() for _ in range(12)]
    k.e('s_cmp_ge_u32 s2, 224')
    k.e(f's_cbranch_scc1 {k.lab("end")}')
    k.e(f's_load_dwordx2 {sr(sWS,2)}, s[0:1], 64')
    k.e(f's_load_dwordx4 {sr(sWp,4)}, s[0:1], 32')
    R = lane_regs(k)
    l, t, h = R['l'], R['t'], R['h']
    tmp = k.v(4)
    k.e(f'v_lshrrev_b32 v{tmp}, 6, v0')
    k.e(f's_and_b32 s{st0}, s2, 7')
    k.e(f'v_readfirstlane_b32 s{sw}, v{tmp}')
    k.e(f's_lshr_b32 s{sidx}, s2, 3')
    k.e(f's_cmp_ge_u32 s{sidx}, 14')
    k.e(f's_cselect_b32 s{st1}, 1, 0')
    k.e(f's_lshl_b32 s{srb}, s{st0}, 1')
    k.e(f's_add_u32 s{srb}, s{srb}, s{st1}')
    k.e(f's_mul_i32 s{st1}, s{st1}, 14')
    k.e(f's_sub_u32 s{scb}, s{sidx}, s{st1}')
    k.e(f's_lshl_b32 s{stb}, s{srb}, 2')
    k.e(f's_add_u32 s{stb}, s{stb}, s{sw}')
    vl16 = k.v()
    vow = [k.v() for _ in range(4)]
    k.e(f'v_lshlrev_b32 v{vl16}, 4, v{l}')
    k.e(f'v_lshrrev_b32 v{tmp}, 4, v{l}')
    k.e(f'v_lshlrev_b32 v{tmp+1}, 2, v{tmp}')
    k.e(f'v_and_b32 v{tmp+2}, 15, v{l}')
    k.e(f'v_xor_b32 v{tmp+1}, v{tmp+1}, v{tmp+2}')
    k.e(f'v_lshlrev_b32 v{tmp+1}, 4, v{tmp+1}')
    k.e(f'v_mul_u32_u24 v{tmp}, 3584, v{tmp}')
    k.e(f'v_add_u32 v{vow[0]}, v{tmp}, v{tmp+1}')
    for i in range(1, 4):
        k.e(f'v_add_u32 v{vow[i]}, {i*(4*3584-1024)}, v{vow[0]}')
    k.e(f's_mul_i32 s{swo}, s{sw}, {16*3584}')
    k.e(f's_lshl_b32 s{st0}, s{scb}, 8')
    k.e(f's_add_u32 s{swo}, s{swo}, s{st0}')
    k.e(f's_lshl_b32 s{smw}, s{sw}, 12')
    k.e(f's_lshl_b32 s{st0}, s{stb}, 15')
    k.e(f's_add_u32 s{st0}, s{st0}, {HF}')
    k.e(f's_lshl_b32 s{st1}, s{stb}, 12')
    k.e(f's_add_u32 s{st1}, s{st1}, {ST}')
    vst = k.v()
    k.e(f'v_lshlrev_b32 v{vst}, 3, v{t}')
    k.e(f'v_lshl_add_u32 v{vst}, v{h}, 11, v{vst}')
    k.e('s_waitcnt lgkmcnt(0)')
    k.stamp('karg')
    srd(k, SH, sWS, sWS+1, 32768, f's{st0}')
    srd(k, SW, sWp, sWp+1, 512*3584)
    srd(k, SP, sWS, sWS+1, 4096, f's{st1}')
    H = k.a(128)
    STP = k.v(16, 2)
    nvm = [0]; done_at = {}
    def piece(c, j):
        if j == 0:
            k.e(f's_add_u32 m0, s{smw}, {c*16384}')
            k.e(f's_add_u32 s{sdw}, s{swo}, {64*c*3584}')
        if j == 4:
            k.e(f's_mov_b32 s{sdh}, {c*4096}')
        if j < 4:
            k.e(f'buffer_load_dwordx4 v{vow[j]}, {sr(SW,4)}, s{sdw} offen offset:{j*1024} lds')
        else:
            k.e(f'buffer_load_dwordx4 {ar(H+16*c+4*(j-4),4)}, v{vl16}, {sr(SH,4)}, s{sdh} offen offset:{(j-4)*1024}')
        nvm[0] += 1
        if j == 7: done_at[c] = nvm[0]
    for c in range(NUP):
        for j in range(8): piece(c, j)
    k.stamp('issued')
    k.e(f's_mul_i32 s{st0}, s{stb}, {112*1024}')
    k.e(f's_add_u32 s{st0}, s{st0}, {FF}')
    srd(k, SO, sWS, sWS+1, 112*1024, f's{st0}')
    aw = [[k.v() for i in range(4)] for s in range(2)]
    k.e(f'v_bfe_u32 v{tmp}, v{l}, 2, 2')
    k.e(f'v_lshl_add_u32 v{tmp+1}, v{h}, 2, v{tmp}')
    k.e(f'v_lshlrev_b32 v{tmp+1}, 8, v{tmp+1}')
    k.e(f'v_bfe_u32 v{tmp+2}, v{l}, 4, 1')
    k.e(f'v_lshl_add_u32 v{tmp+1}, v{tmp+2}, 5, v{tmp+1}')
    k.e(f'v_and_b32 v{tmp+2}, 3, v{l}')
    k.e(f'v_lshl_add_u32 v{tmp+1}, v{tmp+2}, 3, v{tmp+1}')
    for i in range(4):
        k.e(f's_xor_b32 s{st0}, s{sw}, {i}')
        k.e(f'v_xor_b32 v{tmp+2}, s{st0}, v{tmp}')
        k.e(f'v_lshl_add_u32 v{aw[0][i]}, v{tmp+2}, 6, v{tmp+1}')
        k.e(f'v_add_u32 v{aw[1][i]}, 65536, v{aw[0][i]}')
    SEL = selector(k, l, tmp)
    WF = [[k.v(4) for i in range(4)] for p in range(2)]
    ACC = [k.v(16) for i in range(4)]
    CSA = k.v(4)
    def rd(n, i):
        p = n & 1
        for w2 in range(2):
            k.e(f'ds_read_b64_tr_b16 {vr(WF[p][i]+2*w2,2)}, v{aw[n//16][i]} offset:{(n%16)*4096 + w2*2048}')
    def sync(c):
        k.e(f's_waitcnt vmcnt({nvm[0] - done_at[c]})')
        k.e('s_barrier')
    sync(0)
    k.stamp('first')
    for i in range(4): rd(0, i)
    nxt = [NUP, 0]
    def more(nn):
        for _ in range(nn):
            if nxt[0] < 8:
                piece(nxt[0], nxt[1]); nxt[1] += 1
                if nxt[1] == 8: nxt[0] += 1; nxt[1] = 0
    for n in range(32):
        p = n & 1
        k.c(f'kstep {n}')
        if n in (8, 16, 24): k.stamp(f'k{n}')
        X = H + 4*n
        for i in range(4):
            k.e(f's_waitcnt lgkmcnt({6 if n + 1 < 32 else 2*(3-i)})')
            Cop = '0' if n == 0 else vr(ACC[i], 16)
            k.e(f'v_mfma_f32_32x32x16_bf16 {vr(ACC[i],16)}, {vr(WF[p][i],4)}, {ar(X,4)}, {Cop}')
            if i == 0 and (n + 1) % 4 == 0 and n + 1 < 32:
                sync((n + 1) // 4)
            if n + 1 < 32: rd(n + 1, i)
            if i > 0 or PPK == 4: more(1) if (i - 1 < PPK) else None
        Cop = '0' if n == 0 else vr(CSA, 4)
        k.e(f'v_mfma_f32_16x16x32_bf16 {vr(CSA,4)}, {vr(SEL,4)}, {vr(WF[p][0],4)}, {Cop}')
        if n == 20:
            assert nxt[0] == 8
            for q in range(8):
                k.e(f'buffer_load_dwordx2 {vr(STP+2*q,2)}, v{vst}, {sr(SP,4)}, 0 offen offset:{q*256}')
            nvm[0] += 8; done_at['st'] = nvm[0]
            if prefetch:
                srd(k, SP, sWp+2, sWp+3, 1792*1024)
                k.e(f'v_lshlrev_b32 v{tmp}, 7, v0')
                k.e(f's_lshl_b32 s{st0}, s{sidx}, 16')
                k.e(f'buffer_load_dword v{tmp+3}, v{tmp}, {sr(SP,4)}, s{st0} offen')
                k.e(f's_add_u32 s{st0}, s{st0}, 32768')
                k.e(f'buffer_load_dword v{tmp+3}, v{tmp}, {sr(SP,4)}, s{st0} offen')
                nvm[0] += 2
        if n == 29:
            k.e(f's_waitcnt vmcnt({nvm[0] - done_at["st"]})')
            for q in (4, 2, 1):
                for z in range(q):
                    k.e(f'v_add_f32 v{STP+2*z}, v{STP+2*z}, v{STP+2*(z+q)}')
                    k.e(f'v_add_f32 v{STP+2*z+1}, v{STP+2*z+1}, v{STP+2*(z+q)+1}')
        if n == 30:
            mean, rstd = k.v(), k.v()
            ln_stats(k, STP, STP+1, STP+2, mean, rstd)
    k.stamp('loopend')
    k.c('epilogue')
    a0, a2 = k.v(), k.v()
    k.e(f's_lshl_b32 s{st0}, s{sw}, 7')
    k.e(f's_add_u32 s{st0}, s{st0}, {EX}')
    k.e(f'v_lshlrev_b32 v{a0}, 2, v{t}')
    k.e(f'v_add_u32 v{a0}, s{st0}, v{a0}')
    k.e(f'v_lshlrev_b32 v{a2}, 4, v{h}')
    k.e(f'v_add_u32 v{a2}, {EX}, v{a2}')
    nm = STP + 4
    k.e(f'v_sub_f32 v{nm}, 0, v{mean}')
    k.e('s_nop 0')
    k.e(f'ds_write_b32 v{a0}, v{CSA}')
    k.e('s_waitcnt lgkmcnt(0)')
    k.e('s_barrier')
    CS = k.v(64, 4)
    for i in range(4):
        k.e(f's_xor_b32 s{st0}, s{sw}, {i}')
        k.e(f's_lshl_b32 s{st0}, s{st0}, 7')
        k.e(f'v_add_u32 v{a0}, s{st0}, v{a2}')
        for g in range(4):
            k.e(f'ds_read_b128 {vr(CS+16*i+4*g,4)}, v{a0} offset:{g*32}')
    OUT = k.v(32, 4)
    rs2 = STP + 6
    k.e(f'v_mov_b32 v{rs2}, v{rstd}')
    for i in range(4):
        k.e(f's_waitcnt lgkmcnt({4*(3-i)})')
        for r_ in range(0, 16, 2):
            k.e(f'v_pk_fma_f32 {vr(ACC[i]+r_,2)}, {vr(CS+16*i+r_,2)}, {vr(nm,2)}, {vr(ACC[i]+r_,2)} op_sel_hi:[1,0,1]')
        for r_ in range(0, 16, 2):
            k.e(f'v_pk_mul_f32 {vr(ACC[i]+r_,2)}, {vr(ACC[i]+r_,2)}, {vr(rs2,2)} op_sel_hi:[1,0]')
        for q in range(8):
            k.e(f'v_cvt_pk_bf16_f32 v{OUT+8*i+q}, v{ACC[i]+2*q}, v{ACC[i]+2*q+1}')
        for q in range(8):
            k.e(f'v_pk_max_i16 v{OUT+8*i+q}, v{OUT+8*i+q}, 0')
        k.e(f's_xor_b32 s{st0}, s{sw}, {i}')
        k.e(f's_lshl_b32 s{st0}, s{st0}, 11')
        k.e(f's_lshl_b32 s{st1}, s{scb}, 13')
        k.e(f's_add_u32 s{st0}, s{st0}, s{st1}')
        k.e(f'buffer_store_dwordx4 {vr(OUT+8*i,4)}, v{vl16}, {sr(SO,4)}, s{st0} offen')
        k.e(f'buffer_store_dwordx4 {vr(OUT+8*i+4,4)}, v{vl16}, {sr(SO,4)}, s{st0} offen offset:1024')
    k.stamp('stored')
    k.label('end')
    k.e('s_endpgm')
    return k, (224, 256, LDS)
```

```python
from fw import *
from k1 import *

ARCH = 152
XT_O, FA_O, F3_O, F4_O = 0, 1024, 2048, 3072
POLL_LIMIT = 200000

def gen_mega(name='block_kernel', KVPOL='', SIDE0=1, TCH=1, CODE=0, LD=' sc1', PRE=12, W2POS=99, HEADMAP=0, KVFAST=0, SPT=1, HO0=20, W20=12, STEP=1):
    k = Kern(name)
    sWS, sX, sWO, sOUT = k.s(2), k.s(2), k.s(2), k.s(2)
    sW12 = k.s(4)
    SA, SB, SC, SFL = k.s(4), k.s(4), k.s(4), k.s(4)
    sPA, sPB = k.s(2), k.s(2)
    sw, sr4, srole, sg, sm, sfast, st0, st1, st2, sit, sa, sb, sc_, sd = [k.s() for _ in range(14)]
    shead, sqb = 2, 3
    k.dbgreg = f's{sfast}'
    nl = [0]
    def L(p='x'):
        nl[0] += 1
        return f'{p}{nl[0]}'
    k.e('s_cmp_ge_u32 s2, 256')
    k.e(f's_cbranch_scc1 {k.lab("end")}')
    k.e(f's_load_dwordx2 {sr(sWS,2)}, s[0:1], 64')
    k.e(f's_load_dwordx2 {sr(sX,2)}, s[0:1], 0')
    k.e(f's_load_dwordx2 {sr(sWO,2)}, s[0:1], 16')
    k.e(f's_load_dwordx2 {sr(sOUT,2)}, s[0:1], 48')
    k.e(f's_load_dwordx4 {sr(sW12,4)}, s[0:1], 32')
    R = lane_regs(k)
    l, t, h = R['l'], R['t'], R['h']
    vl16 = k.v()
    tmp = k.v(4)
    BASE = k.vn
    k.e(f'v_lshrrev_b32 v{tmp}, 6, v0')
    k.e(f's_and_b32 s{sg}, s2, 7')
    k.e(f'v_readfirstlane_b32 s{sw}, v{tmp}')
    k.e(f's_lshr_b32 s{sm}, s2, 3')
    k.e(f's_getreg_b32 s{sfast}, hwreg(HW_REG_XCC_ID, 0, 4)')
    k.e(f's_lshr_b32 s{srole}, s{sw}, 2')
    k.e(f's_and_b32 s{sr4}, s{sw}, 3')
    k.e(f's_add_u32 s{sfast}, s{sfast}, 1')
    if HEADMAP:
        k.e(f's_and_b32 s{sqb}, s{sm}, 7')
        k.e(f's_lshr_b32 s{st0}, s{sm}, 3')
        k.e(f's_lshl_b32 s{shead}, s{sg}, 2')
        k.e(f's_add_u32 s{shead}, s{shead}, s{st0}')
    else:
        k.e(f's_mov_b32 s{sqb}, s{sg}')
        k.e(f's_mov_b32 s{shead}, s{sm}')
    k.e(f'v_lshlrev_b32 v{vl16}, 4, v{l}')

    def stores(lst, through=False):
        if through:
            for s_ in lst: k.e(s_ + ' sc1')
            return
        a, b = L('st'), L('st')
        k.e(f's_cmp_eq_u32 s{sfast}, 0')
        k.e(f's_cbranch_scc1 {k.lab(a)}')
        for s_ in lst: k.e(s_)
        k.e(f's_branch {k.lab(b)}')
        k.label(a)
        for s_ in lst: k.e(s_ + ' sc1')
        k.label(b)
    def flag(soff, nyounger=0, D=None, through=False):
        D = SFL if D is None else D
        k.e(f'v_mov_b32 v{tmp}, 0')
        k.e(f'v_mov_b32 v{tmp+1}, 1')
        k.e(f's_waitcnt vmcnt({nyounger})')
        k.e('s_mov_b64 exec, 1')
        stores([f'buffer_store_dword v{tmp+1}, v{tmp}, {sr(D,4)}, s{soff} offen'], through)
        k.e('s_mov_b64 exec, -1')
    def poll(soff, mask_lo, mask_hi):
        a, b = L('pl'), L('pl')
        k.e(f'v_lshlrev_b32 v{tmp}, 2, v{l}')
        k.e(f's_mov_b32 exec_lo, {mask_lo}')
        k.e(f's_mov_b32 exec_hi, {mask_hi}')
        k.e(f's_mov_b32 s{sit}, 0')
        k.label(a)
        k.e(f'buffer_load_dword v{tmp+1}, v{tmp}, {sr(SFL,4)}, s{soff} offen sc1')
        k.e(f's_add_u32 s{sit}, s{sit}, 1')
        k.e('s_waitcnt vmcnt(0)')
        k.e(f'v_cmp_eq_u32 vcc, 0, v{tmp+1}')
        k.e(f's_cmp_ge_u32 s{sit}, {POLL_LIMIT}')
        k.e(f's_cbranch_vccz {k.lab(b)}')
        k.e(f's_cbranch_scc0 {k.lab(a)}')
        k.label(b)
        k.e('s_mov_b64 exec, -1')

    KB, VB, ONES = 0, 65536, 131072
    UN = 4
    EXA = ONES + UN*1024
    XRES = 155648
    stb, sla, sga = sa, sb, sc_
    k.e(f's_lshl_b32 s{stb}, s{sqb}, 3')
    k.e(f's_lshl_b32 s{st1}, s{sr4}, 1')
    k.e(f's_add_u32 s{stb}, s{stb}, s{st1}')
    k.e(f's_add_u32 s{stb}, s{stb}, s{srole}')
    Q = [k.v(4), k.v(4)]
    vk, vv, vinc, vxt, dummy = k.v(), k.v(), k.v(), k.v(), k.v()
    S = [k.v(16), k.v(16)]
    NM = [k.v(16), k.v(16)]
    O = [k.v(16), k.v(16)]
    P = [k.v(8), k.v(8)]
    KFr = k.v(4); V0 = k.v(4); V1 = k.v(4)
    ON = S[0]
    k.e(f'v_and_b32 v{tmp}, 11, v0')
    k.e(f'v_cmp_eq_u32 vcc, 0, v{tmp}')
    k.e(f'v_mov_b32 v{tmp+1}, 0x3f803f80')
    k.e(f'v_lshlrev_b32 v{tmp}, 4, v0')
    k.e(f'v_cndmask_b32 v{ON}, 0, v{tmp+1}, vcc')
    k.e(f'v_and_b32 v{tmp}, {UN*1024-1}, v{tmp}')
    for d in range(1, 4):
        k.e(f'v_mov_b32 v{ON+d}, v{ON}')
    k.e(f'v_add_u32 v{tmp}, {ONES}, v{tmp}')
    k.e(f'ds_write_b128 v{tmp}, {vr(ON,4)}')
    k.e(f's_lshl_b32 s{st0}, s{shead}, 16')
    k.e(f's_and_b32 s{st1}, s{sw}, 1')
    k.e(f's_lshl_b32 s{sla}, s{st1}, 16')
    k.e(f's_lshl_b32 s{sga}, s{st1}, 21')
    k.e(f's_bfe_u32 s{st1}, s{sw}, 0x10001')
    k.e(f's_lshl_b32 s{st1}, s{st1}, 15')
    k.e(f's_lshl_b32 s{st2}, s{srole}, 10')
    k.e(f's_add_u32 s{st1}, s{st1}, s{st2}')
    k.e(f's_add_u32 s{sla}, s{sla}, s{st1}')
    k.e(f's_add_u32 s{sga}, s{sga}, s{st1}')
    k.e(f's_add_u32 s{sga}, s{sga}, s{st0}')
    k.e(f's_add_u32 s{sga}, s{sga}, {KF}')
    k.e(f's_lshl_b32 s{st1}, s{stb}, 10')
    k.e(f's_add_u32 s{st1}, s{st1}, s{st0}')
    k.e(f's_xor_b32 s{st2}, s{st1}, 1024')
    k.e(f's_lshl_b32 s{sit}, s{sg}, 12')
    k.e(f's_add_u32 s{sit}, s{sit}, {FL}')
    k.e('s_waitcnt lgkmcnt(0)')
    k.stamp('karg')
    srd(k, SA, sWS, sWS+1, 6*MB)
    nvm = [0]; done = {}
    def vm(txt, tag=None):
        k.e(txt); nvm[0] += 1
        if tag is not None: done[tag] = nvm[0]
    def kv_round(r):
        k.e(f's_add_u32 m0, s{sla}, {r*2048}')
        k.e(f's_add_u32 s{st0}, s{sga}, {r*2048}')
        vm(f'buffer_load_dwordx4 v{vl16}, {sr(SA,4)}, s{st0} offen{KVPOL} lds', ('kv', r))
    vm(f'buffer_load_dwordx4 {vr(Q[0],4)}, v{vl16}, {sr(SA,4)}, s{st1} offen')
    vm(f'buffer_load_dwordx4 {vr(Q[1],4)}, v{vl16}, {sr(SA,4)}, s{st2} offen')
    for r in range(4): kv_round(r)
    srd(k, SFL, sWS, sWS+1, 4096, f's{sit}')
    HK = k.a(8); AWO = k.a(32); AW1 = k.a(64)
    swoA, sw1A = sPA, sPA+1
    srd(k, SB, sWO, sWO+1, 512*1024)
    srd(k, SC, sW12, sW12+1, 512*3584)
    k.e(f's_lshl_b32 s{swoA}, s{sr4}, 15')
    k.e(f's_lshl_b32 s{st0}, s{srole}, 18')
    k.e(f's_add_u32 s{swoA}, s{swoA}, s{st0}')
    k.e(f's_and_b32 s{st0}, s{sm}, 7')
    k.e(f's_lshl_b32 s{st0}, s{st0}, 7')
    k.e(f's_add_u32 s{swoA}, s{swoA}, s{st0}')
    k.e(f's_cmp_ge_u32 s{sm}, 14')
    k.e(f's_cselect_b32 s{st1}, 14, 0')
    k.e(f's_sub_u32 s{st1}, s{sm}, s{st1}')
    k.e(f's_lshl_b32 s{sw1A}, s{st1}, 8')
    k.e(f's_mul_i32 s{st1}, s{sr4}, {16*3584}')
    k.e(f's_add_u32 s{sw1A}, s{sw1A}, s{st1}')
    k.e(f's_mul_i32 s{st1}, s{srole}, {256*3584}')
    k.e(f's_add_u32 s{sw1A}, s{sw1A}, s{st1}')
    k.e(f's_mul_i32 s{st0}, s{sm}, 57344')
    k.e(f's_min_u32 s{st1}, s{sw}, 6')
    k.e(f's_lshl_b32 s{st1}, s{st1}, 13')
    k.e(f's_add_u32 s{st0}, s{st0}, s{st1}')
    k.e(f's_add_u32 s{sPB}, s{sW12+2}, s{st0}')
    k.e(f's_addc_u32 s{sPB+1}, s{sW12+3}, 0')
    k.e(f's_lshl_b32 s{st0}, s{srole}, 15')
    k.e(f'v_add_u32 v{vk}, s{st0}, v{vl16}')
    k.e(f'v_and_b32 v{tmp}, 15, v{l}')
    k.e(f'v_lshlrev_b32 v{tmp}, 4, v{tmp}')
    k.e(f'v_lshl_add_u32 v{tmp}, v{h}, 8, v{tmp}')
    k.e(f'v_bfe_u32 v{tmp+1}, v{l}, 4, 1')
    k.e(f'v_xor_b32 v{tmp+2}, 1, v{tmp+1}')
    k.e(f'v_lshlrev_b32 v{vinc}, 12, v{tmp+2}')
    k.e(f'v_mul_u32_u24 v{tmp+2}, s{st0}, v{tmp+2}')
    k.e(f'v_lshl_add_u32 v{vv}, v{tmp+1}, 16, v{tmp}')
    k.e(f'v_add_u32 v{vv}, v{vv}, v{tmp+2}')
    k.e(f'v_add_u32 v{vv}, {VB}, v{vv}')
    for s_ in range(2):
        for r_ in range(16):
            k.e(f'v_mov_b32 v{O[s_]+r_}, 0')
        for d in range(4):
            k.e(f'v_mov_b32 v{P[s_]+4+d}, 0')
    def kvsync(r):
        k.e(f's_waitcnt vmcnt({nvm[0] - done[("kv", r)]})')
        k.e('s_barrier')
    kvsync(0)
    k.stamp('first')
    k.e(f'ds_read_b128 {vr(V0,4)}, v{vl16}')
    k.e(f'ds_read_b128 {vr(KFr,4)}, v{vk}')
    k.e(f'ds_read_b128 {vr(V1,4)}, v{vv} offset:512')
    k.e('s_waitcnt lgkmcnt(2)')
    k.e(f'v_mfma_f32_32x32x16_bf16 {vr(S[0],16)}, {vr(V0,4)}, {vr(Q[0],4)}, 0')
    k.e(f'v_mfma_f32_32x32x16_bf16 {vr(S[1],16)}, {vr(V0,4)}, {vr(Q[1],4)}, 0')
    k.e(f'ds_read_b128 {vr(V0,4)}, v{vv}')
    k.e('s_nop 9')
    def rowmax16(src, dst):
        k.e(f'v_max3_f32 v{dst}, v{src}, v{src+1}, v{src+2}')
        for q in range(3, 15, 2):
            k.e(f'v_max3_f32 v{dst}, v{dst}, v{src+q}, v{src+q+1}')
        k.e(f'v_max_f32 v{dst}, v{dst}, v{src+15}')
    def set_negm(m, nm):
        k.e(f'v_mov_b32 v{m+1}, v{m}')
        k.e('s_nop 1')
        k.e(f'v_permlane32_swap_b32 v{m}, v{m+1}')
        k.e('s_nop 1')
        k.e(f'v_max_f32 v{m}, v{m}, v{m+1}')
        for r_ in range(16):
            k.e(f'v_sub_f32 v{nm+r_}, 0, v{m}')
    rowmax16(S[0], tmp)
    set_negm(tmp, NM[0])
    rowmax16(S[1], tmp+2)
    k.e('s_waitcnt lgkmcnt(0)')
    k.e(f'v_mfma_f32_32x32x16_bf16 {vr(S[0],16)}, {vr(KFr,4)}, {vr(Q[0],4)}, {vr(NM[0],16)}')
    set_negm(tmp+2, NM[1])
    gwo, gw1, gx = tmp+2, tmp+3, tmp+1
    k.e(f'v_bfe_u32 v{tmp}, v{l}, 4, 1')
    k.e(f'v_lshlrev_b32 v{tmp}, 2, v{tmp}')
    k.e(f'v_and_b32 v{gx}, 7, v{l}')
    k.e(f'v_xor_b32 v{tmp}, v{tmp}, v{gx}')
    k.e(f'v_lshlrev_b32 v{tmp}, 4, v{tmp}')
    k.e(f'v_lshrrev_b32 v{vxt}, 3, v{l}')
    k.e(f'v_lshl_add_u32 v{gwo}, v{vxt}, 10, v{tmp}')
    k.e(f'v_lshrrev_b32 v{tmp}, 4, v{l}')
    k.e(f'v_xor_b32 v{gx}, v{gx}, v{tmp}')
    k.e(f's_and_b32 s{st0}, s{sw}, 1')
    k.e(f's_lshl_b32 s{st0}, s{st0}, 2')
    k.e(f'v_xor_b32 v{gx}, s{st0}, v{gx}')
    k.e(f'v_lshlrev_b32 v{gx}, 4, v{gx}')
    k.e(f'v_lshl_add_u32 v{gx}, v{vxt}, 10, v{gx}')
    k.e(f'v_lshlrev_b32 v{gw1}, 2, v{tmp}')
    k.e(f'v_and_b32 v{vxt}, 15, v{l}')
    k.e(f'v_xor_b32 v{gw1}, v{gw1}, v{vxt}')
    k.e(f'v_lshlrev_b32 v{gw1}, 4, v{gw1}')
    k.e(f'v_mul_u32_u24 v{tmp}, 3584, v{tmp}')
    k.e(f'v_add_u32 v{gw1}, v{gw1}, v{tmp}')
    k.stamp('loop')
    def MQK(s_): k.e(f'v_mfma_f32_32x32x16_bf16 {vr(S[s_],16)}, {vr(KFr,4)}, {vr(Q[s_],4)}, {vr(NM[s_],16)}')
    def MP(s_, u): k.e(f'v_mfma_f32_32x32x16_bf16 {vr(O[s_],16)}, {vr(V1 if u else V0,4)}, {vr(P[s_]+4*u,4)}, {vr(O[s_],16)}')
    def E(s_, a_, b_):
        for r_ in range(a_, b_): k.e(f'v_exp_f32 v{S[s_]+r_}, v{S[s_]+r_}')
    def C(s_, a_, b_):
        for q in range(a_, b_): k.e(f'v_cvt_pk_bf16_f32 v{P[s_]+q}, v{S[s_]+2*q}, v{S[s_]+2*q+1}')
    side = []
    for q in range(8):
        side.append(lambda q=q: (k.e(f's_add_u32 s{st0}, s{swoA}, {(q//4)*131072 + (q%4)*8192}'),
                                 vm(f'buffer_load_dwordx4 {ar(AWO+4*q,4)}, v{gwo}, {sr(SB,4)}, s{st0} offen')))
    for q in range(16):
        side.append(lambda q=q: (k.e(f's_add_u32 s{st0}, s{sw1A}, {((q//4)*64 + (q%4)*4)*3584}'),
                                 vm(f'buffer_load_dwordx4 {ar(AW1+4*q,4)}, v{gw1}, {sr(SC,4)}, s{st0} offen')))
    def xres_copy():
        k.e(f's_lshr_b32 s{st0}, s{sm}, 3')
        k.e(f's_lshl_b32 s{st1}, s{sg}, 2')
        k.e(f's_add_u32 s{st0}, s{st0}, s{st1}')
        k.e(f's_lshl_b32 s{st0}, s{st0}, 16')
        srd(k, SB, sX, sX+1, 65536, f's{st0}')
        k.e(f's_lshl_b32 s{st0}, s{sw}, 10')
        k.e(f's_add_u32 m0, s{st0}, {XRES}')
        k.e(f's_lshl_b32 s{st0}, s{sw}, 13')
        k.e(f's_and_b32 s{st1}, s{sm}, 7')
        k.e(f's_lshl_b32 s{st1}, s{st1}, 7')
        k.e(f's_add_u32 s{st0}, s{st0}, s{st1}')
        vm(f'buffer_load_dwordx4 v{gx}, {sr(SB,4)}, s{st0} offen lds')
        srd(k, SB, sWS, sWS+1, 2*MB, OF)
    side.append(xres_copy)
    def w2_touch():
        k.e(f'v_lshlrev_b32 v{tmp}, 7, v{l}')
        vm(f'global_load_dword v{dummy}, v{tmp}, {sr(sPB,2)}')
    def ho_touch():
        sbs, ssh, ssr, smk = st0, st1, st2, sit
        k.e(f's_lshr_b32 s{sd}, s{sm}, 3')
        k.e(f's_lshl_b32 s{ssh}, s{sg}, 2')
        k.e(f's_add_u32 s{sd}, s{sd}, s{ssh}')
        k.e(f's_and_b32 s{smk}, s{sm}, 7')
        k.e(f's_lshl_b32 s{sbs}, s{sd}, 13')
        k.e(f's_lshl_b32 s{ssh}, s{smk}, 9')
        k.e(f's_add_u32 s{sbs}, s{sbs}, s{ssh}')
        k.e(f's_add_u32 s{sbs}, s{sbs}, {ST}')
        k.e(f's_lshl_b32 s{sd}, s{sd}, 16')
        k.e(f's_lshl_b32 s{smk}, s{smk}, 12')
        k.e(f's_add_u32 s{sd}, s{sd}, s{smk}')
        k.e(f's_add_u32 s{sd}, s{sd}, {HF}')
        k.e(f's_cmp_eq_u32 s{sw}, 4')
        k.e(f's_cselect_b32 s{sbs}, s{sd}, s{sbs}')
        k.e(f's_cselect_b32 s{smk}, 31, 3')
        k.e(f's_cselect_b32 s{ssr}, 15, 12')
        k.e(f's_mov_b32 s{ssh}, 5')
        k.e(f's_lshl_b32 s{sd}, s{sg}, 8')
        k.e(f's_add_u32 s{sd}, s{sd}, s{sm}')
        k.e(f's_lshl_b32 s{sd}, s{sd}, 10')
        k.e(f's_add_u32 s{sd}, s{sd}, {OF}')
        k.e(f's_cmp_eq_u32 s{sw}, {15 if HEADMAP else 5}')
        k.e(f's_cselect_b32 s{sbs}, s{sd}, s{sbs}')
        k.e(f's_cselect_b32 s{smk}, 7, s{smk}')
        k.e(f's_cselect_b32 s{ssr}, 15, s{ssr}')
        k.e(f's_cselect_b32 s{ssh}, 3, s{ssh}')
        k.e(f'v_lshrrev_b32 v{tmp}, s{ssh}, v{l}')
        k.e(f'v_lshlrev_b32 v{tmp}, s{ssr}, v{tmp}')
        k.e(f's_cmp_ge_u32 s{sm}, 14')
        k.e(f's_cselect_b32 s{ssh}, 4, 0')
        k.e(f's_cselect_b32 s{ssr}, 14, 0')
        k.e(f's_lshl_b32 s{sd}, s{sg}, 3')
        k.e(f's_add_u32 s{sd}, s{sd}, s{ssh}')
        k.e(f's_add_u32 s{sd}, s{sd}, s{sr4}')
        k.e(f's_mul_i32 s{sd}, s{sd}, {112*1024}')
        k.e(f's_sub_u32 s{ssr}, s{sm}, s{ssr}')
        k.e(f's_min_u32 s{ssr}, s{ssr}, 13')
        k.e(f's_lshl_b32 s{ssr}, s{ssr}, 13')
        k.e(f's_add_u32 s{sd}, s{sd}, s{ssr}')
        k.e(f's_add_u32 s{sd}, s{sd}, {FF}')
        k.e(f's_cmp_eq_u32 s{srole}, 0')
        k.e(f's_cselect_b32 s{sbs}, s{sd}, s{sbs}')
        k.e(f's_cselect_b32 s{smk}, 63, s{smk}')
        k.e(f's_cselect_b32 s{ssr}, 0, -1')
        k.e(f'v_and_b32 v{tmp}, s{ssr}, v{tmp}')
        k.e(f'v_and_b32 v{vxt}, s{smk}, v{l}')
        k.e(f'v_lshl_add_u32 v{tmp}, v{vxt}, 7, v{tmp}')
        k.e(f'v_add_u32 v{vxt}, s{sbs}, v{tmp}')
        k.e(f'v_lshlrev_b32 v{tmp}, 7, v{l}')
    def staggered(j):
        for j0, txt in ((HO0, f'global_load_dword v{dummy}, v{vxt}, {sr(sWS,2)}'), (W20, f'global_load_dword v{dummy}, v{tmp}, {sr(sPB,2)}')):
            if j0 is not None and j >= j0 and (j - j0) % STEP == 0 and (j - j0) // STEP < 8:
                a_ = L('tc')
                k.e(f's_cmp_lg_u32 s{sw}, {(j - j0) // STEP}')
                k.e(f's_cbranch_scc1 {k.lab(a_)}')
                k.e(txt)
                k.label(a_)
    def code_touch():
        a_ = L('pc')
        k.e(f's_getpc_b64 {sr(sPB,2)}')
        k.label(a_)
        k.e(f's_add_u32 s{sPB}, s{sPB}, {k.lab("fin")}-{k.lab(a_)}')
        k.e(f's_addc_u32 s{sPB+1}, s{sPB+1}, 0')
        k.e(f's_lshl_b32 s{st0}, s{sw}, 13')
        k.e(f's_min_u32 s{st0}, s{st0}, {k.lab("slow")}-{k.lab("fin")}-8192')
        k.e(f'v_lshlrev_b32 v{tmp}, 7, v{l}')
        k.e(f'v_add_u32 v{tmp}, s{st0}, v{tmp}')
        vm(f'global_load_dword v{dummy}, v{tmp}, {sr(sPB,2)}')
    if CODE:
        side.append(code_touch)
    def xt_store():
        a_ = L('xt')
        k.e(f's_cmp_lg_u32 s{sw}, 0')
        k.e(f's_cbranch_scc1 {k.lab(a_)}')
        k.e(f'v_mov_b32 v{tmp}, 0')
        k.e(f'v_mov_b32 v{vxt}, s{sfast}')
        k.e(f's_lshl_b32 s{st0}, s{sm}, 2')
        k.e('s_mov_b64 exec, 1')
        k.e(f'buffer_store_dword v{vxt}, v{tmp}, {sr(SFL,4)}, s{st0} offen sc1')
        k.e('s_mov_b64 exec, -1')
        k.label(a_)
    def xt_load():
        k.e(f'v_lshlrev_b32 v{tmp}, 2, v{t}')
        vm(f'buffer_load_dword v{vxt}, v{tmp}, {sr(SFL,4)}, 0 offen sc1')
    for j in range(32):
        i = j % UN
        k.c(f'key tile {j}')
        if not KVFAST:
            k.e(f's_setprio {(2 - i) & 3}')
        elif j % 8 == 0:
            k.e(f's_setprio {3 - j // 8}')
        MQK(1)
        E(0, 0, 3)
        MP(1, 1)
        k.e(f'ds_read_b128 {vr(V1,4)}, v{vv} offset:{i*1024+512}')
        k.e(f'ds_read_b128 {vr(KFr,4)}, v{vk} offset:{(j+1)*1024}')
        E(0, 3, 8)
        C(0, 0, 4)
        if KVFAST:
            for r in (2*j + 4, 2*j + 5):
                if r < 16: kv_round(r)
        elif j % 2 == 0 and j // 2 + 4 < 16:
            kv_round(j // 2 + 4)
        E(0, 8, 11)
        k.e('s_waitcnt lgkmcnt(2)')
        MP(0, 0)
        E(0, 11, 16)
        C(0, 4, 8)
        k.e('s_waitcnt lgkmcnt(0)')
        E(1, 0, 2)
        MQK(0)
        E(1, 2, 5)
        MP(0, 1)
        E(1, 5, 8)
        C(1, 0, 4)
        for _ in range(SPT):
            if side and j >= SIDE0:
                side.pop(0)()
        if j == 29:
            xt_load()
        if j == 2:
            xt_store()
        if j == 3:
            ho_touch()
        staggered(j)
        E(1, 8, 11)
        MP(1, 0)
        if i == UN - 1:
            k.e(f'v_add_u32 v{vv}, v{vv}, v{vinc}')
            k.e(f'ds_read_b128 {vr(V0,4)}, v{vv}')
        else:
            k.e(f'ds_read_b128 {vr(V0,4)}, v{vv} offset:{(i+1)*1024}')
        E(1, 11, 16)
        C(1, 4, 8)
        if j == 0:
            kvsync(1)
        elif KVFAST:
            if j == 2: kvsync(3)
            if j == 6: kvsync(15)
        elif i == 2 and j + 2 < 32:
            kvsync((j + 5) // 2)
    assert not side
    k.stamp('loopend')
    k.e('s_setprio 0')
    MP(1, 1)
    k.e(f's_mul_i32 s{st0}, s{sw}, 2304')
    k.e(f's_add_u32 s{st0}, s{st0}, {EXA}')
    k.e(f'v_add_u32 v{tmp}, s{st0}, v{vl16}')
    k.e(f's_xor_b32 s{st1}, s{sw}, 4')
    k.e(f's_mul_i32 s{st1}, s{st1}, 2304')
    k.e(f's_add_u32 s{st1}, s{st1}, {EXA}')
    k.e(f'v_add_u32 v{tmp+1}, s{st1}, v{vl16}')
    k.e(f'v_lshlrev_b32 v{tmp+2}, 2, v{l}')
    k.e(f'v_add_u32 v{tmp+3}, s{st1}, v{tmp+2}')
    k.e(f'v_add_u32 v{tmp+2}, s{st0}, v{tmp+2}')
    k.e('s_waitcnt vmcnt(0)')
    k.e(f'v_cmp_ne_u32 vcc, s{sfast}, v{vxt}')
    k.e(f'ds_write_b128 v{tmp}, {vr(O[1],4)}')
    k.e(f'ds_write_b128 v{tmp}, {vr(O[1]+4,4)} offset:1024')
    k.e(f'ds_write_b32 v{tmp+2}, v{O[1]+8} offset:2048')
    k.e('s_cmp_eq_u64 vcc, 0')
    k.e(f's_cselect_b32 s{sfast}, 1, 0')
    k.e('s_waitcnt lgkmcnt(0)')
    k.e('s_barrier')
    k.e(f'ds_read_b32 v{S[0]+8}, v{tmp+3} offset:2048')
    k.e(f'ds_read_b128 {vr(S[0],4)}, v{tmp+1}')
    k.e(f'ds_read_b128 {vr(S[0]+4,4)}, v{tmp+1} offset:1024')
    k.e(f's_mov_b32 s{st0}, {f32(2.0**40)}')
    k.e('s_waitcnt lgkmcnt(0)')
    for r_ in (8, 0, 1, 2, 3, 4, 5, 6, 7):
        k.e(f'v_add_f32 v{O[0]+r_}, v{O[0]+r_}, v{S[0]+r_}')
    k.e(f'v_cmp_nlt_f32 vcc, v{O[0]+8}, s{st0}')
    k.e('s_nop 0')
    k.e(f's_cbranch_vccnz {k.lab("slow")}')
    k.label('fin')
    k.e(f'v_rcp_f32 v{tmp}, v{O[0]+8}')
    k.e(f's_lshl_b32 s{st0}, s{stb}, 15')
    k.e(f's_lshl_b32 s{st1}, s{shead}, 10')
    k.e(f's_add_u32 s{st0}, s{st0}, s{st1}')
    for r_ in range(8):
        k.e(f'v_mul_f32 v{O[0]+r_}, v{O[0]+r_}, v{tmp}')
    for q in range(4):
        k.e(f'v_cvt_pk_bf16_f32 v{P[0]+q}, v{O[0]+2*q}, v{O[0]+2*q+1}')
    stores([f'buffer_store_dwordx4 {vr(P[0],4)}, v{vl16}, {sr(SB,4)}, s{st0} offen'], HEADMAP)
    slow_regs = dict(Q=Q, S=S, NM=NM, O=O, P=P, KFr=KFr, V0=V0, V1=V1, vk=vk, vv=vv)
    sfl = sb
    k.e(f's_lshl_b32 s{sfl}, s{sr4}, 8')
    k.e(f's_lshl_b32 s{st0}, s{shead}, 3')
    k.e(f's_add_u32 s{sfl}, s{sfl}, s{st0}')
    k.e(f's_lshl_b32 s{st0}, s{srole}, 2')
    k.e(f's_add_u32 s{sfl}, s{sfl}, s{st0}')
    k.e(f's_add_u32 s{sfl}, s{sfl}, {FA_O}')
    srb, scb = sa, sc_
    k.e(f's_lshr_b32 s{srb}, s{sm}, 3')
    k.e(f's_lshl_b32 s{st0}, s{sg}, 2')
    k.e(f's_add_u32 s{srb}, s{srb}, s{st0}')
    k.e(f's_and_b32 s{scb}, s{sm}, 7')
    k.e(f's_lshl_b32 s{st0}, s{sr4}, 12')
    k.e(f's_lshl_b32 s{st1}, s{srole}, 15')
    k.e(f's_add_u32 s{st0}, s{st0}, s{st1}')
    k.e(f'v_add_u32 v{tmp+2}, s{st0}, v{vl16}')
    for q in range(8):
        k.e(f'ds_write_b128 v{tmp+2}, {ar(AWO+4*q,4)} offset:{(q//4)*16384 + (q%4)*1024}')
    if HEADMAP:
        k.e(f's_lshl_b32 s{st0}, s{sqb}, 12')
        k.e(f's_add_u32 s{st0}, s{st0}, {FL}')
        srd(k, SC, sWS, sWS+1, 4096, f's{st0}')
        flag(sfl, 0, SC, True)
    else:
        flag(sfl, 0)
    k.stamp('flagA')
    def w1_flush():
        k.e(f's_lshl_b32 s{st0}, s{sr4}, 12')
        k.e(f's_lshl_b32 s{st1}, s{srole}, 16')
        k.e(f's_add_u32 s{st0}, s{st0}, s{st1}')
        k.e(f'v_add_u32 v{tmp+3}, s{st0}, v{vl16}')
        for q in range(16):
            k.e(f'ds_write_b128 v{tmp+3}, {ar(AW1+4*q,4)} offset:{(q//4)*16384 + (q%4)*1024}')
    k.e(f's_cmp_eq_u32 s{srole}, 0')
    k.e(f's_cbranch_scc1 {k.lab("comp")}')

    k.vn = BASE
    vow = [k.v() for _ in range(4)]
    WR = k.v(112, 4)
    k.e(f'v_bfe_u32 v{tmp}, v{l}, 4, 1')
    k.e(f'v_lshlrev_b32 v{tmp}, 2, v{tmp}')
    k.e(f'v_and_b32 v{tmp+1}, 7, v{l}')
    k.e(f'v_xor_b32 v{tmp}, v{tmp}, v{tmp+1}')
    k.e(f'v_lshlrev_b32 v{tmp}, 4, v{tmp}')
    k.e(f'v_lshrrev_b32 v{tmp+2}, 3, v{l}')
    k.e(f'v_lshl_add_u32 v{vow[0]}, v{tmp+2}, 10, v{tmp}')
    for i in range(1, 4):
        k.e(f'v_add_u32 v{vow[i]}, {i*(8192-1024)}, v{vow[0]}')
    swo, smw = sPA, sPA+1
    k.e(f's_lshl_b32 s{swo}, s{sr4}, 15')
    k.e(f's_lshl_b32 s{st0}, s{scb}, 7')
    k.e(f's_add_u32 s{swo}, s{swo}, s{st0}')
    k.e(f's_lshl_b32 s{smw}, s{sr4}, 12')
    sxo, smx = sPB, sPB+1
    k.e(f's_lshl_b32 s{sxo}, s{srb}, 16')
    k.e(f's_lshr_b32 s{st0}, s{sr4}, 1')
    k.e(f's_lshl_b32 s{st0}, s{st0}, 15')
    k.e(f's_and_b32 s{st1}, s{sr4}, 1')
    k.e(f's_lshl_b32 s{st1}, s{st1}, 12')
    k.e(f's_add_u32 s{smx}, s{st0}, s{st1}')
    k.e(f's_add_u32 s{sxo}, s{sxo}, s{smx}')
    srd(k, SA, sW12+2, sW12+3, 1792*1024)
    k.e(f's_lshr_b32 s{st0}, s{sm}, 3')
    k.e(f's_lshl_b32 s{st0}, s{st0}, 8')
    k.e(f's_add_u32 s{st0}, s{st0}, {FA_O}')
    poll(st0, -1, -1)
    k.stamp('L:pollA')
    def ochunk(c):
        k.e(f's_add_u32 m0, s{smx}, {65536 + c*8192}')
        k.e(f's_add_u32 s{st0}, s{sxo}, {c*8192}')
        for i in range(4):
            k.e(f'buffer_load_dwordx4 v{vl16}, {sr(SB,4)}, s{st0} offen offset:{i*1024}{LD} lds')
    ochunk(0); ochunk(1)
    k.e('s_waitcnt vmcnt(4) lgkmcnt(0)')
    k.e('s_barrier')
    ochunk(2); ochunk(3)
    for c in range(1, 4):
        k.e(f's_waitcnt vmcnt({4*(3-c)})')
        k.e('s_barrier')
    k.e('s_barrier')
    k.stamp('L:b3end')
    a_, b_ = L('ld'), L('ld')
    k.e(f's_cmp_ge_u32 s{sm}, 28')
    k.e(f's_cbranch_scc1 {k.lab(a_)}')
    w1_flush()
    k.e('s_waitcnt lgkmcnt(0)')
    k.e('s_barrier')
    k.label(a_)
    NW, NX, XR = 7, 3, 114688
    for q in range(NW):
        k.e(f's_add_u32 s{st0}, s{swo}, {q*131072}')
        for i in range(4):
            k.e(f'buffer_load_dwordx4 {vr(WR+16*q+4*i,4)}, v{vow[i]}, {sr(SA,4)}, s{st0} offen offset:{i*1024}')
    k.e(f's_mul_i32 s{st0}, s{srb}, {2*112*1024}')
    k.e(f's_add_u32 s{st0}, s{st0}, {FF}')
    srd(k, SB, sWS, sWS+1, 2*112*1024, f's{st0}')
    k.e(f's_lshr_b32 s{st0}, s{sr4}, 1')
    k.e(f's_mul_i32 s{sxo}, s{st0}, {112*1024}')
    k.e(f's_and_b32 s{st1}, s{sr4}, 1')
    k.e(f's_lshl_b32 s{st1}, s{st1}, 12')
    k.e(f's_add_u32 s{sxo}, s{sxo}, s{st1}')
    k.e(f'v_add_u32 v{tmp+2}, s{smw}, v{vl16}')
    k.e(f'v_add_u32 v{tmp+3}, 65536, v{tmp+2}')
    k.stamp('+L:w2iss')
    k.e('s_waitcnt vmcnt(0)')
    k.stamp('+L:w2ld')
    k.e(f's_cmp_ge_u32 s{sm}, 28')
    k.e(f's_cbranch_scc1 {k.lab(b_)}')
    k.e('s_barrier')
    k.label(b_)
    k.e('s_waitcnt vmcnt(0)')
    for q in range(NW):
        for i in range(4):
            off = q*16384 + i*1024
            k.e(f'ds_write_b128 v{tmp+2+off//65536}, {vr(WR+16*q+4*i,4)} offset:{off % 65536}')
    k.stamp('L:w2')
    nvm = [0]; doneW = {q: 0 for q in range(NW)}; doneX = {}
    def wpiece(q, i):
        k.e(f's_add_u32 m0, s{smw}, {(q % NW)*16384}')
        k.e(f's_add_u32 s{st0}, s{swo}, {q*131072}')
        k.e(f'buffer_load_dwordx4 v{vow[i]}, {sr(SA,4)}, s{st0} offen offset:{i*1024} lds')
        nvm[0] += 1
        if i == 3: doneW[q] = nvm[0]
    k.e(f's_lshr_b32 s{st0}, s{sm}, 3')
    k.e(f's_lshl_b32 s{st0}, s{st0}, 7')
    k.e(f's_add_u32 s{st0}, s{st0}, {F4_O}')
    poll(st0, 0x3fff3fff, 0)
    k.stamp('L:poll4')
    def xchunk(c):
        k.e(f's_add_u32 m0, s{smw}, {XR + (c % NX)*16384}')
        k.e(f's_add_u32 s{st0}, s{sxo}, {c*8192}')
        for i in range(4):
            k.e(f'buffer_load_dwordx4 v{vl16}, {sr(SB,4)}, s{st0} offen offset:{i*1024}{LD} lds')
        nvm[0] += 4; doneX[c] = nvm[0]
    xchunk(0); xchunk(1)
    wq = [(q, i) for q in range(NW, 14) for i in range(4)]
    for c in range(14):
        if c == 1: xchunk(2)
        if c >= 2:
            if c + 1 < 14: xchunk(c + 1)
            for _ in range(3):
                if wq and wq[0][0] - NW <= c - 2:
                    wpiece(*wq.pop(0))
        k.e(f's_waitcnt vmcnt({nvm[0] - max(doneX[c], doneW[c])})' + (' lgkmcnt(0)' if c == 0 else ''))
        k.e('s_barrier')
    assert not wq
    k.e(f's_branch {k.lab("done")}')

    k.label('comp')
    k.vn = BASE
    stq, scq = sPA, sPA+1
    k.e(f's_lshr_b32 s{stq}, s{sr4}, 1')
    k.e(f's_and_b32 s{scq}, s{sr4}, 1')
    axb = k.v(); awb = [k.v(), k.v()]
    axr = [k.v() for _ in range(4)]
    k.e(f's_lshl_b32 s{st0}, s{stq}, 15')
    k.e(f's_add_u32 s{st0}, s{st0}, 65536')
    k.e(f'v_add_u32 v{axb}, s{st0}, v{vl16}')
    k.e(f'v_bfe_u32 v{tmp}, v{l}, 2, 2')
    k.e(f'v_lshl_add_u32 v{tmp+1}, v{h}, 2, v{tmp}')
    k.e(f'v_lshlrev_b32 v{tmp+1}, 7, v{tmp+1}')
    k.e(f'v_lshrrev_b32 v{tmp}, 1, v{tmp}')
    k.e(f'v_xor_b32 v{tmp}, s{scq}, v{tmp}')
    k.e(f'v_lshl_add_u32 v{tmp+1}, v{tmp}, 6, v{tmp+1}')
    k.e(f'v_bfe_u32 v{tmp}, v{l}, 4, 1')
    k.e(f'v_lshl_add_u32 v{tmp+1}, v{tmp}, 5, v{tmp+1}')
    k.e(f'v_and_b32 v{tmp}, 3, v{l}')
    k.e(f'v_lshl_add_u32 v{awb[0]}, v{tmp}, 3, v{tmp+1}')
    k.e(f'v_add_u32 v{awb[1]}, 65536, v{awb[0]}')
    k.e(f'v_bfe_u32 v{tmp}, v{t}, 1, 3')
    k.e(f's_lshl_b32 s{st0}, s{scq}, 2')
    k.e(f'v_xor_b32 v{tmp}, s{st0}, v{tmp}')
    k.e(f'v_lshlrev_b32 v{tmp+1}, 7, v{t}')
    k.e(f'v_lshl_add_u32 v{tmp+1}, v{h}, 3, v{tmp+1}')
    k.e(f's_lshl_b32 s{st0}, s{stq}, 12')
    k.e(f's_add_u32 s{st0}, s{st0}, {XRES}')
    k.e(f'v_add_u32 v{tmp+1}, s{st0}, v{tmp+1}')
    for g_ in range(4):
        k.e(f'v_xor_b32 v{tmp+2}, {g_}, v{tmp}')
        k.e(f'v_lshl_add_u32 v{axr[g_]}, v{tmp+2}, 4, v{tmp+1}')
    KEEP5 = k.vn
    DEPTH = 4
    XF = [k.v(4) for _ in range(DEPTH)]
    WF = [k.v(4) for _ in range(DEPTH)]
    ACC = k.v(16)
    RES = k.v(8, 4); U = k.v(16); OUT = k.v(8, 4)
    srd(k, SB, sWS, sWS+1, 2*MB, HF)
    srd(k, SC, sWS, sWS+1, 256*1024, ST)
    def gemm64(NKS, xaddr, waddr, tag, extra=None):
        def reads(n):
            p = n % DEPTH
            xa, xo = xaddr(n); wa, wo = waddr(n)
            k.e(f'ds_read_b128 {vr(XF[p],4)}, v{xa} offset:{xo}')
            for w2 in range(2):
                k.e(f'ds_read_b64_tr_b16 {vr(WF[p]+2*w2,2)}, v{wa} offset:{wo + w2*1024}')
        k.e('s_waitcnt lgkmcnt(0)')
        k.e('s_barrier')
        k.stamp(tag + ':c0')
        reads(0); reads(1)
        for n in range(NKS):
            if n + 2 < NKS:
                if (n + 2) % 8 == 0:
                    k.e('s_waitcnt lgkmcnt(0)')
                    k.e('s_barrier')
                    if NKS > 32 and (n + 2)//8 in (2, 4, 6, 8, 10, 12): k.stamp(f'+c{(n+2)//8}')
                    reads(n + 2)
                else:
                    reads(n + 2)
                    if (n + 2) % 8 != 1:
                        k.e('s_waitcnt lgkmcnt(6)')
            else:
                k.e(f's_waitcnt lgkmcnt({3*(NKS-1-n)})')
            Cop = '0' if n == 0 else vr(ACC, 16)
            p = n % DEPTH
            k.e(f'v_mfma_f32_32x32x16_bf16 {vr(ACC,16)}, {vr(WF[p],4)}, {vr(XF[p],4)}, {Cop}')
            if extra: extra(n)
    def extra3(n):
        if n == 28:
            for g_ in range(4):
                k.e(f'ds_read_b64 {vr(RES+2*g_,2)}, v{axr[g_]}')
    gemm64(32, lambda n: (axb, n*1024), lambda n: (awb[0], n*2048), 'p3', extra3)
    k.e('s_barrier')
    k.stamp('p3:end')
    for d in range(8):
        k.e(f'v_lshlrev_b32 v{U+2*d}, 16, v{RES+d}')
        k.e(f'v_and_b32 v{U+2*d+1}, 0xffff0000, v{RES+d}')
    k.e(f's_lshl_b32 s{st0}, s{srb}, 1')
    k.e(f's_add_u32 s{st0}, s{st0}, s{stq}')
    k.e(f's_lshl_b32 s{st2}, s{st0}, 12')
    k.e(f's_and_b32 s{sfl}, s{st0}, 7')
    k.e(f's_lshl_b32 s{sfl}, s{sfl}, 6')
    k.e(f's_lshl_b32 s{st0}, s{st0}, 15')
    k.e(f's_lshl_b32 s{st1}, s{scb}, 1')
    k.e(f's_add_u32 s{st1}, s{st1}, s{scq}')
    k.e(f's_lshl_b32 s{sit}, s{st1}, 11')
    k.e(f's_add_u32 s{st0}, s{st0}, s{sit}')
    k.e(f's_lshl_b32 s{sit}, s{st1}, 8')
    k.e(f's_add_u32 s{st2}, s{st2}, s{sit}')
    k.e(f's_lshl_b32 s{sit}, s{st1}, 2')
    k.e(f's_add_u32 s{sfl}, s{sfl}, s{sit}')
    k.e(f's_add_u32 s{sfl}, s{sfl}, {F3_O}')
    for r_ in range(0, 16, 2):
        k.e(f'v_pk_add_f32 {vr(U+r_,2)}, {vr(U+r_,2)}, {vr(ACC+r_,2)}')
    for q in range(8):
        k.e(f'v_cvt_pk_bf16_f32 v{OUT+q}, v{U+2*q}, v{U+2*q+1}')
    stores([f'buffer_store_dwordx4 {vr(OUT,4)}, v{vl16}, {sr(SB,4)}, s{st0} offen',
            f'buffer_store_dwordx4 {vr(OUT+4,4)}, v{vl16}, {sr(SB,4)}, s{st0} offen offset:1024'])
    SQ = ACC
    k.e(f'v_pk_mul_f32 {vr(SQ,2)}, {vr(U,2)}, {vr(U,2)}')
    for r_ in range(2, 16, 2):
        k.e(f'v_pk_fma_f32 {vr(SQ,2)}, {vr(U+r_,2)}, {vr(U+r_,2)}, {vr(SQ,2)}')
    for r_ in range(2, 16, 2):
        k.e(f'v_pk_add_f32 {vr(U,2)}, {vr(U,2)}, {vr(U+r_,2)}')
    k.e(f'v_add_f32 v{SQ+2}, v{U}, v{U+1}')
    k.e(f'v_add_f32 v{SQ+3}, v{SQ}, v{SQ+1}')
    k.e(f'v_mov_b32 v{SQ+4}, v{SQ+2}')
    k.e(f'v_mov_b32 v{SQ+5}, v{SQ+3}')
    k.e(f'v_lshlrev_b32 v{tmp+2}, 3, v{t}')
    k.e('s_nop 0')
    k.e(f'v_permlane32_swap_b32 v{SQ+2}, v{SQ+4}')
    k.e(f'v_permlane32_swap_b32 v{SQ+3}, v{SQ+5}')
    for q in range(8):
        k.e(f'v_accvgpr_write_b32 a{HK+q}, v{OUT+q}')
    k.e(f'v_pk_add_f32 {vr(SQ+2,2)}, {vr(SQ+2,2)}, {vr(SQ+4,2)}')
    stores([f'buffer_store_dwordx2 {vr(SQ+2,2)}, v{tmp+2}, {sr(SC,4)}, s{st2} offen'])
    a_ = L('w1')
    k.e(f's_cmp_ge_u32 s{sm}, 28')
    k.e(f's_cbranch_scc1 {k.lab(a_)}')
    w1_flush()
    k.label(a_)
    flag(sfl, 0)
    k.stamp('flag3')
    k.e(f's_cmp_ge_u32 s{sm}, 28')
    k.e(f's_cbranch_scc1 {k.lab("c5")}')

    k.vn = KEEP5
    stb4, scb4 = sPB, sPB+1
    k.e(f's_cmp_ge_u32 s{sm}, 14')
    k.e(f's_cselect_b32 s{st1}, 1, 0')
    k.e(f's_lshl_b32 s{stb4}, s{st1}, 2')
    k.e(f's_add_u32 s{stb4}, s{stb4}, s{sr4}')
    k.e(f's_mul_i32 s{st1}, s{st1}, 14')
    k.e(f's_sub_u32 s{scb4}, s{sm}, s{st1}')
    aw = [[k.v() for i in range(4)] for s_ in range(2)]
    k.e(f'v_bfe_u32 v{tmp}, v{l}, 2, 2')
    k.e(f'v_lshl_add_u32 v{tmp+1}, v{h}, 2, v{tmp}')
    k.e(f'v_lshlrev_b32 v{tmp+1}, 8, v{tmp+1}')
    k.e(f'v_bfe_u32 v{tmp+2}, v{l}, 4, 1')
    k.e(f'v_lshl_add_u32 v{tmp+1}, v{tmp+2}, 5, v{tmp+1}')
    k.e(f'v_and_b32 v{tmp+2}, 3, v{l}')
    k.e(f'v_lshl_add_u32 v{tmp+1}, v{tmp+2}, 3, v{tmp+1}')
    for i in range(4):
        k.e(f's_xor_b32 s{st0}, s{sr4}, {i}')
        k.e(f'v_xor_b32 v{tmp+2}, s{st0}, v{tmp}')
        k.e(f'v_lshl_add_u32 v{aw[0][i]}, v{tmp+2}, 6, v{tmp+1}')
        k.e(f'v_add_u32 v{aw[1][i]}, 65536, v{aw[0][i]}')
    SEL = selector(k, l, tmp)
    vst = k.v()
    k.e(f'v_lshlrev_b32 v{vst}, 3, v{t}')
    k.e(f'v_lshl_add_u32 v{vst}, v{h}, 11, v{vst}')
    k.e(f's_lshl_b32 s{st0}, s{sg}, 3')
    k.e(f's_add_u32 s{st0}, s{st0}, s{stb4}')
    k.e(f's_lshl_b32 s{st1}, s{st0}, 15')
    k.e(f's_add_u32 s{st1}, s{st1}, {HF}')
    srd(k, SA, sWS, sWS+1, 32768, f's{st1}')
    k.e(f's_lshl_b32 s{st1}, s{st0}, 12')
    k.e(f's_add_u32 s{st1}, s{st1}, {ST}')
    srd(k, SC, sWS, sWS+1, 4096, f's{st1}')
    k.e(f's_mul_i32 s{st1}, s{st0}, {112*1024}')
    k.e(f's_add_u32 s{st1}, s{st1}, {FF}')
    srd(k, SB, sWS, sWS+1, 112*1024, f's{st1}')
    k.e(f's_lshl_b32 s{st0}, s{stb4}, 6')
    k.e(f's_add_u32 s{st0}, s{st0}, {F3_O}')
    poll(st0, 0xffff, 0)
    k.stamp('poll3')
    NH = 24
    H = AWO
    STP = k.v(16, 2)
    WF4 = [[k.v(4) for i in range(4)] for p in range(2)]
    ACC4 = [k.v(16) for i in range(4)]
    CSA = k.v(4)
    mean, rstd = k.v(), k.v()
    nv4 = [0]; doneH = {}
    def hload(n):
        if n % 4 == 0:
            k.e(f's_mov_b32 s{st2}, {n*1024}')
        k.e(f'buffer_load_dwordx4 {ar(H+4*(n % NH),4)}, v{vl16}, {sr(SA,4)}, s{st2} offen offset:{(n%4)*1024}{LD}')
        nv4[0] += 1; doneH[n] = nv4[0]
    k.e('s_waitcnt lgkmcnt(0)')
    for n in range(8): hload(n)
    for q in range(8):
        k.e(f'buffer_load_dwordx2 {vr(STP+2*q,2)}, v{vst}, {sr(SC,4)}, 0 offen offset:{q*256}{LD}')
    nv4[0] += 8; doneS = nv4[0]
    for n in range(8, 12): hload(n)
    def rd(n, i):
        for w2 in range(2):
            k.e(f'ds_read_b64_tr_b16 {vr(WF4[n&1][i]+2*w2,2)}, v{aw[n//16][i]} offset:{(n%16)*4096 + w2*2048}')
    k.e('s_barrier')
    k.stamp('p4:b0')
    for i in range(4): rd(0, i)
    nh = [12]
    for n in range(32):
        p = n & 1
        X = H + 4*(n % NH)
        k.e(f's_waitcnt vmcnt({nv4[0] - doneH[n]})')
        for i in range(4):
            k.e(f's_waitcnt lgkmcnt({6 if n + 1 < 32 else 2*(3-i)})')
            Cop = '0' if n == 0 else vr(ACC4[i], 16)
            k.e(f'v_mfma_f32_32x32x16_bf16 {vr(ACC4[i],16)}, {vr(WF4[p][i],4)}, {ar(X,4)}, {Cop}')
            if n + 1 < 32: rd(n + 1, i)
            if i == 1 and nh[0] < 32 and nh[0] - NH < n:
                hload(nh[0]); nh[0] += 1
        Cop = '0' if n == 0 else vr(CSA, 4)
        k.e(f'v_mfma_f32_16x16x32_bf16 {vr(CSA,4)}, {vr(SEL,4)}, {vr(WF4[p][0],4)}, {Cop}')
        if n == 12:
            assert doneH[12] > doneS
            for q in (4, 2, 1):
                for z in range(q):
                    k.e(f'v_add_f32 v{STP+2*z}, v{STP+2*z}, v{STP+2*(z+q)}')
                    k.e(f'v_add_f32 v{STP+2*z+1}, v{STP+2*z+1}, v{STP+2*(z+q)+1}')
        if n == 13:
            ln_stats(k, STP, STP+1, STP+2, mean, rstd)
    assert nh[0] == 32
    k.stamp('p4:end')
    EX = XR + 2*16384
    a0, a2 = aw[0][0], aw[0][1]
    nm, rs2 = STP + 4, STP + 6
    k.e(f's_lshl_b32 s{st0}, s{sr4}, 7')
    k.e(f's_add_u32 s{st0}, s{st0}, {EX}')
    k.e(f'v_lshlrev_b32 v{a0}, 2, v{t}')
    k.e(f'v_add_u32 v{a0}, s{st0}, v{a0}')
    k.e(f'v_lshlrev_b32 v{a2}, 4, v{h}')
    k.e(f'v_add_u32 v{a2}, {EX}, v{a2}')
    k.e(f'v_sub_f32 v{nm}, 0, v{mean}')
    k.e(f'v_mov_b32 v{rs2}, v{rstd}')
    k.e(f'ds_write_b32 v{a0}, v{CSA}')
    k.e('s_waitcnt lgkmcnt(0)')
    k.e('s_barrier')
    CS = [WF4[0][0], WF4[1][0]]
    def csread(i):
        k.e(f's_xor_b32 s{st0}, s{sr4}, {i}')
        k.e(f's_lshl_b32 s{st0}, s{st0}, 7')
        k.e(f'v_add_u32 v{a0}, s{st0}, v{a2}')
        for g_ in range(4):
            k.e(f'ds_read_b128 {vr(CS[i&1]+4*g_,4)}, v{a0} offset:{g_*32}')
    csread(0); csread(1)
    for i in range(4):
        k.e(f's_waitcnt lgkmcnt({4 if i < 3 else 0})')
        for r_ in range(0, 16, 2):
            k.e(f'v_pk_fma_f32 {vr(ACC4[i]+r_,2)}, {vr(CS[i&1]+r_,2)}, {vr(nm,2)}, {vr(ACC4[i]+r_,2)} op_sel_hi:[1,0,1]')
        if i + 2 < 4: csread(i + 2)
        for r_ in range(0, 16, 2):
            k.e(f'v_pk_mul_f32 {vr(ACC4[i]+r_,2)}, {vr(ACC4[i]+r_,2)}, {vr(rs2,2)} op_sel_hi:[1,0]')
        for q in range(8):
            k.e(f'v_cvt_pk_bf16_f32 v{ACC4[i]+q}, v{ACC4[i]+2*q}, v{ACC4[i]+2*q+1}')
        for q in range(8):
            k.e(f'v_pk_max_i16 v{ACC4[i]+q}, v{ACC4[i]+q}, 0')
        k.e(f's_xor_b32 s{st0}, s{sr4}, {i}')
        k.e(f's_lshl_b32 s{st0}, s{st0}, 11')
        k.e(f's_lshl_b32 s{st1}, s{scb4}, 13')
        k.e(f's_add_u32 s{st0}, s{st0}, s{st1}')
        stores([f'buffer_store_dwordx4 {vr(ACC4[i],4)}, v{vl16}, {sr(SB,4)}, s{st0} offen',
                f'buffer_store_dwordx4 {vr(ACC4[i]+4,4)}, v{vl16}, {sr(SB,4)}, s{st0} offen offset:1024'])
    k.e(f's_lshl_b32 s{sfl}, s{stb4}, 6')
    k.e(f's_lshl_b32 s{st0}, s{scb4}, 2')
    k.e(f's_add_u32 s{sfl}, s{sfl}, s{st0}')
    k.e(f's_add_u32 s{sfl}, s{sfl}, {F4_O}')
    flag(sfl, 0)
    k.stamp('flag4')

    k.label('c5')
    k.e(f's_lshl_b32 s{st0}, s{stq}, 13')
    k.e(f's_add_u32 s{st0}, s{st0}, {XR}')
    k.e(f'v_add_u32 v{axb}, s{st0}, v{vl16}')
    k.e(f's_lshl_b32 s{st0}, s{srb}, 16')
    srd(k, SC, sOUT, sOUT+1, 65536, f's{st0}')
    def waddr5(n):
        off = ((n // 8) % NW)*16384 + (n % 8)*2048
        return (awb[off // 65536], off % 65536)
    gemm64(112, lambda n: (axb, ((n // 8) % NX)*16384 + (n % 8)*1024), waddr5, 'p5')
    k.stamp('p5:end')
    for d in range(8):
        k.e(f'v_accvgpr_read_b32 v{RES+d}, a{HK+d}')
    vr_ = axr[0]
    k.e(f'v_lshlrev_b32 v{vr_}, 10, v{t}')
    k.e(f'v_lshl_add_u32 v{vr_}, v{h}, 4, v{vr_}')
    for d in range(8):
        k.e(f'v_lshlrev_b32 v{U+2*d}, 16, v{RES+d}')
        k.e(f'v_and_b32 v{U+2*d+1}, 0xffff0000, v{RES+d}')
    k.e(f's_lshl_b32 s{st0}, s{stq}, 15')
    k.e(f's_lshl_b32 s{st1}, s{scb}, 7')
    k.e(f's_add_u32 s{st0}, s{st0}, s{st1}')
    k.e(f's_lshl_b32 s{st1}, s{scq}, 6')
    k.e(f's_add_u32 s{st0}, s{st0}, s{st1}')
    for r_ in range(0, 16, 2):
        k.e(f'v_pk_add_f32 {vr(U+r_,2)}, {vr(U+r_,2)}, {vr(ACC+r_,2)}')
    for q in range(8):
        k.e(f'v_cvt_pk_bf16_f32 v{OUT+q}, v{U+2*q}, v{U+2*q+1}')
    k.e('s_nop 1')
    for pz in range(2):
        k.e(f'v_permlane32_swap_b32 v{OUT+4*pz}, v{OUT+4*pz+2}')
        k.e(f'v_permlane32_swap_b32 v{OUT+4*pz+1}, v{OUT+4*pz+3}')
    k.e(f'buffer_store_dwordx4 {vr(OUT,4)}, v{vr_}, {sr(SC,4)}, s{st0} offen')
    k.e(f'buffer_store_dwordx4 {vr(OUT+4,4)}, v{vr_}, {sr(SC,4)}, s{st0} offen offset:32')
    k.label('done')
    k.label('end')
    k.e('s_endpgm')

    k.label('slow')
    k.e(f's_lshl_b32 s{st0}, s{shead}, 16')
    k.e(f's_add_u32 s{st0}, s{st0}, {KF}')
    k.e(f'v_mov_b32 v{tmp}, 0xff800000')
    k.e(f's_mov_b32 s{sit}, 0')
    k.label('slow1')
    k.e(f's_add_u32 s{st1}, s{st0}, s{sit}')
    k.e(f'buffer_load_dwordx4 {vr(KFr,4)}, v{vl16}, {sr(SA,4)}, s{st1} offen')
    k.e('s_waitcnt vmcnt(0)')
    k.e(f'v_mfma_f32_32x32x16_bf16 {vr(S[0],16)}, {vr(KFr,4)}, {vr(Q[0],4)}, 0')
    k.e('s_nop 15')
    rowmax16(S[0], tmp+2)
    k.e(f'v_max_f32 v{tmp}, v{tmp}, v{tmp+2}')
    k.e(f's_add_u32 s{sit}, s{sit}, 1024')
    k.e(f's_cmp_lt_u32 s{sit}, 65536')
    k.e(f's_cbranch_scc1 {k.lab("slow1")}')
    set_negm(tmp, NM[0])
    for r_ in range(16):
        k.e(f'v_mov_b32 v{O[0]+r_}, 0')
    k.e(f'v_and_b32 v{vv}, 15, v{l}')
    k.e(f'v_lshlrev_b32 v{vv}, 4, v{vv}')
    k.e(f'v_lshl_add_u32 v{vv}, v{h}, 8, v{vv}')
    k.e(f'v_bfe_u32 v{tmp+1}, v{l}, 4, 1')
    k.e(f'v_lshl_add_u32 v{vv}, v{tmp+1}, 24, v{vv}')
    k.e(f'v_and_b32 v{tmp}, 27, v{l}')
    k.e(f'v_cmp_eq_u32 vcc, 16, v{tmp}')
    k.e(f'v_mov_b32 v{tmp+1}, 0x3f803f80')
    k.e(f's_mov_b32 s{sit}, 0')
    k.e(f'v_cndmask_b32 v{vk}, 0, v{tmp+1}, vcc')
    k.label('slow2')
    k.e(f's_add_u32 s{st1}, s{st0}, s{sit}')
    k.e(f's_add_u32 s{st2}, s{st1}, {VF - KF}')
    k.e(f'buffer_load_dwordx4 {vr(KFr,4)}, v{vl16}, {sr(SA,4)}, s{st1} offen')
    k.e(f'buffer_load_dwordx4 {vr(V0,4)}, v{vv}, {sr(SA,4)}, s{st2} offen')
    k.e(f'buffer_load_dwordx4 {vr(V1,4)}, v{vv}, {sr(SA,4)}, s{st2} offen offset:512')
    k.e('s_waitcnt vmcnt(0)')
    k.e(f'v_mfma_f32_32x32x16_bf16 {vr(S[0],16)}, {vr(KFr,4)}, {vr(Q[0],4)}, {vr(NM[0],16)}')
    for d in range(4):
        k.e(f'v_or_b32 v{V0+d}, v{V0+d}, v{vk}')
        k.e(f'v_or_b32 v{V1+d}, v{V1+d}, v{vk}')
    k.e('s_nop 7')
    E(0, 0, 16)
    k.e('s_nop 0')
    C(0, 0, 8)
    k.e('s_nop 1')
    MP(0, 0)
    MP(0, 1)
    k.e(f's_add_u32 s{sit}, s{sit}, 1024')
    k.e(f's_cmp_lt_u32 s{sit}, 65536')
    k.e(f's_cbranch_scc1 {k.lab("slow2")}')
    k.e('s_nop 15')
    k.e(f's_branch {k.lab("fin")}')
    assert k.vmax <= ARCH, k.vmax
    assert k.an <= 256 - ARCH, k.an
    k.vmax = ARCH
    return k, (256, 512, 163840)
```

```python
class Kern:
    def __init__(self, name):
        self.name = name
        self.L = []
        self.vn = 1
        self.vmax = 1
        self.sn = 4
        self.smax = 4
        self.nlab = 0
        self.an = 0
    def e(self, s):
        for line in s.split('\n'):
            line = line.strip()
            if line:
                self.L.append('    ' + line)
    def c(self, s):
        self.L.append('    ; ' + s)
    def label(self, l):
        self.L.append(f'{self.name}_{l}:')
    def lab(self, l):
        return f'{self.name}_{l}'
    def v(self, n=1, align=None):
        if align is None:
            align = 2 if n >= 2 else 1
        b = (self.vn + align - 1) // align * align
        self.vn = b + n
        self.vmax = max(self.vmax, self.vn)
        return b
    def a(self, n):
        b = (self.an + 3) // 4 * 4
        self.an = b + n
        assert self.an <= 256
        return b
    def s(self, n=1, align=None):
        if align is None:
            align = 4 if n >= 4 else (2 if n >= 2 else 1)
        b = (self.sn + align - 1) // align * align
        self.sn = b + n
        self.smax = max(self.smax, self.sn)
        assert self.sn <= 100
        return b
    def stamp(self, tag=''):
        self.L.append(f'    ;@STAMP {tag}')
    def instrument(self, idx, todebug=None):
        NS = 18
        L = self.L
        pre = ['    s_memrealtime s[88:89]', '    s_memtime s[90:91]', '    s_mov_b32 s87, s2'] + [f'    s_mov_b32 s{50+2*q}, 0' for q in range(NS)]
        out = []
        n = 0
        self.tags = []
        for x in L:
            if x.strip().startswith(';@STAMP'):
                import os
                tag = x.strip()[8:]
                drop = os.environ.get('DROP', '').split(',')
                if tag.startswith('+') != bool(os.environ.get('FINE')) and (tag.startswith('+') or tag in ('karg', 'loop', 'j15', 'L:b3end', 'poll3', 'p3:c0', 'flag3', 'L:pollA', 'L:w2')):
                    continue
                assert n < NS
                out.append(f'    s_memtime s[{50+2*n}:{51+2*n}]')
                self.tags.append(x.strip()[8:])
                n += 1
            else:
                out.append(x)
        L = out
        first_end = [i for i, x in enumerate(L) if x.strip() == f'{self.name}_end:'][0]
        post = ['    s_waitcnt vmcnt(0) lgkmcnt(0)', '    s_memrealtime s[92:93]', '    s_memtime s[94:95]', '    s_load_dwordx2 s[100:101], s[0:1], 64', '    s_waitcnt lgkmcnt(0)',
                '    s_sub_u32 s94, s94, s90',
                f'    s_add_u32 s96, s100, {(32<<20) + idx*262144}', '    s_addc_u32 s97, s101, 0', '    s_mov_b32 s98, 262144', '    s_mov_b32 s99, 0x20000',
                '    v_mov_b32 v4, s88', '    v_mov_b32 v5, s92', '    v_mov_b32 v6, s94', f'    v_mov_b32 v7, {getattr(self, "dbgreg", "0")}']
        for q in range(20):
            if q < n:
                post.append(f'    s_sub_u32 s{50+2*q}, s{50+2*q}, s90')
                post.append(f'    v_mov_b32 v{8+q}, s{50+2*q}')
            else:
                post.append(f'    v_mov_b32 v{8+q}, 0')
        post += ['    v_lshrrev_b32 v1, 6, v0', '    v_lshlrev_b32 v1, 7, v1', '    s_lshl_b32 s100, s87, 10', '    v_add_u32 v1, s100, v1',
                '    s_mov_b64 exec, 1']
        for q in range(6):
            post.append(f'    buffer_store_dwordx4 v[{4+4*q}:{7+4*q}], v1, s[96:99], 0 offen offset:{16*q}')
        if todebug is not None:
            wg, wv, base, sel = todebug
            post += ['    v_lshrrev_b32 v1, 6, v0', '    s_nop 0', '    v_readfirstlane_b32 s100, v1', f'    s_cmp_lg_u32 s87, {wg}', f'    s_cbranch_scc1 {self.name}_end',
                     f'    s_cmp_lg_u32 s100, {wv}', f'    s_cbranch_scc1 {self.name}_end',
                     '    s_load_dwordx2 s[100:101], s[0:1], 56', '    s_waitcnt lgkmcnt(0)',
                     f'    s_sub_u32 s96, s100, {idx*512}', '    s_subb_u32 s97, s101, 0', '    s_mov_b32 s98, 256', '    v_mov_b32 v1, 0']
            for q, r_ in enumerate(sel):
                post.append(f'    buffer_store_dword v{r_}, v1, s[96:99], 0 offen offset:{base + 4*q}')
        self.L = pre + L[:first_end] + post + L[first_end:]
        assert self.smax <= 50, self.smax
        self.vmax = max(self.vmax, 28)
        self.smax = 102
    def text(self):
        return (f'.globl {self.name}\n.p2align 8\n.type {self.name},@function\n{self.name}:\n'
                + '\n'.join(self.L) + '\n')
    def desc(self):
        nv = self.vmax
        assert nv <= 256, nv
        acc = (nv + 3) // 4 * 4
        return f'''.p2align 6
.amdhsa_kernel {self.name}
  .amdhsa_next_free_vgpr {acc + self.an if self.an else nv}
  .amdhsa_next_free_sgpr {max(self.smax, 8)}
  .amdhsa_accum_offset {acc}
  .amdhsa_group_segment_fixed_size 0
  .amdhsa_kernarg_size 72
  .amdhsa_user_sgpr_count 2
  .amdhsa_user_sgpr_kernarg_segment_ptr 1
  .amdhsa_system_sgpr_workgroup_id_x 1
.end_amdhsa_kernel
'''
def vr(b, n):
    return f'v[{b}:{b+n-1}]' if n > 1 else f'v{b}'
def ar(b, n):
    return f'a[{b}:{b+n-1}]' if n > 1 else f'a{b}'
def sr(b, n):
    return f's[{b}:{b+n-1}]' if n > 1 else f's{b}'

def srd(k, d, lo, hi, nbytes, off=None):
    if off is None:
        k.e(f's_mov_b32 s{d}, s{lo}')
        k.e(f's_mov_b32 s{d+1}, s{hi}')
    else:
        k.e(f's_add_u32 s{d}, s{lo}, {off}')
        k.e(f's_addc_u32 s{d+1}, s{hi}, 0')
    k.e(f's_mov_b32 s{d+2}, {nbytes}')
    k.e(f's_mov_b32 s{d+3}, 0x20000')
```

```python
class Kern:
    def __init__(self, name):
        self.name = name
        self.L = []
        self.vn = 1
        self.vmax = 1
        self.sn = 4
        self.smax = 4
        self.nlab = 0
        self.an = 0
    def e(self, s):
        for line in s.split('\n'):
            line = line.strip()
            if line:
                self.L.append('    ' + line)
    def c(self, s):
        self.L.append('    ; ' + s)
    def label(self, l):
        self.L.append(f'{self.name}_{l}:')
    def lab(self, l):
        return f'{self.name}_{l}'
    def v(self, n=1, align=None):
        if align is None:
            align = 2 if n >= 2 else 1
        b = (self.vn + align - 1) // align * align
        self.vn = b + n
        self.vmax = max(self.vmax, self.vn)
        return b
    def a(self, n):
        b = (self.an + 3) // 4 * 4
        self.an = b + n
        assert self.an <= 256
        return b
    def s(self, n=1, align=None):
        if align is None:
            align = 4 if n >= 4 else (2 if n >= 2 else 1)
        b = (self.sn + align - 1) // align * align
        self.sn = b + n
        self.smax = max(self.smax, self.sn)
        assert self.sn <= 100
        return b
    def stamp(self, tag=''):
        self.L.append(f'    ;@STAMP {tag}')
    def instrument(self, idx, todebug=None):
        NS = 18
        L = self.L
        pre = ['    s_memrealtime s[88:89]', '    s_memtime s[90:91]', '    s_mov_b32 s87, s2'] + [f'    s_mov_b32 s{50+2*q}, 0' for q in range(NS)]
        out = []
        n = 0
        self.tags = []
        for x in L:
            if x.strip().startswith(';@STAMP'):
                import os
                tag = x.strip()[8:]
                drop = os.environ.get('DROP', '').split(',')
                if tag.startswith('+') != bool(os.environ.get('FINE')) and (tag.startswith('+') or tag in ('karg', 'loop', 'j15', 'L:b3end', 'poll3', 'p3:c0', 'flag3', 'L:pollA', 'L:w2', 'flagA', 'first', 'loopend')):
                    continue
                assert n < NS
                out.append(f'    s_memtime s[{50+2*n}:{51+2*n}]')
                self.tags.append(x.strip()[8:])
                n += 1
            else:
                out.append(x)
        L = out
        first_end = [i for i, x in enumerate(L) if x.strip() == f'{self.name}_end:'][0]
        post = ['    s_waitcnt vmcnt(0) lgkmcnt(0)', '    s_memrealtime s[92:93]', '    s_memtime s[94:95]', '    s_load_dwordx2 s[100:101], s[0:1], 64', '    s_waitcnt lgkmcnt(0)',
                '    s_sub_u32 s94, s94, s90',
                f'    s_add_u32 s96, s100, {(32<<20) + idx*262144}', '    s_addc_u32 s97, s101, 0', '    s_mov_b32 s98, 262144', '    s_mov_b32 s99, 0x20000',
                '    v_mov_b32 v4, s88', '    v_mov_b32 v5, s92', '    v_mov_b32 v6, s94', f'    v_mov_b32 v7, {getattr(self, "dbgreg", "0")}']
        for q in range(20):
            if q < n:
                post.append(f'    s_sub_u32 s{50+2*q}, s{50+2*q}, s90')
                post.append(f'    v_mov_b32 v{8+q}, s{50+2*q}')
            else:
                post.append(f'    v_mov_b32 v{8+q}, 0')
        post += ['    v_lshrrev_b32 v1, 6, v0', '    v_lshlrev_b32 v1, 7, v1', '    s_lshl_b32 s100, s87, 10', '    v_add_u32 v1, s100, v1',
                '    s_mov_b64 exec, 1']
        for q in range(6):
            post.append(f'    buffer_store_dwordx4 v[{4+4*q}:{7+4*q}], v1, s[96:99], 0 offen offset:{16*q}')
        if todebug is not None:
            wg, wv, base, sel = todebug
            post += ['    v_lshrrev_b32 v1, 6, v0', '    s_nop 0', '    v_readfirstlane_b32 s100, v1', f'    s_cmp_lg_u32 s87, {wg}', f'    s_cbranch_scc1 {self.name}_end',
                     f'    s_cmp_lg_u32 s100, {wv}', f'    s_cbranch_scc1 {self.name}_end',
                     f'    s_sub_u32 s96, s96, {idx*262144}', '    s_subb_u32 s97, s97, 0', f'    v_mov_b32 v1, {wg*1024}',
                     '    buffer_load_dwordx4 v[28:31], v1, s[96:99], 0 offen', '    buffer_load_dword v31, v1, s[96:99], 0 offen offset:16',
                     '    s_load_dwordx2 s[100:101], s[0:1], 56', '    s_waitcnt lgkmcnt(0) vmcnt(0)',
                     '    s_mov_b32 s96, s100', '    s_mov_b32 s97, s101', '    s_mov_b32 s98, 256', '    v_mov_b32 v1, 0']
            for q, r_ in enumerate(sel):
                post.append(f'    buffer_store_dword v{r_}, v1, s[96:99], 0 offen offset:{base + 4*q}')
        self.L = pre + L[:first_end] + post + L[first_end:]
        assert self.smax <= 50, self.smax
        self.vmax = max(self.vmax, 32)
        self.smax = 102
    def text(self):
        return (f'.globl {self.name}\n.p2align 8\n.type {self.name},@function\n{self.name}:\n'
                + '\n'.join(self.L) + '\n')
    def desc(self):
        nv = self.vmax
        assert nv <= 256, nv
        acc = (nv + 3) // 4 * 4
        return f'''.p2align 6
.amdhsa_kernel {self.name}
  .amdhsa_next_free_vgpr {acc + self.an if self.an else nv}
  .amdhsa_next_free_sgpr {max(self.smax, 8)}
  .amdhsa_accum_offset {acc}
  .amdhsa_group_segment_fixed_size 0
  .amdhsa_kernarg_size 72
  .amdhsa_user_sgpr_count 2
  .amdhsa_user_sgpr_kernarg_segment_ptr 1
  .amdhsa_system_sgpr_workgroup_id_x 1
.end_amdhsa_kernel
'''
def vr(b, n):
    return f'v[{b}:{b+n-1}]' if n > 1 else f'v{b}'
def ar(b, n):
    return f'a[{b}:{b+n-1}]' if n > 1 else f'a{b}'
def sr(b, n):
    return f's[{b}:{b+n-1}]' if n > 1 else f's{b}'

def srd(k, d, lo, hi, nbytes, off=None):
    if off is None:
        k.e(f's_mov_b32 s{d}, s{lo}')
        k.e(f's_mov_b32 s{d+1}, s{hi}')
    else:
        k.e(f's_add_u32 s{d}, s{lo}, {off}')
        k.e(f's_addc_u32 s{d+1}, s{hi}, 0')
    k.e(f's_mov_b32 s{d+2}, {nbytes}')
    k.e(f's_mov_b32 s{d+3}, 0x20000')
```

```python
from fw import *
from k1 import *

ARCH = 152
XT_O, FA_O, F3_O, F4_O = 0, 1024, 2048, 3072
POLL_LIMIT = 200000

def gen_mega(name='block_kernel', KVPOL='', SIDE0=8, TCH=1, CODE=0, LD=' sc1', PRE=12, W2POS=99, HEADMAP=0, KVFAST=0, SPT=1, HO0=21, W20=18, STEP=1, UPR=1, PRIO=1, XUP=6, HUP=12, KVB=1, SIDE2=8, CSL=1):
    k = Kern(name)
    sWS, sX, sWO, sOUT = k.s(2), k.s(2), k.s(2), k.s(2)
    sW12 = k.s(4)
    SA, SB, SC, SFL = k.s(4), k.s(4), k.s(4), k.s(4)
    sPA, sPB = k.s(2), k.s(2)
    sw, sr4, srole, sg, sm, sfast, st0, st1, st2, sit, sa, sb, sc_, sd = [k.s() for _ in range(14)]
    shead, sqb = 2, 3
    k.dbgreg = f's{sfast}'
    nl = [0]
    def L(p='x'):
        nl[0] += 1
        return f'{p}{nl[0]}'
    k.e('s_cmp_ge_u32 s2, 256')
    k.e(f's_cbranch_scc1 {k.lab("end")}')
    k.e(f's_load_dwordx2 {sr(sWS,2)}, s[0:1], 64')
    k.e(f's_load_dwordx2 {sr(sX,2)}, s[0:1], 0')
    k.e(f's_load_dwordx2 {sr(sWO,2)}, s[0:1], 16')
    k.e(f's_load_dwordx2 {sr(sOUT,2)}, s[0:1], 48')
    k.e(f's_load_dwordx4 {sr(sW12,4)}, s[0:1], 32')
    R = lane_regs(k)
    l, t, h = R['l'], R['t'], R['h']
    vl16 = k.v()
    tmp = k.v(4)
    BASE = k.vn
    k.e(f'v_lshrrev_b32 v{tmp}, 6, v0')
    k.e(f's_and_b32 s{sg}, s2, 7')
    k.e(f'v_readfirstlane_b32 s{sw}, v{tmp}')
    k.e(f's_lshr_b32 s{sm}, s2, 3')
    k.e(f's_getreg_b32 s{sfast}, hwreg(HW_REG_XCC_ID, 0, 4)')
    k.e(f's_lshr_b32 s{srole}, s{sw}, 2')
    k.e(f's_and_b32 s{sr4}, s{sw}, 3')
    k.e(f's_add_u32 s{sfast}, s{sfast}, 1')
    if HEADMAP:
        k.e(f's_and_b32 s{sqb}, s{sm}, 7')
        k.e(f's_lshr_b32 s{st0}, s{sm}, 3')
        k.e(f's_lshl_b32 s{shead}, s{sg}, 2')
        k.e(f's_add_u32 s{shead}, s{shead}, s{st0}')
    else:
        k.e(f's_mov_b32 s{sqb}, s{sg}')
        k.e(f's_mov_b32 s{shead}, s{sm}')
    k.e(f'v_lshlrev_b32 v{vl16}, 4, v{l}')

    def stores(lst, through=False):
        if through:
            for s_ in lst: k.e(s_ + ' sc1')
            return
        a, b = L('st'), L('st')
        k.e(f's_cmp_eq_u32 s{sfast}, 0')
        k.e(f's_cbranch_scc1 {k.lab(a)}')
        for s_ in lst: k.e(s_)
        k.e(f's_branch {k.lab(b)}')
        k.label(a)
        for s_ in lst: k.e(s_ + ' sc1')
        k.label(b)
    def flag(soff, nyounger=0, D=None, through=False):
        D = SFL if D is None else D
        k.e(f'v_mov_b32 v{tmp}, 0')
        k.e(f'v_mov_b32 v{tmp+1}, 1')
        k.e(f's_waitcnt vmcnt({nyounger})')
        k.e('s_mov_b64 exec, 1')
        stores([f'buffer_store_dword v{tmp+1}, v{tmp}, {sr(D,4)}, s{soff} offen'], through)
        k.e('s_mov_b64 exec, -1')
    def poll(soff, mask_lo, mask_hi):
        a, b = L('pl'), L('pl')
        k.e(f'v_lshlrev_b32 v{tmp}, 2, v{l}')
        k.e(f's_mov_b32 exec_lo, {mask_lo}')
        k.e(f's_mov_b32 exec_hi, {mask_hi}')
        k.e(f's_mov_b32 s{sit}, 0')
        k.label(a)
        k.e(f'buffer_load_dword v{tmp+1}, v{tmp}, {sr(SFL,4)}, s{soff} offen sc1')
        k.e(f's_add_u32 s{sit}, s{sit}, 1')
        k.e('s_waitcnt vmcnt(0)')
        k.e(f'v_cmp_eq_u32 vcc, 0, v{tmp+1}')
        k.e(f's_cmp_ge_u32 s{sit}, {POLL_LIMIT}')
        k.e(f's_cbranch_vccz {k.lab(b)}')
        k.e(f's_cbranch_scc0 {k.lab(a)}')
        k.label(b)
        k.e('s_mov_b64 exec, -1')

    KB, VB, ONES = 0, 65536, 131072
    UN = 4
    EXA = ONES + UN*1024
    XRES = 155648
    stb, sla, sga = sa, sb, sc_
    k.e(f's_lshl_b32 s{stb}, s{sqb}, 3')
    k.e(f's_lshl_b32 s{st1}, s{sr4}, 1')
    k.e(f's_add_u32 s{stb}, s{stb}, s{st1}')
    k.e(f's_add_u32 s{stb}, s{stb}, s{srole}')
    Q = [k.v(4), k.v(4)]
    vk, vv, vinc, vxt, dummy = k.v(), k.v(), k.v(), k.v(), k.v()
    S = [k.v(16), k.v(16)]
    NM = [k.v(16), k.v(16)]
    O = [k.v(16), k.v(16)]
    P = [k.v(8), k.v(8)]
    KFr = k.v(4); V0 = k.v(4); V1 = k.v(4)
    ON = S[0]
    k.e(f'v_and_b32 v{tmp}, 11, v0')
    k.e(f'v_cmp_eq_u32 vcc, 0, v{tmp}')
    k.e(f'v_mov_b32 v{tmp+1}, 0x3f803f80')
    k.e(f'v_lshlrev_b32 v{tmp}, 4, v0')
    k.e(f'v_cndmask_b32 v{ON}, 0, v{tmp+1}, vcc')
    k.e(f'v_and_b32 v{tmp}, {UN*1024-1}, v{tmp}')
    for d in range(1, 4):
        k.e(f'v_mov_b32 v{ON+d}, v{ON}')
    k.e(f'v_add_u32 v{tmp}, {ONES}, v{tmp}')
    k.e(f'ds_write_b128 v{tmp}, {vr(ON,4)}')
    CNT = 154112
    k.e(f'v_mov_b32 v{tmp}, {CNT}')
    k.e(f'v_mov_b32 v{tmp+1}, 0')
    k.e(f'ds_write_b32 v{tmp}, v{tmp+1}')
    k.e(f's_lshl_b32 s{st0}, s{shead}, 16')
    k.e(f's_and_b32 s{st1}, s{sw}, 1')
    k.e(f's_lshl_b32 s{sla}, s{st1}, 16')
    k.e(f's_lshl_b32 s{sga}, s{st1}, 21')
    k.e(f's_bfe_u32 s{st1}, s{sw}, 0x10001')
    k.e(f's_lshl_b32 s{st1}, s{st1}, 15')
    k.e(f's_lshl_b32 s{st2}, s{srole}, 10')
    k.e(f's_add_u32 s{st1}, s{st1}, s{st2}')
    k.e(f's_add_u32 s{sla}, s{sla}, s{st1}')
    k.e(f's_add_u32 s{sga}, s{sga}, s{st1}')
    k.e(f's_add_u32 s{sga}, s{sga}, s{st0}')
    k.e(f's_add_u32 s{sga}, s{sga}, {KF}')
    k.e(f's_lshl_b32 s{st1}, s{stb}, 10')
    k.e(f's_add_u32 s{st1}, s{st1}, s{st0}')
    k.e(f's_xor_b32 s{st2}, s{st1}, 1024')
    k.e(f's_lshl_b32 s{sit}, s{sg}, 12')
    k.e(f's_add_u32 s{sit}, s{sit}, {FL}')
    k.e('s_waitcnt lgkmcnt(0)')
    k.stamp('karg')
    srd(k, SA, sWS, sWS+1, 6*MB)
    nvm = [0]; done = {}
    def vm(txt, tag=None):
        k.e(txt); nvm[0] += 1
        if tag is not None: done[tag] = nvm[0]
    def kv_round(r):
        k.e(f's_add_u32 m0, s{sla}, {r*2048}')
        k.e(f's_add_u32 s{st0}, s{sga}, {r*2048}')
        vm(f'buffer_load_dwordx4 v{vl16}, {sr(SA,4)}, s{st0} offen{KVPOL} lds', ('kv', r))
    vm(f'buffer_load_dwordx4 {vr(Q[0],4)}, v{vl16}, {sr(SA,4)}, s{st1} offen')
    vm(f'buffer_load_dwordx4 {vr(Q[1],4)}, v{vl16}, {sr(SA,4)}, s{st2} offen')
    for r in range(UPR): kv_round(r)
    srd(k, SFL, sWS, sWS+1, 4096, f's{sit}')
    HK = k.a(8); AWO = k.a(32); AW1 = k.a(64)
    swoA, sw1A = sPA, sPA+1
    srd(k, SB, sWO, sWO+1, 512*1024)
    srd(k, SC, sW12, sW12+1, 512*3584)
    k.e(f's_lshl_b32 s{swoA}, s{sr4}, 15')
    k.e(f's_lshl_b32 s{st0}, s{srole}, 18')
    k.e(f's_add_u32 s{swoA}, s{swoA}, s{st0}')
    k.e(f's_and_b32 s{st0}, s{sm}, 7')
    k.e(f's_lshl_b32 s{st0}, s{st0}, 7')
    k.e(f's_add_u32 s{swoA}, s{swoA}, s{st0}')
    k.e(f's_cmp_ge_u32 s{sm}, 14')
    k.e(f's_cselect_b32 s{st1}, 14, 0')
    k.e(f's_sub_u32 s{st1}, s{sm}, s{st1}')
    k.e(f's_lshl_b32 s{sw1A}, s{st1}, 8')
    k.e(f's_mul_i32 s{st1}, s{sr4}, {16*3584}')
    k.e(f's_add_u32 s{sw1A}, s{sw1A}, s{st1}')
    k.e(f's_mul_i32 s{st1}, s{srole}, {256*3584}')
    k.e(f's_add_u32 s{sw1A}, s{sw1A}, s{st1}')
    k.e(f's_mul_i32 s{st0}, s{sm}, 57344')
    k.e(f's_min_u32 s{st1}, s{sw}, 6')
    k.e(f's_lshl_b32 s{st1}, s{st1}, 13')
    k.e(f's_add_u32 s{st0}, s{st0}, s{st1}')
    k.e(f's_add_u32 s{sPB}, s{sW12+2}, s{st0}')
    k.e(f's_addc_u32 s{sPB+1}, s{sW12+3}, 0')
    k.e(f's_lshl_b32 s{st0}, s{srole}, 15')
    k.e(f'v_add_u32 v{vk}, s{st0}, v{vl16}')
    k.e(f'v_and_b32 v{tmp}, 15, v{l}')
    k.e(f'v_lshlrev_b32 v{tmp}, 4, v{tmp}')
    k.e(f'v_lshl_add_u32 v{tmp}, v{h}, 8, v{tmp}')
    k.e(f'v_bfe_u32 v{tmp+1}, v{l}, 4, 1')
    k.e(f'v_xor_b32 v{tmp+2}, 1, v{tmp+1}')
    k.e(f'v_lshlrev_b32 v{vinc}, 12, v{tmp+2}')
    k.e(f'v_mul_u32_u24 v{tmp+2}, s{st0}, v{tmp+2}')
    k.e(f'v_lshl_add_u32 v{vv}, v{tmp+1}, 16, v{tmp}')
    k.e(f'v_add_u32 v{vv}, v{vv}, v{tmp+2}')
    k.e(f'v_add_u32 v{vv}, {VB}, v{vv}')
    for s_ in range(2):
        for r_ in range(16):
            k.e(f'v_mov_b32 v{O[s_]+r_}, 0')
        for d in range(4):
            k.e(f'v_mov_b32 v{P[s_]+4+d}, 0')
    def kvsync(r):
        k.e(f's_waitcnt vmcnt({nvm[0] - done[("kv", r)]})')
        k.e('s_barrier')
    kvsync(0)
    k.stamp('first')
    for r in range(UPR, 4): kv_round(r)
    k.e(f'ds_read_b128 {vr(V0,4)}, v{vl16}')
    k.e(f'ds_read_b128 {vr(KFr,4)}, v{vk}')
    k.e(f'ds_read_b128 {vr(V1,4)}, v{vv} offset:512')
    k.e('s_waitcnt lgkmcnt(2)')
    k.e(f'v_mfma_f32_32x32x16_bf16 {vr(S[0],16)}, {vr(V0,4)}, {vr(Q[0],4)}, 0')
    k.e(f'v_mfma_f32_32x32x16_bf16 {vr(S[1],16)}, {vr(V0,4)}, {vr(Q[1],4)}, 0')
    k.e(f'ds_read_b128 {vr(V0,4)}, v{vv}')
    k.e('s_nop 9')
    def rowmax16(src, dst):
        k.e(f'v_max3_f32 v{dst}, v{src}, v{src+1}, v{src+2}')
        for q in range(3, 15, 2):
            k.e(f'v_max3_f32 v{dst}, v{dst}, v{src+q}, v{src+q+1}')
        k.e(f'v_max_f32 v{dst}, v{dst}, v{src+15}')
    def set_negm(m, nm):
        k.e(f'v_mov_b32 v{m+1}, v{m}')
        k.e('s_nop 1')
        k.e(f'v_permlane32_swap_b32 v{m}, v{m+1}')
        k.e('s_nop 1')
        k.e(f'v_max_f32 v{m}, v{m}, v{m+1}')
        for r_ in range(16):
            k.e(f'v_sub_f32 v{nm+r_}, 0, v{m}')
    rowmax16(S[0], tmp)
    set_negm(tmp, NM[0])
    rowmax16(S[1], tmp+2)
    k.e('s_waitcnt lgkmcnt(0)')
    k.e(f'v_mfma_f32_32x32x16_bf16 {vr(S[0],16)}, {vr(KFr,4)}, {vr(Q[0],4)}, {vr(NM[0],16)}')
    set_negm(tmp+2, NM[1])
    gwo, gw1, gx = tmp+2, tmp+3, tmp+1
    k.e(f'v_bfe_u32 v{tmp}, v{l}, 4, 1')
    k.e(f'v_lshlrev_b32 v{tmp}, 2, v{tmp}')
    k.e(f'v_and_b32 v{gx}, 7, v{l}')
    k.e(f'v_xor_b32 v{tmp}, v{tmp}, v{gx}')
    k.e(f'v_lshlrev_b32 v{tmp}, 4, v{tmp}')
    k.e(f'v_lshrrev_b32 v{vxt}, 3, v{l}')
    k.e(f'v_lshl_add_u32 v{gwo}, v{vxt}, 10, v{tmp}')
    k.e(f'v_lshrrev_b32 v{tmp}, 4, v{l}')
    k.e(f'v_xor_b32 v{gx}, v{gx}, v{tmp}')
    k.e(f's_and_b32 s{st0}, s{sw}, 1')
    k.e(f's_lshl_b32 s{st0}, s{st0}, 2')
    k.e(f'v_xor_b32 v{gx}, s{st0}, v{gx}')
    k.e(f'v_lshlrev_b32 v{gx}, 4, v{gx}')
    k.e(f'v_lshl_add_u32 v{gx}, v{vxt}, 10, v{gx}')
    k.e(f'v_lshlrev_b32 v{gw1}, 2, v{tmp}')
    k.e(f'v_and_b32 v{vxt}, 15, v{l}')
    k.e(f'v_xor_b32 v{gw1}, v{gw1}, v{vxt}')
    k.e(f'v_lshlrev_b32 v{gw1}, 4, v{gw1}')
    k.e(f'v_mul_u32_u24 v{tmp}, 3584, v{tmp}')
    k.e(f'v_add_u32 v{gw1}, v{gw1}, v{tmp}')
    k.stamp('loop')
    def MQK(s_): k.e(f'v_mfma_f32_32x32x16_bf16 {vr(S[s_],16)}, {vr(KFr,4)}, {vr(Q[s_],4)}, {vr(NM[s_],16)}')
    def MP(s_, u): k.e(f'v_mfma_f32_32x32x16_bf16 {vr(O[s_],16)}, {vr(V1 if u else V0,4)}, {vr(P[s_]+4*u,4)}, {vr(O[s_],16)}')
    def E(s_, a_, b_):
        for r_ in range(a_, b_): k.e(f'v_exp_f32 v{S[s_]+r_}, v{S[s_]+r_}')
    def C(s_, a_, b_):
        for q in range(a_, b_): k.e(f'v_cvt_pk_bf16_f32 v{P[s_]+q}, v{S[s_]+2*q}, v{S[s_]+2*q+1}')
    side = []
    for q in range(8):
        side.append(lambda q=q: (k.e(f's_add_u32 s{st0}, s{swoA}, {(q//4)*131072 + (q%4)*8192}'),
                                 vm(f'buffer_load_dwordx4 {ar(AWO+4*q,4)}, v{gwo}, {sr(SB,4)}, s{st0} offen')))
    for q in range(16):
        side.append(lambda q=q: (k.e(f's_add_u32 s{st0}, s{sw1A}, {((q//4)*64 + (q%4)*4)*3584}'),
                                 vm(f'buffer_load_dwordx4 {ar(AW1+4*q,4)}, v{gw1}, {sr(SC,4)}, s{st0} offen')))
    def xres_copy():
        k.e(f's_lshr_b32 s{st0}, s{sm}, 3')
        k.e(f's_lshl_b32 s{st1}, s{sg}, 2')
        k.e(f's_add_u32 s{st0}, s{st0}, s{st1}')
        k.e(f's_lshl_b32 s{st0}, s{st0}, 16')
        srd(k, SB, sX, sX+1, 65536, f's{st0}')
        k.e(f's_lshl_b32 s{st0}, s{sw}, 10')
        k.e(f's_add_u32 m0, s{st0}, {XRES}')
        k.e(f's_lshl_b32 s{st0}, s{sw}, 13')
        k.e(f's_and_b32 s{st1}, s{sm}, 7')
        k.e(f's_lshl_b32 s{st1}, s{st1}, 7')
        k.e(f's_add_u32 s{st0}, s{st0}, s{st1}')
        vm(f'buffer_load_dwordx4 v{gx}, {sr(SB,4)}, s{st0} offen lds')
        srd(k, SB, sWS, sWS+1, 2*MB, OF)
    side.append(xres_copy)
    def w2_touch():
        k.e(f'v_lshlrev_b32 v{tmp}, 7, v{l}')
        vm(f'global_load_dword v{dummy}, v{tmp}, {sr(sPB,2)}')
    def ho_touch():
        sbs, ssh, ssr, smk = st0, st1, st2, sit
        k.e(f's_lshr_b32 s{sd}, s{sm}, 3')
        k.e(f's_lshl_b32 s{ssh}, s{sg}, 2')
        k.e(f's_add_u32 s{sd}, s{sd}, s{ssh}')
        k.e(f's_and_b32 s{smk}, s{sm}, 7')
        k.e(f's_lshl_b32 s{sbs}, s{sd}, 13')
        k.e(f's_lshl_b32 s{ssh}, s{smk}, 9')
        k.e(f's_add_u32 s{sbs}, s{sbs}, s{ssh}')
        k.e(f's_add_u32 s{sbs}, s{sbs}, {ST}')
        k.e(f's_lshl_b32 s{sd}, s{sd}, 16')
        k.e(f's_lshl_b32 s{smk}, s{smk}, 12')
        k.e(f's_add_u32 s{sd}, s{sd}, s{smk}')
        k.e(f's_add_u32 s{sd}, s{sd}, {HF}')
        k.e(f's_cmp_eq_u32 s{sw}, 4')
        k.e(f's_cselect_b32 s{sbs}, s{sd}, s{sbs}')
        k.e(f's_cselect_b32 s{smk}, 31, 3')
        k.e(f's_cselect_b32 s{ssr}, 15, 12')
        k.e(f's_mov_b32 s{ssh}, 5')
        k.e(f's_lshl_b32 s{sd}, s{sg}, 8')
        k.e(f's_add_u32 s{sd}, s{sd}, s{sm}')
        k.e(f's_lshl_b32 s{sd}, s{sd}, 10')
        k.e(f's_add_u32 s{sd}, s{sd}, {OF}')
        k.e(f's_cmp_eq_u32 s{sw}, {15 if HEADMAP else 5}')
        k.e(f's_cselect_b32 s{sbs}, s{sd}, s{sbs}')
        k.e(f's_cselect_b32 s{smk}, 7, s{smk}')
        k.e(f's_cselect_b32 s{ssr}, 15, s{ssr}')
        k.e(f's_cselect_b32 s{ssh}, 3, s{ssh}')
        k.e(f'v_lshrrev_b32 v{tmp}, s{ssh}, v{l}')
        k.e(f'v_lshlrev_b32 v{tmp}, s{ssr}, v{tmp}')
        k.e(f's_cmp_ge_u32 s{sm}, 14')
        k.e(f's_cselect_b32 s{ssh}, 4, 0')
        k.e(f's_cselect_b32 s{ssr}, 14, 0')
        k.e(f's_lshl_b32 s{sd}, s{sg}, 3')
        k.e(f's_add_u32 s{sd}, s{sd}, s{ssh}')
        k.e(f's_add_u32 s{sd}, s{sd}, s{sr4}')
        k.e(f's_mul_i32 s{sd}, s{sd}, {112*1024}')
        k.e(f's_sub_u32 s{ssr}, s{sm}, s{ssr}')
        k.e(f's_min_u32 s{ssr}, s{ssr}, 13')
        k.e(f's_lshl_b32 s{ssr}, s{ssr}, 13')
        k.e(f's_add_u32 s{sd}, s{sd}, s{ssr}')
        k.e(f's_add_u32 s{sd}, s{sd}, {FF}')
        k.e(f's_cmp_eq_u32 s{srole}, 0')
        k.e(f's_cselect_b32 s{sbs}, s{sd}, s{sbs}')
        k.e(f's_cselect_b32 s{smk}, 63, s{smk}')
        k.e(f's_cselect_b32 s{ssr}, 0, -1')
        k.e(f'v_and_b32 v{tmp}, s{ssr}, v{tmp}')
        k.e(f'v_and_b32 v{vxt}, s{smk}, v{l}')
        k.e(f'v_lshl_add_u32 v{tmp}, v{vxt}, 7, v{tmp}')
        k.e(f'v_add_u32 v{vxt}, s{sbs}, v{tmp}')
        k.e(f'v_lshlrev_b32 v{tmp}, 7, v{l}')
    def staggered(j):
        for j0, txt in ((HO0, f'global_load_dword v{dummy}, v{vxt}, {sr(sWS,2)}'), (W20, f'global_load_dword v{dummy}, v{tmp}, {sr(sPB,2)}')):
            if j0 is not None and j >= j0 and (j - j0) % STEP == 0 and (j - j0) // STEP < 8:
                a_ = L('tc')
                k.e(f's_cmp_lg_u32 s{sw}, {(j - j0) // STEP}')
                k.e(f's_cbranch_scc1 {k.lab(a_)}')
                k.e(txt)
                k.label(a_)
    def code_touch():
        a_ = L('pc')
        k.e(f's_getpc_b64 {sr(sPB,2)}')
        k.label(a_)
        k.e(f's_add_u32 s{sPB}, s{sPB}, {k.lab("fin")}-{k.lab(a_)}')
        k.e(f's_addc_u32 s{sPB+1}, s{sPB+1}, 0')
        k.e(f's_lshl_b32 s{st0}, s{sw}, 13')
        k.e(f's_min_u32 s{st0}, s{st0}, {k.lab("slow")}-{k.lab("fin")}-8192')
        k.e(f'v_lshlrev_b32 v{tmp}, 7, v{l}')
        k.e(f'v_add_u32 v{tmp}, s{st0}, v{tmp}')
        vm(f'global_load_dword v{dummy}, v{tmp}, {sr(sPB,2)}')
    if CODE:
        side.append(code_touch)
    def xt_store():
        a_ = L('xt')
        k.e(f's_cmp_lg_u32 s{sw}, 0')
        k.e(f's_cbranch_scc1 {k.lab(a_)}')
        k.e(f'v_mov_b32 v{tmp}, 0')
        k.e(f'v_mov_b32 v{vxt}, s{sfast}')
        k.e(f's_lshl_b32 s{st0}, s{sm}, 2')
        k.e('s_mov_b64 exec, 1')
        k.e(f'buffer_store_dword v{vxt}, v{tmp}, {sr(SFL,4)}, s{st0} offen sc1')
        k.e('s_mov_b64 exec, -1')
        k.label(a_)
    def xt_load():
        k.e(f'v_lshlrev_b32 v{tmp}, 2, v{t}')
        vm(f'buffer_load_dword v{vxt}, v{tmp}, {sr(SFL,4)}, 0 offen sc1')
    for j in range(32):
        i = j % UN
        k.c(f'key tile {j}')
        if KVB and j >= 15:
            if j in (15, 19, 23, 28): k.e(f's_setprio {3 - (15, 19, 23, 28).index(j)}')
        elif not KVFAST:
            k.e(f's_setprio {(2 - i) & 3}')
        elif j % 8 == 0:
            k.e(f's_setprio {3 - j // 8}')
        MQK(1)
        E(0, 0, 3)
        MP(1, 1)
        k.e(f'ds_read_b128 {vr(V1,4)}, v{vv} offset:{i*1024+512}')
        k.e(f'ds_read_b128 {vr(KFr,4)}, v{vk} offset:{(j+1)*1024}')
        E(0, 3, 8)
        C(0, 0, 4)
        if KVB:
            if j + 4 < 16: kv_round(j + 4)
        elif KVFAST:
            for r in (2*j + 4, 2*j + 5):
                if r < 16: kv_round(r)
        elif j % 2 == 0 and j // 2 + 4 < 16:
            kv_round(j // 2 + 4)
        E(0, 8, 11)
        k.e('s_waitcnt lgkmcnt(2)')
        MP(0, 0)
        E(0, 11, 16)
        C(0, 4, 8)
        k.e('s_waitcnt lgkmcnt(0)')
        E(1, 0, 2)
        MQK(0)
        E(1, 2, 5)
        MP(0, 1)
        E(1, 5, 8)
        C(1, 0, 4)
        for _ in range(2 if j >= SIDE2 else SPT):
            if side and j >= SIDE0:
                side.pop(0)()
        if j == 29:
            xt_load()
        if j == 2:
            xt_store()
        if j == 3:
            ho_touch()
        staggered(j)
        E(1, 8, 11)
        MP(1, 0)
        if i == UN - 1:
            k.e(f'v_add_u32 v{vv}, v{vv}, v{vinc}')
            k.e(f'ds_read_b128 {vr(V0,4)}, v{vv}')
        else:
            k.e(f'ds_read_b128 {vr(V0,4)}, v{vv} offset:{(i+1)*1024}')
        E(1, 11, 16)
        C(1, 4, 8)
        if j == 0:
            kvsync(1)
        elif KVB:
            if j in (2, 6, 10): kvsync((j + 5) // 2)
            if j == 14: kvsync(15)
        elif KVFAST:
            if j == 2: kvsync(3)
            if j == 6: kvsync(15)
        elif i == 2 and j + 2 < 32:
            kvsync((j + 5) // 2)
    assert not side
    k.stamp('loopend')
    k.e('s_setprio 0')
    MP(1, 1)
    k.e(f's_mul_i32 s{st0}, s{sw}, 2304')
    k.e(f's_add_u32 s{st0}, s{st0}, {EXA}')
    k.e(f'v_add_u32 v{tmp}, s{st0}, v{vl16}')
    k.e(f's_xor_b32 s{st1}, s{sw}, 4')
    k.e(f's_mul_i32 s{st1}, s{st1}, 2304')
    k.e(f's_add_u32 s{st1}, s{st1}, {EXA}')
    k.e(f'v_add_u32 v{tmp+1}, s{st1}, v{vl16}')
    k.e(f'v_lshlrev_b32 v{tmp+2}, 2, v{l}')
    k.e(f'v_add_u32 v{tmp+3}, s{st1}, v{tmp+2}')
    k.e(f'v_add_u32 v{tmp+2}, s{st0}, v{tmp+2}')
    k.e('s_waitcnt vmcnt(0)')
    k.e(f'v_cmp_ne_u32 vcc, s{sfast}, v{vxt}')
    k.e(f'ds_write_b128 v{tmp}, {vr(O[1],4)}')
    k.e(f'ds_write_b128 v{tmp}, {vr(O[1]+4,4)} offset:1024')
    k.e(f'ds_write_b32 v{tmp+2}, v{O[1]+8} offset:2048')
    k.e('s_cmp_eq_u64 vcc, 0')
    k.e(f's_cselect_b32 s{sfast}, 1, 0')
    k.e('s_waitcnt lgkmcnt(0)')
    k.e('s_barrier')
    k.e(f'ds_read_b32 v{S[0]+8}, v{tmp+3} offset:2048')
    k.e(f'ds_read_b128 {vr(S[0],4)}, v{tmp+1}')
    k.e(f'ds_read_b128 {vr(S[0]+4,4)}, v{tmp+1} offset:1024')
    k.e(f's_mov_b32 s{st0}, {f32(2.0**40)}')
    k.e('s_waitcnt lgkmcnt(0)')
    for r_ in (8, 0, 1, 2, 3, 4, 5, 6, 7):
        k.e(f'v_add_f32 v{O[0]+r_}, v{O[0]+r_}, v{S[0]+r_}')
    k.e(f'v_cmp_nlt_f32 vcc, v{O[0]+8}, s{st0}')
    k.e('s_nop 0')
    k.e(f's_cbranch_vccnz {k.lab("slow")}')
    k.label('fin')
    k.e(f'v_rcp_f32 v{tmp}, v{O[0]+8}')
    k.e(f's_lshl_b32 s{st0}, s{stb}, 15')
    k.e(f's_lshl_b32 s{st1}, s{shead}, 10')
    k.e(f's_add_u32 s{st0}, s{st0}, s{st1}')
    for r_ in range(8):
        k.e(f'v_mul_f32 v{O[0]+r_}, v{O[0]+r_}, v{tmp}')
    for q in range(4):
        k.e(f'v_cvt_pk_bf16_f32 v{P[0]+q}, v{O[0]+2*q}, v{O[0]+2*q+1}')
    stores([f'buffer_store_dwordx4 {vr(P[0],4)}, v{vl16}, {sr(SB,4)}, s{st0} offen'], HEADMAP)
    slow_regs = dict(Q=Q, S=S, NM=NM, O=O, P=P, KFr=KFr, V0=V0, V1=V1, vk=vk, vv=vv)
    sfl = sb
    k.e(f's_lshl_b32 s{sfl}, s{sr4}, 8')
    k.e(f's_lshl_b32 s{st0}, s{shead}, 3')
    k.e(f's_add_u32 s{sfl}, s{sfl}, s{st0}')
    k.e(f's_lshl_b32 s{st0}, s{srole}, 2')
    k.e(f's_add_u32 s{sfl}, s{sfl}, s{st0}')
    k.e(f's_add_u32 s{sfl}, s{sfl}, {FA_O}')
    srb, scb = sa, sc_
    k.e(f's_lshr_b32 s{srb}, s{sm}, 3')
    k.e(f's_lshl_b32 s{st0}, s{sg}, 2')
    k.e(f's_add_u32 s{srb}, s{srb}, s{st0}')
    k.e(f's_and_b32 s{scb}, s{sm}, 7')
    k.e(f's_lshl_b32 s{st0}, s{sr4}, 12')
    k.e(f's_lshl_b32 s{st1}, s{srole}, 15')
    k.e(f's_add_u32 s{st0}, s{st0}, s{st1}')
    k.e(f'v_add_u32 v{tmp+2}, s{st0}, v{vl16}')
    for q in range(8):
        k.e(f'ds_write_b128 v{tmp+2}, {ar(AWO+4*q,4)} offset:{(q//4)*16384 + (q%4)*1024}')
    if HEADMAP:
        k.e(f's_lshl_b32 s{st0}, s{sqb}, 12')
        k.e(f's_add_u32 s{st0}, s{st0}, {FL}')
        srd(k, SC, sWS, sWS+1, 4096, f's{st0}')
        flag(sfl, 0, SC, True)
    else:
        flag(sfl, 0)
    k.stamp('flagA')
    def w1_flush(q0=0, q1=16):
        if q0 == 0:
            k.e(f's_lshl_b32 s{st0}, s{sr4}, 12')
            k.e(f's_lshl_b32 s{st1}, s{srole}, 16')
            k.e(f's_add_u32 s{st0}, s{st0}, s{st1}')
            k.e(f'v_add_u32 v{tmp+3}, s{st0}, v{vl16}')
        for q in range(q0, q1):
            k.e(f'ds_write_b128 v{tmp+3}, {ar(AW1+4*q,4)} offset:{(q//4)*16384 + (q%4)*1024}')
    def w1_arrive():
        k.e(f'v_mov_b32 v{tmp}, {CNT}')
        k.e(f'v_mov_b32 v{tmp+1}, 1')
        k.e('s_waitcnt lgkmcnt(0)')
        k.e('s_mov_b64 exec, 1')
        k.e(f'ds_add_u32 v{tmp}, v{tmp+1}')
        k.e('s_mov_b64 exec, -1')
    def w1_wait():
        a_ = L('wc')
        k.e(f'v_mov_b32 v{tmp}, {CNT}')
        k.label(a_)
        k.e(f'ds_read_b32 v{tmp+1}, v{tmp}')
        k.e('s_waitcnt lgkmcnt(0)')
        k.e(f'v_cmp_gt_u32 vcc, 8, v{tmp+1}')
        k.e(f's_cbranch_vccnz {k.lab(a_)}')
    def w1_addr(slots):
        aw_ = [[k.v() for i in slots] for s_ in range(2)]
        k.e(f'v_bfe_u32 v{tmp}, v{l}, 2, 2')
        k.e(f'v_lshl_add_u32 v{tmp+1}, v{h}, 2, v{tmp}')
        k.e(f'v_lshlrev_b32 v{tmp+1}, 8, v{tmp+1}')
        k.e(f'v_bfe_u32 v{tmp+2}, v{l}, 4, 1')
        k.e(f'v_lshl_add_u32 v{tmp+1}, v{tmp+2}, 5, v{tmp+1}')
        k.e(f'v_and_b32 v{tmp+2}, 3, v{l}')
        k.e(f'v_lshl_add_u32 v{tmp+1}, v{tmp+2}, 3, v{tmp+1}')
        for i in slots:
            k.e(f's_xor_b32 s{st0}, s{sr4}, {i}')
            k.e(f'v_xor_b32 v{tmp+2}, s{st0}, v{tmp}')
            k.e(f'v_lshl_add_u32 v{aw_[0][i]}, v{tmp+2}, 6, v{tmp+1}')
            k.e(f'v_add_u32 v{aw_[1][i]}, 65536, v{aw_[0][i]}')
        return aw_
    k.e(f's_cmp_eq_u32 s{srole}, 0')
    k.e(f's_cbranch_scc1 {k.lab("comp")}')

    k.vn = BASE
    vow = [k.v() for _ in range(4)]
    WR = k.v(112, 4)
    law = w1_addr([0])
    LSEL = selector(k, l, tmp)
    LWF = [k.v(4) for _ in range(3)]
    LCS = k.v(4)
    k.e(f'v_bfe_u32 v{tmp}, v{l}, 4, 1')
    k.e(f'v_lshlrev_b32 v{tmp}, 2, v{tmp}')
    k.e(f'v_and_b32 v{tmp+1}, 7, v{l}')
    k.e(f'v_xor_b32 v{tmp}, v{tmp}, v{tmp+1}')
    k.e(f'v_lshlrev_b32 v{tmp}, 4, v{tmp}')
    k.e(f'v_lshrrev_b32 v{tmp+2}, 3, v{l}')
    k.e(f'v_lshl_add_u32 v{vow[0]}, v{tmp+2}, 10, v{tmp}')
    for i in range(1, 4):
        k.e(f'v_add_u32 v{vow[i]}, {i*(8192-1024)}, v{vow[0]}')
    swo, smw = sPA, sPA+1
    k.e(f's_lshl_b32 s{swo}, s{sr4}, 15')
    k.e(f's_lshl_b32 s{st0}, s{scb}, 7')
    k.e(f's_add_u32 s{swo}, s{swo}, s{st0}')
    k.e(f's_lshl_b32 s{smw}, s{sr4}, 12')
    sxo, smx = sPB, sPB+1
    k.e(f's_lshl_b32 s{sxo}, s{srb}, 16')
    k.e(f's_lshr_b32 s{st0}, s{sr4}, 1')
    k.e(f's_lshl_b32 s{st0}, s{st0}, 15')
    k.e(f's_and_b32 s{st1}, s{sr4}, 1')
    k.e(f's_lshl_b32 s{st1}, s{st1}, 12')
    k.e(f's_add_u32 s{smx}, s{st0}, s{st1}')
    k.e(f's_add_u32 s{sxo}, s{sxo}, s{smx}')
    srd(k, SA, sW12+2, sW12+3, 1792*1024)
    k.e(f's_lshr_b32 s{st0}, s{sm}, 3')
    k.e(f's_lshl_b32 s{st0}, s{st0}, 8')
    k.e(f's_add_u32 s{st0}, s{st0}, {FA_O}')
    poll(st0, -1, -1)
    k.stamp('L:pollA')
    def ochunk(c):
        k.e(f's_add_u32 m0, s{smx}, {65536 + c*8192}')
        k.e(f's_add_u32 s{st0}, s{sxo}, {c*8192}')
        for i in range(4):
            k.e(f'buffer_load_dwordx4 v{vl16}, {sr(SB,4)}, s{st0} offen offset:{i*1024}{LD} lds')
    ochunk(0); ochunk(1)
    k.e('s_waitcnt vmcnt(4) lgkmcnt(0)')
    k.e('s_barrier')
    ochunk(2); ochunk(3)
    for c in range(1, 4):
        k.e(f's_waitcnt vmcnt({4*(3-c)})')
        k.e('s_barrier')
    k.e('s_barrier')
    k.stamp('L:b3end')
    a_, b_ = L('ld'), L('ld')
    k.e(f's_cmp_ge_u32 s{sm}, 28')
    k.e(f's_cbranch_scc1 {k.lab(a_)}')
    EX = 9*16384
    w1_flush()
    w1_arrive()
    if CSL:
        w1_wait()
        for n in range(32):
            if n == 0:
                for n2 in range(2):
                    for w2 in range(2):
                        k.e(f'ds_read_b64_tr_b16 {vr(LWF[n2]+2*w2,2)}, v{law[0][0]} offset:{n2*4096 + w2*2048}')
            if n + 2 < 32:
                for w2 in range(2):
                    k.e(f'ds_read_b64_tr_b16 {vr(LWF[(n+2)%3]+2*w2,2)}, v{law[(n+2)//16][0]} offset:{((n+2)%16)*4096 + w2*2048}')
            k.e(f's_waitcnt lgkmcnt({min(4, 2*(31-n))})')
            k.e(f'v_mfma_f32_16x16x32_bf16 {vr(LCS,4)}, {vr(LSEL,4)}, {vr(LWF[n%3],4)}, {"0" if n == 0 else vr(LCS,4)}')
        k.e(f's_lshl_b32 s{st0}, s{sr4}, 7')
        k.e(f's_add_u32 s{st0}, s{st0}, {EX}')
        k.e(f'v_lshlrev_b32 v{tmp}, 2, v{t}')
        k.e(f'v_add_u32 v{tmp}, s{st0}, v{tmp}')
        k.e('s_nop 3')
        k.e(f'ds_write_b32 v{tmp}, v{LCS}')
        k.e('s_waitcnt lgkmcnt(0)')
    k.label(a_)
    def wreg(q, i):
        q = 0 if q == 13 else q
        return vr(WR+16*q+4*i, 4) if q < 7 else ar(AWO+16*(q-7)+4*i, 4)
    def wload(q):
        k.e(f's_add_u32 s{st0}, s{swo}, {q*131072}')
        for i in range(4):
            k.e(f'buffer_load_dwordx4 {wreg(q,i)}, v{vow[i]}, {sr(SA,4)}, s{st0} offen offset:{i*1024}')
    for q in range(13): wload(q)
    k.stamp('+L:w2iss')
    k.e(f's_cmp_ge_u32 s{sm}, 28')
    k.e(f's_cbranch_scc1 {k.lab(b_)}')
    k.e('s_barrier')
    k.label(b_)
    wa = [tmp+1, tmp+2, tmp+3]
    k.e(f'v_add_u32 v{wa[0]}, s{smw}, v{vl16}')
    k.e(f'v_add_u32 v{wa[1]}, 65536, v{wa[0]}')
    k.e(f'v_add_u32 v{wa[2]}, 131072, v{wa[0]}')
    def wflush(q):
        for i in range(4):
            off = (q % 10)*16384 + i*1024
            k.e(f'ds_write_b128 v{wa[off//65536]}, {wreg(q,i)} offset:{off % 65536}')
    for q in range(4):
        k.e(f's_waitcnt vmcnt({4*(12-q)})')
        wflush(q)
    k.e('s_waitcnt lgkmcnt(0)')
    k.e('s_barrier')
    k.stamp('L:w2')
    wload(13)
    for q in range(4, 10):
        k.e(f's_waitcnt vmcnt({4*(13-q)})')
        wflush(q)
    k.e('s_waitcnt lgkmcnt(0)')
    k.e('s_barrier')
    for q in range(10, 14):
        k.e(f's_waitcnt vmcnt({4*(13-q)})')
        wflush(q)
    k.e('s_waitcnt lgkmcnt(0)')
    k.e('s_barrier')
    k.e(f's_branch {k.lab("done")}')

    k.label('comp')
    if PRIO: k.e('s_setprio 3')
    k.vn = BASE
    stq, scq = sPA, sPA+1
    k.e(f's_lshr_b32 s{stq}, s{sr4}, 1')
    k.e(f's_and_b32 s{scq}, s{sr4}, 1')
    axb = k.v(); awb = [k.v(), k.v()]
    axr = [k.v() for _ in range(4)]
    k.e(f's_lshl_b32 s{st0}, s{stq}, 15')
    k.e(f's_add_u32 s{st0}, s{st0}, 65536')
    k.e(f'v_add_u32 v{axb}, s{st0}, v{vl16}')
    k.e(f'v_bfe_u32 v{tmp}, v{l}, 2, 2')
    k.e(f'v_lshl_add_u32 v{tmp+1}, v{h}, 2, v{tmp}')
    k.e(f'v_lshlrev_b32 v{tmp+1}, 7, v{tmp+1}')
    k.e(f'v_lshrrev_b32 v{tmp}, 1, v{tmp}')
    k.e(f'v_xor_b32 v{tmp}, s{scq}, v{tmp}')
    k.e(f'v_lshl_add_u32 v{tmp+1}, v{tmp}, 6, v{tmp+1}')
    k.e(f'v_bfe_u32 v{tmp}, v{l}, 4, 1')
    k.e(f'v_lshl_add_u32 v{tmp+1}, v{tmp}, 5, v{tmp+1}')
    k.e(f'v_and_b32 v{tmp}, 3, v{l}')
    k.e(f'v_lshl_add_u32 v{awb[0]}, v{tmp}, 3, v{tmp+1}')
    k.e(f'v_add_u32 v{awb[1]}, 65536, v{awb[0]}')
    k.e(f'v_bfe_u32 v{tmp}, v{t}, 1, 3')
    k.e(f's_lshl_b32 s{st0}, s{scq}, 2')
    k.e(f'v_xor_b32 v{tmp}, s{st0}, v{tmp}')
    k.e(f'v_lshlrev_b32 v{tmp+1}, 7, v{t}')
    k.e(f'v_lshl_add_u32 v{tmp+1}, v{h}, 3, v{tmp+1}')
    k.e(f's_lshl_b32 s{st0}, s{stq}, 12')
    k.e(f's_add_u32 s{st0}, s{st0}, {XRES}')
    k.e(f'v_add_u32 v{tmp+1}, s{st0}, v{tmp+1}')
    for g_ in range(4):
        k.e(f'v_xor_b32 v{tmp+2}, {g_}, v{tmp}')
        k.e(f'v_lshl_add_u32 v{axr[g_]}, v{tmp+2}, 4, v{tmp+1}')
    KEEP5 = k.vn
    DEPTH = 4
    XF = [k.v(4) for _ in range(DEPTH)]
    WF = [k.v(4) for _ in range(DEPTH)]
    ACC = k.v(16)
    RES = k.v(8, 4); U = k.v(16); OUT = k.v(8, 4)
    srd(k, SB, sWS, sWS+1, 2*MB, HF)
    srd(k, SC, sWS, sWS+1, 256*1024, ST)
    def gemm64(NKS, xaddr, waddr, tag, extra=None):
        def reads(n):
            p = n % DEPTH
            xa, xo = xaddr(n); wa, wo = waddr(n)
            k.e(f'ds_read_b128 {vr(XF[p],4)}, v{xa} offset:{xo}')
            for w2 in range(2):
                k.e(f'ds_read_b64_tr_b16 {vr(WF[p]+2*w2,2)}, v{wa} offset:{wo + w2*1024}')
        k.e('s_waitcnt lgkmcnt(0)')
        k.e('s_barrier')
        k.stamp(tag + ':c0')
        reads(0); reads(1)
        for n in range(NKS):
            if n + 2 < NKS:
                if (n + 2) % 8 == 0:
                    k.e('s_waitcnt lgkmcnt(0)')
                    k.e('s_barrier')
                    reads(n + 2)
                else:
                    reads(n + 2)
                    if (n + 2) % 8 != 1:
                        k.e('s_waitcnt lgkmcnt(6)')
            else:
                k.e(f's_waitcnt lgkmcnt({3*(NKS-1-n)})')
            Cop = '0' if n == 0 else vr(ACC, 16)
            p = n % DEPTH
            k.e(f'v_mfma_f32_32x32x16_bf16 {vr(ACC,16)}, {vr(WF[p],4)}, {vr(XF[p],4)}, {Cop}')
            if extra: extra(n)
    def extra3(n):
        if n == 28:
            for g_ in range(4):
                k.e(f'ds_read_b64 {vr(RES+2*g_,2)}, v{axr[g_]}')
    gemm64(32, lambda n: (axb, n*1024), lambda n: (awb[0], n*2048), 'p3', extra3)
    k.e('s_barrier')
    k.stamp('p3:end')
    for d in range(8):
        k.e(f'v_lshlrev_b32 v{U+2*d}, 16, v{RES+d}')
        k.e(f'v_and_b32 v{U+2*d+1}, 0xffff0000, v{RES+d}')
    k.e(f's_lshl_b32 s{st0}, s{srb}, 1')
    k.e(f's_add_u32 s{st0}, s{st0}, s{stq}')
    k.e(f's_lshl_b32 s{st2}, s{st0}, 12')
    k.e(f's_and_b32 s{sfl}, s{st0}, 7')
    k.e(f's_lshl_b32 s{sfl}, s{sfl}, 6')
    k.e(f's_lshl_b32 s{st0}, s{st0}, 15')
    k.e(f's_lshl_b32 s{st1}, s{scb}, 1')
    k.e(f's_add_u32 s{st1}, s{st1}, s{scq}')
    k.e(f's_lshl_b32 s{sit}, s{st1}, 11')
    k.e(f's_add_u32 s{st0}, s{st0}, s{sit}')
    k.e(f's_lshl_b32 s{sit}, s{st1}, 8')
    k.e(f's_add_u32 s{st2}, s{st2}, s{sit}')
    k.e(f's_lshl_b32 s{sit}, s{st1}, 2')
    k.e(f's_add_u32 s{sfl}, s{sfl}, s{sit}')
    k.e(f's_add_u32 s{sfl}, s{sfl}, {F3_O}')
    for r_ in range(0, 16, 2):
        k.e(f'v_pk_add_f32 {vr(U+r_,2)}, {vr(U+r_,2)}, {vr(ACC+r_,2)}')
    for q in range(8):
        k.e(f'v_cvt_pk_bf16_f32 v{OUT+q}, v{U+2*q}, v{U+2*q+1}')
    stores([f'buffer_store_dwordx4 {vr(OUT,4)}, v{vl16}, {sr(SB,4)}, s{st0} offen',
            f'buffer_store_dwordx4 {vr(OUT+4,4)}, v{vl16}, {sr(SB,4)}, s{st0} offen offset:1024'])
    SQ = ACC
    k.e(f'v_pk_mul_f32 {vr(SQ,2)}, {vr(U,2)}, {vr(U,2)}')
    for r_ in range(2, 16, 2):
        k.e(f'v_pk_fma_f32 {vr(SQ,2)}, {vr(U+r_,2)}, {vr(U+r_,2)}, {vr(SQ,2)}')
    for r_ in range(2, 16, 2):
        k.e(f'v_pk_add_f32 {vr(U,2)}, {vr(U,2)}, {vr(U+r_,2)}')
    k.e(f'v_add_f32 v{SQ+2}, v{U}, v{U+1}')
    k.e(f'v_add_f32 v{SQ+3}, v{SQ}, v{SQ+1}')
    k.e(f'v_mov_b32 v{SQ+4}, v{SQ+2}')
    k.e(f'v_mov_b32 v{SQ+5}, v{SQ+3}')
    k.e(f'v_lshlrev_b32 v{tmp+2}, 3, v{t}')
    k.e('s_nop 0')
    k.e(f'v_permlane32_swap_b32 v{SQ+2}, v{SQ+4}')
    k.e(f'v_permlane32_swap_b32 v{SQ+3}, v{SQ+5}')
    for q in range(8):
        k.e(f'v_accvgpr_write_b32 a{HK+q}, v{OUT+q}')
    k.e(f'v_pk_add_f32 {vr(SQ+2,2)}, {vr(SQ+2,2)}, {vr(SQ+4,2)}')
    stores([f'buffer_store_dwordx2 {vr(SQ+2,2)}, v{tmp+2}, {sr(SC,4)}, s{st2} offen'])
    a_ = L('w1')
    k.e(f's_cmp_ge_u32 s{sm}, 28')
    k.e(f's_cbranch_scc1 {k.lab(a_)}')
    w1_flush(0, 6)
    k.label(a_)
    flag(sfl, 0)
    k.stamp('flag3')
    k.e(f's_cmp_ge_u32 s{sm}, 28')
    k.e(f's_cbranch_scc1 {k.lab("c5")}')

    k.vn = KEEP5
    w1_flush(6, 16)
    stb4, scb4 = sPB, sPB+1
    k.e(f's_cmp_ge_u32 s{sm}, 14')
    k.e(f's_cselect_b32 s{st1}, 1, 0')
    k.e(f's_lshl_b32 s{stb4}, s{st1}, 2')
    k.e(f's_add_u32 s{stb4}, s{stb4}, s{sr4}')
    k.e(f's_mul_i32 s{st1}, s{st1}, 14')
    k.e(f's_sub_u32 s{scb4}, s{sm}, s{st1}')
    aw = w1_addr(range(4))
    SEL = None if CSL else selector(k, l, tmp)
    vst = k.v()
    k.e(f'v_lshlrev_b32 v{vst}, 3, v{t}')
    k.e(f'v_lshl_add_u32 v{vst}, v{h}, 11, v{vst}')
    k.e(f's_lshl_b32 s{st0}, s{sg}, 3')
    k.e(f's_add_u32 s{st0}, s{st0}, s{stb4}')
    k.e(f's_lshl_b32 s{st1}, s{st0}, 15')
    k.e(f's_add_u32 s{st1}, s{st1}, {HF}')
    srd(k, SA, sWS, sWS+1, 32768, f's{st1}')
    k.e(f's_lshl_b32 s{st1}, s{st0}, 12')
    k.e(f's_add_u32 s{st1}, s{st1}, {ST}')
    srd(k, SC, sWS, sWS+1, 4096, f's{st1}')
    k.e(f's_mul_i32 s{st1}, s{st0}, {112*1024}')
    k.e(f's_add_u32 s{st1}, s{st1}, {FF}')
    srd(k, SB, sWS, sWS+1, 112*1024, f's{st1}')
    w1_arrive()
    k.e(f's_lshl_b32 s{st0}, s{stb4}, 6')
    k.e(f's_add_u32 s{st0}, s{st0}, {F3_O}')
    poll(st0, 0xffff, 0)
    k.stamp('poll3')
    NH = 24
    H = AWO
    STP = k.v(16, 2)
    WF4 = [[k.v(4) for i in range(4)] for p in range(2)]
    ACC4 = [k.v(16) for i in range(4)]
    CSA = k.v(4)
    mean, rstd = k.v(), k.v()
    nv4 = [0]; doneH = {}
    def hload(n):
        if n % 4 == 0:
            k.e(f's_mov_b32 s{st2}, {n*1024}')
        k.e(f'buffer_load_dwordx4 {ar(H+4*(n % NH),4)}, v{vl16}, {sr(SA,4)}, s{st2} offen offset:{(n%4)*1024}{LD}')
        nv4[0] += 1; doneH[n] = nv4[0]
    for n in range(8): hload(n)
    for q in range(8):
        k.e(f'buffer_load_dwordx2 {vr(STP+2*q,2)}, v{vst}, {sr(SC,4)}, 0 offen offset:{q*256}{LD}')
    nv4[0] += 8; doneS = nv4[0]
    for n in range(8, HUP): hload(n)
    def rd(n, i):
        for w2 in range(2):
            k.e(f'ds_read_b64_tr_b16 {vr(WF4[n&1][i]+2*w2,2)}, v{aw[n//16][i]} offset:{(n%16)*4096 + w2*2048}')
    w1_wait()
    k.stamp('p4:b0')
    for i in range(4): rd(0, i)
    nh = [HUP]
    for n in range(32):
        p = n & 1
        X = H + 4*(n % NH)
        if n in (4, 8, 16, 24): k.stamp(f'+p4k{n}')
        k.e(f's_waitcnt vmcnt({nv4[0] - doneH[n]})')
        for i in range(4):
            k.e(f's_waitcnt lgkmcnt({6 if n + 1 < 32 else 2*(3-i)})')
            Cop = '0' if n == 0 else vr(ACC4[i], 16)
            k.e(f'v_mfma_f32_32x32x16_bf16 {vr(ACC4[i],16)}, {vr(WF4[p][i],4)}, {ar(X,4)}, {Cop}')
            if n + 1 < 32: rd(n + 1, i)
            if i in (1, 3) and nh[0] < 32 and nh[0] - NH < n:
                hload(nh[0]); nh[0] += 1
        if not CSL:
            Cop = '0' if n == 0 else vr(CSA, 4)
            k.e(f'v_mfma_f32_16x16x32_bf16 {vr(CSA,4)}, {vr(SEL,4)}, {vr(WF4[p][0],4)}, {Cop}')
        if n == 12:
            assert doneH[12] > doneS
            for q in (4, 2, 1):
                for z in range(q):
                    k.e(f'v_add_f32 v{STP+2*z}, v{STP+2*z}, v{STP+2*(z+q)}')
                    k.e(f'v_add_f32 v{STP+2*z+1}, v{STP+2*z+1}, v{STP+2*(z+q)+1}')
        if n == 13:
            ln_stats(k, STP, STP+1, STP+2, mean, rstd)
    assert nh[0] == 32
    k.stamp('p4:end')
    a0, a2 = aw[0][0], aw[0][1]
    nm, rs2 = STP + 4, STP + 6
    k.e(f's_lshl_b32 s{st0}, s{sr4}, 7')
    k.e(f's_add_u32 s{st0}, s{st0}, {EX}')
    k.e(f'v_lshlrev_b32 v{a0}, 2, v{t}')
    k.e(f'v_add_u32 v{a0}, s{st0}, v{a0}')
    k.e(f'v_lshlrev_b32 v{a2}, 4, v{h}')
    k.e(f'v_add_u32 v{a2}, {EX}, v{a2}')
    k.e(f'v_sub_f32 v{nm}, 0, v{mean}')
    k.e(f'v_mov_b32 v{rs2}, v{rstd}')
    if not CSL:
        k.e(f'ds_write_b32 v{a0}, v{CSA}')
        k.e('s_waitcnt lgkmcnt(0)')
    k.e('s_barrier')
    CS = [WF4[0][0], WF4[1][0]]
    def csread(i):
        k.e(f's_xor_b32 s{st0}, s{sr4}, {i}')
        k.e(f's_lshl_b32 s{st0}, s{st0}, 7')
        k.e(f'v_add_u32 v{a0}, s{st0}, v{a2}')
        for g_ in range(4):
            k.e(f'ds_read_b128 {vr(CS[i&1]+4*g_,4)}, v{a0} offset:{g_*32}')
    csread(0); csread(1)
    for i in range(4):
        k.e(f's_waitcnt lgkmcnt({4 if i < 3 else 0})')
        for r_ in range(0, 16, 2):
            k.e(f'v_pk_fma_f32 {vr(ACC4[i]+r_,2)}, {vr(CS[i&1]+r_,2)}, {vr(nm,2)}, {vr(ACC4[i]+r_,2)} op_sel_hi:[1,0,1]')
        if i + 2 < 4: csread(i + 2)
        for r_ in range(0, 16, 2):
            k.e(f'v_pk_mul_f32 {vr(ACC4[i]+r_,2)}, {vr(ACC4[i]+r_,2)}, {vr(rs2,2)} op_sel_hi:[1,0]')
        for q in range(8):
            k.e(f'v_cvt_pk_bf16_f32 v{ACC4[i]+q}, v{ACC4[i]+2*q}, v{ACC4[i]+2*q+1}')
        for q in range(8):
            k.e(f'v_pk_max_i16 v{ACC4[i]+q}, v{ACC4[i]+q}, 0')
        k.e(f's_xor_b32 s{st0}, s{sr4}, {i}')
        k.e(f's_lshl_b32 s{st0}, s{st0}, 11')
        k.e(f's_lshl_b32 s{st1}, s{scb4}, 13')
        k.e(f's_add_u32 s{st0}, s{st0}, s{st1}')
        stores([f'buffer_store_dwordx4 {vr(ACC4[i],4)}, v{vl16}, {sr(SB,4)}, s{st0} offen',
                f'buffer_store_dwordx4 {vr(ACC4[i]+4,4)}, v{vl16}, {sr(SB,4)}, s{st0} offen offset:1024'])
    k.e(f's_lshl_b32 s{sfl}, s{stb4}, 6')
    k.e(f's_lshl_b32 s{st0}, s{scb4}, 2')
    k.e(f's_add_u32 s{sfl}, s{sfl}, s{st0}')
    k.e(f's_add_u32 s{sfl}, s{sfl}, {F4_O}')
    flag(sfl, 0)
    k.stamp('flag4')

    k.label('c5')
    k.vn = KEEP5
    sx5 = [sPB, sPB+1]
    aw5 = [[k.v() for b_ in range(2)] for s_ in range(3)]
    WF5 = [[k.v(4) for b_ in range(2)] for p in range(2)]
    AC5 = [[k.v(16) for b_ in range(2)] for a_ in range(2)]
    RES = k.v(8, 4); U = k.v(16); OUT = k.v(8, 4)
    ACC = AC5[0][0]
    k.e(f's_lshl_b32 s{st0}, s{sr4}, 12')
    k.e(f'v_add_u32 v{aw5[0][0]}, s{st0}, v{awb[0]}')
    k.e(f'v_xor_b32 v{aw5[0][1]}, 64, v{aw5[0][0]}')
    for s_ in (1, 2):
        for b_ in range(2):
            k.e(f'v_add_u32 v{aw5[s_][b_]}, {65536*s_}, v{aw5[0][b_]}')
    k.e(f's_mul_i32 s{st0}, s{srb}, {2*112*1024}')
    k.e(f's_add_u32 s{st0}, s{st0}, {FF}')
    srd(k, SB, sWS, sWS+1, 2*112*1024, f's{st0}')
    k.e(f's_lshl_b32 s{st1}, s{sr4}, 11')
    k.e(f's_mul_i32 s{sx5[0]}, s{stq}, {112*1024}')
    k.e(f's_add_u32 s{sx5[0]}, s{sx5[0]}, s{st1}')
    k.e(f's_xor_b32 s{st0}, s{stq}, 1')
    k.e(f's_mul_i32 s{sx5[1]}, s{st0}, {112*1024}')
    k.e(f's_add_u32 s{sx5[1]}, s{sx5[1]}, s{st1}')
    k.e(f's_lshl_b32 s{st0}, s{srb}, 16')
    srd(k, SC, sOUT, sOUT+1, 65536, f's{st0}')
    k.e(f's_lshr_b32 s{st0}, s{sm}, 3')
    k.e(f's_lshl_b32 s{st0}, s{st0}, 7')
    k.e(f's_add_u32 s{st0}, s{st0}, {F4_O}')
    poll(st0, 0x3fff3fff, 0)
    k.stamp('poll4')
    NXR = 12
    XR5 = AWO
    nv5 = [0]; doneX = {}
    def xload(n):
        c, u = n // 2, n % 2
        for a_ in range(2):
            if u == 0:
                k.e(f's_add_u32 s{(st1, st2)[a_]}, s{sx5[a_]}, {c*8192}')
            k.e(f'buffer_load_dwordx4 {ar(XR5+8*(n % NXR)+4*a_,4)}, v{vl16}, {sr(SB,4)}, s{(st1, st2)[a_]} offen offset:{u*1024}{LD}')
        nv5[0] += 2; doneX[n] = nv5[0]
    for n in range(XUP): xload(n)
    nx = [XUP]
    def xmore(n):
        if nx[0] < 28 and nx[0] - NXR < n:
            xload(nx[0]); nx[0] += 1
    def rd5(n, b_):
        off = ((n // 2) % 10)*16384 + (n % 2)*2048
        for w2 in range(2):
            k.e(f'ds_read_b64_tr_b16 {vr(WF5[n&1][b_]+2*w2,2)}, v{aw5[off//65536][b_]} offset:{off % 65536 + w2*1024}')
    k.e('s_barrier')
    k.stamp('p5:c0')
    rd5(0, 0); rd5(0, 1)
    for n in range(28):
        p = n & 1
        last = n == 27
        X = XR5 + 8*(n % NXR)
        if n in (4, 8, 14, 20): k.stamp(f'+p5k{n}')
        Cop = (lambda a_, b_: '0') if n == 0 else (lambda a_, b_: vr(AC5[a_][b_], 16))
        M = lambda a_, b_: k.e(f'v_mfma_f32_32x32x16_bf16 {vr(AC5[a_][b_],16)}, {vr(WF5[p][b_],4)}, {ar(X+4*a_,4)}, {Cop(a_,b_)}')
        k.e(f's_waitcnt vmcnt({nv5[0] - doneX[n]}) lgkmcnt(2)')
        M(0, 0)
        if n in (7, 19):
            k.e('s_waitcnt lgkmcnt(0)')
            k.e('s_barrier')
        M(1, 0)
        if not last: rd5(n + 1, 0)
        if n not in (7, 19):
            k.e(f's_waitcnt lgkmcnt({0 if last else 2})')
        M(0, 1)
        if not last: rd5(n + 1, 1)
        if n % 2 == 0: xmore(n)
        M(1, 1)
        xmore(n + 1)
    k.stamp('p5:end')
    RED = 4*16384
    k.e(f'v_add_u32 v{aw5[0][0]}, {RED}, v{vl16}')
    for z in (1, 2, 3):
        a_, b_ = z >> 1, z & 1
        k.e(f's_xor_b32 s{st0}, s{sr4}, {z}')
        k.e(f's_mul_i32 s{st0}, s{st0}, 12288')
        k.e(f'v_add_u32 v{aw5[1][0]}, s{st0}, v{aw5[0][0]}')
        if z == 1: k.e('s_nop 6')
        for g_ in range(4):
            k.e(f'ds_write_b128 v{aw5[1][0]}, {vr(AC5[a_][b_]+4*g_,4)} offset:{(z-1)*4096 + g_*1024}')
    k.e(f's_mul_i32 s{st0}, s{sr4}, 12288')
    k.e(f'v_add_u32 v{aw5[0][0]}, s{st0}, v{aw5[0][0]}')
    for d in range(8):
        k.e(f'v_accvgpr_read_b32 v{RES+d}, a{HK+d}')
    vr_ = axr[0]
    k.e(f'v_lshlrev_b32 v{vr_}, 10, v{t}')
    k.e(f'v_lshl_add_u32 v{vr_}, v{h}, 4, v{vr_}')
    for d in range(8):
        k.e(f'v_lshlrev_b32 v{U+2*d}, 16, v{RES+d}')
        k.e(f'v_and_b32 v{U+2*d+1}, 0xffff0000, v{RES+d}')
    k.e(f's_lshl_b32 s{st0}, s{stq}, 15')
    k.e(f's_lshl_b32 s{st1}, s{scb}, 7')
    k.e(f's_add_u32 s{st0}, s{st0}, s{st1}')
    k.e(f's_lshl_b32 s{st1}, s{scq}, 6')
    k.e(f's_add_u32 s{st0}, s{st0}, s{st1}')
    for r_ in range(0, 16, 2):
        k.e(f'v_pk_add_f32 {vr(U+r_,2)}, {vr(U+r_,2)}, {vr(ACC+r_,2)}')
    k.e('s_waitcnt lgkmcnt(0)')
    k.e('s_barrier')
    for z in (1, 2, 3):
        for g_ in range(4):
            k.e(f'ds_read_b128 {vr(AC5[z>>1][z&1]+4*g_,4)}, v{aw5[0][0]} offset:{(z-1)*4096 + g_*1024}')
    for z in (1, 2, 3):
        k.e(f's_waitcnt lgkmcnt({4*(3-z)})')
        for r_ in range(0, 16, 2):
            k.e(f'v_pk_add_f32 {vr(U+r_,2)}, {vr(U+r_,2)}, {vr(AC5[z>>1][z&1]+r_,2)}')
    for q in range(8):
        k.e(f'v_cvt_pk_bf16_f32 v{OUT+q}, v{U+2*q}, v{U+2*q+1}')
    k.e('s_nop 1')
    for pz in range(2):
        k.e(f'v_permlane32_swap_b32 v{OUT+4*pz}, v{OUT+4*pz+2}')
        k.e(f'v_permlane32_swap_b32 v{OUT+4*pz+1}, v{OUT+4*pz+3}')
    k.e(f'buffer_store_dwordx4 {vr(OUT,4)}, v{vr_}, {sr(SC,4)}, s{st0} offen')
    k.e(f'buffer_store_dwordx4 {vr(OUT+4,4)}, v{vr_}, {sr(SC,4)}, s{st0} offen offset:32')
    k.label('done')
    k.label('end')
    k.e('s_endpgm')

    k.label('slow')
    k.e(f's_lshl_b32 s{st0}, s{shead}, 16')
    k.e(f's_add_u32 s{st0}, s{st0}, {KF}')
    k.e(f'v_mov_b32 v{tmp}, 0xff800000')
    k.e(f's_mov_b32 s{sit}, 0')
    k.label('slow1')
    k.e(f's_add_u32 s{st1}, s{st0}, s{sit}')
    k.e(f'buffer_load_dwordx4 {vr(KFr,4)}, v{vl16}, {sr(SA,4)}, s{st1} offen')
    k.e('s_waitcnt vmcnt(0)')
    k.e(f'v_mfma_f32_32x32x16_bf16 {vr(S[0],16)}, {vr(KFr,4)}, {vr(Q[0],4)}, 0')
    k.e('s_nop 15')
    rowmax16(S[0], tmp+2)
    k.e(f'v_max_f32 v{tmp}, v{tmp}, v{tmp+2}')
    k.e(f's_add_u32 s{sit}, s{sit}, 1024')
    k.e(f's_cmp_lt_u32 s{sit}, 65536')
    k.e(f's_cbranch_scc1 {k.lab("slow1")}')
    set_negm(tmp, NM[0])
    for r_ in range(16):
        k.e(f'v_mov_b32 v{O[0]+r_}, 0')
    k.e(f'v_and_b32 v{vv}, 15, v{l}')
    k.e(f'v_lshlrev_b32 v{vv}, 4, v{vv}')
    k.e(f'v_lshl_add_u32 v{vv}, v{h}, 8, v{vv}')
    k.e(f'v_bfe_u32 v{tmp+1}, v{l}, 4, 1')
    k.e(f'v_lshl_add_u32 v{vv}, v{tmp+1}, 24, v{vv}')
    k.e(f'v_and_b32 v{tmp}, 27, v{l}')
    k.e(f'v_cmp_eq_u32 vcc, 16, v{tmp}')
    k.e(f'v_mov_b32 v{tmp+1}, 0x3f803f80')
    k.e(f's_mov_b32 s{sit}, 0')
    k.e(f'v_cndmask_b32 v{vk}, 0, v{tmp+1}, vcc')
    k.label('slow2')
    k.e(f's_add_u32 s{st1}, s{st0}, s{sit}')
    k.e(f's_add_u32 s{st2}, s{st1}, {VF - KF}')
    k.e(f'buffer_load_dwordx4 {vr(KFr,4)}, v{vl16}, {sr(SA,4)}, s{st1} offen')
    k.e(f'buffer_load_dwordx4 {vr(V0,4)}, v{vv}, {sr(SA,4)}, s{st2} offen')
    k.e(f'buffer_load_dwordx4 {vr(V1,4)}, v{vv}, {sr(SA,4)}, s{st2} offen offset:512')
    k.e('s_waitcnt vmcnt(0)')
    k.e(f'v_mfma_f32_32x32x16_bf16 {vr(S[0],16)}, {vr(KFr,4)}, {vr(Q[0],4)}, {vr(NM[0],16)}')
    for d in range(4):
        k.e(f'v_or_b32 v{V0+d}, v{V0+d}, v{vk}')
        k.e(f'v_or_b32 v{V1+d}, v{V1+d}, v{vk}')
    k.e('s_nop 7')
    E(0, 0, 16)
    k.e('s_nop 0')
    C(0, 0, 8)
    k.e('s_nop 1')
    MP(0, 0)
    MP(0, 1)
    k.e(f's_add_u32 s{sit}, s{sit}, 1024')
    k.e(f's_cmp_lt_u32 s{sit}, 65536')
    k.e(f's_cbranch_scc1 {k.lab("slow2")}')
    k.e('s_nop 15')
    k.e(f's_branch {k.lab("fin")}')
    assert k.vmax <= ARCH, k.vmax
    assert k.an <= 256 - ARCH, k.an
    k.vmax = ARCH
    return k, (256, 512, 163840)
```

```python
from fw import *
MB = 1 << 20
QF, KF, VF, OF, HF, FF = 0, 2*MB, 4*MB, 6*MB, 8*MB, 10*MB
ST = 17*MB
DG = 17*MB + 256*1024
FL = 17*MB + 512*1024
FLB = 65536
WS_USED = 18*MB
QSCALE = 0.25 * 1.4426950408889634

import struct
def f32(x):
    return '0x%08x' % struct.unpack('<I', struct.pack('<f', x))[0]

def lane_regs(k):
    R = {}
    for n in ('l', 't', 'h'):
        R[n] = k.v()
    k.e(f'v_and_b32 v{R["l"]}, 63, v0')
    k.e(f'v_and_b32 v{R["t"]}, 31, v0')
    k.e(f'v_bfe_u32 v{R["h"]}, v0, 5, 1')
    return R

def round_bf16(k, v):
    k.e(f'v_cvt_pk_bf16_f32 v{v}, v{v}, v{v}')
    k.e(f'v_and_b32 v{v}, 0xffff0000, v{v}')

def half_sum(k, regs, tmp):
    for i, r_ in enumerate(regs):
        k.e(f'v_mov_b32 v{tmp+i}, v{r_}')
    k.e('s_nop 1')
    for i, r_ in enumerate(regs):
        k.e(f'v_permlane32_swap_b32 v{r_}, v{tmp+i}')
    k.e('s_nop 1')
    for i, r_ in enumerate(regs):
        k.e(f'v_add_f32 v{r_}, v{r_}, v{tmp+i}')

def ln_finish(k, sx, sxx, mean, rstd):
    k.e(f'v_mul_f32 v{mean}, {f32(1/512)}, v{sx}')
    k.e(f'v_mul_f32 v{sxx}, {f32(1/512)}, v{sxx}')
    k.e(f'v_fma_f32 v{rstd}, -v{mean}, v{mean}, v{sxx}')
    k.e(f'v_max_f32 v{rstd}, 0, v{rstd}')
    round_bf16(k, mean)
    round_bf16(k, rstd)
    k.e(f'v_add_f32 v{rstd}, {f32(1e-5)}, v{rstd}')
    round_bf16(k, rstd)
    k.e(f'v_sqrt_f32 v{rstd}, v{rstd}')
    k.e('s_nop 0')
    round_bf16(k, rstd)
    k.e(f'v_rcp_f32 v{rstd}, v{rstd}')
    k.e('s_nop 0')

def ln_stats(k, sx, sxx, tmp, mean, rstd):
    half_sum(k, [sx, sxx], tmp)
    ln_finish(k, sx, sxx, mean, rstd)

def selector(k, l, tmp):
    SEL = k.v(4)
    k.e(f'v_lshrrev_b32 v{tmp}, 2, v{l}')
    k.e(f'v_lshrrev_b32 v{tmp+1}, 4, v{l}')
    k.e(f'v_xor_b32 v{tmp}, v{tmp}, v{tmp+1}')
    k.e(f'v_and_b32 v{tmp}, 1, v{tmp}')
    k.e(f'v_add_u32 v{tmp}, -1, v{tmp}')
    k.e(f'v_and_b32 v{SEL}, 0x3f803f80, v{tmp}')
    for d in range(1, 4):
        k.e(f'v_mov_b32 v{SEL+d}, v{SEL}')
    return SEL

def gen_k1(name='qkv_kernel', SCHED=((0, 1), (2, 3), (4,), (5,), (6,), (7,)), ROT=6, TOUCH=0, ZAT=4, ZPOL=None):
    k = Kern(name)
    SLOT = 32768
    NSLOT = 5
    NCH = 8
    sX, sWS = k.s(4), k.s(2)
    SX, SW, SO = k.s(4), k.s(4), k.s(4)
    sw, srb, sj, sxo, swo, smx, st0, st1, st2, srot, stq, scg, sdx, sdw, srole = [k.s() for _ in range(15)]
    k.e(f's_cmp_ge_u32 s2, 256')
    k.e(f's_cbranch_scc1 {k.lab("end")}')
    k.e(f's_load_dwordx4 {sr(sX,4)}, s[0:1], 0')
    k.e(f's_load_dwordx2 {sr(sWS,2)}, s[0:1], 64')
    R = lane_regs(k)
    l, t, h = R['l'], R['t'], R['h']
    tmp = k.v(8)
    k.e(f'v_lshrrev_b32 v{tmp}, 6, v0')
    k.e(f's_and_b32 s{st0}, s2, 7')
    k.e(f'v_readfirstlane_b32 s{sw}, v{tmp}')
    k.e(f's_lshr_b32 s{st1}, s2, 3')
    k.e(f's_lshr_b32 s{srole}, s{sw}, 2')
    k.e(f's_and_b32 s{sw}, s{sw}, 3')
    k.e(f's_lshr_b32 s{srb}, s{st0}, 1')
    k.e(f's_lshl_b32 s{srb}, s{srb}, 3')
    k.e(f's_lshr_b32 s{st2}, s{st1}, 2')
    k.e(f's_add_u32 s{srb}, s{srb}, s{st2}')
    k.e(f's_and_b32 s{sj}, s{st0}, 1')
    k.e(f's_lshl_b32 s{sj}, s{sj}, 2')
    k.e(f's_and_b32 s{st1}, s{st1}, 3')
    k.e(f's_add_u32 s{sj}, s{sj}, s{st1}')
    k.e(f's_lshl_b32 s{srot}, s{st1}, 1')
    k.e(f's_add_u32 s{srot}, s{srot}, s{st2}')
    if ROT == 0:
        k.e(f's_mov_b32 s{srot}, 0')
    elif ROT == 2:
        k.e(f's_and_b32 s{srot}, s{st2}, 1')
    elif ROT == 4:
        k.e(f's_and_b32 s{srot}, s{srot}, 1')
        k.e(f's_lshl_b32 s{srot}, s{srot}, 2')
    elif ROT == 5:
        k.e(f's_add_u32 s{srot}, s{st1}, s{st2}')
        k.e(f's_and_b32 s{srot}, s{srot}, 3')
        k.e(f's_lshl_b32 s{srot}, s{srot}, 1')
    elif ROT == 6:
        k.e(f's_add_u32 s{srot}, s{st1}, s{st2}')
        k.e(f's_and_b32 s{srot}, s{srot}, 1')
        k.e(f's_lshl_b32 s{srot}, s{srot}, 2')
        k.e(f's_lshr_b32 s{sdx}, s{st0}, 1')
        k.e(f's_add_u32 s{srot}, s{srot}, s{sdx}')
    elif ROT == 3:
        k.e(f's_lshr_b32 s{srot}, s{st0}, 1')
        k.e(f's_lshl_b32 s{srot}, s{srot}, 1')
    k.e(f's_lshr_b32 s{stq}, s{sw}, 1')
    k.e(f's_and_b32 s{scg}, s{sw}, 1')
    vox = [k.v(), k.v()]
    vow = [k.v(), k.v()]
    k.e(f'v_and_b32 v{tmp}, 7, v{l}')
    k.e(f'v_lshrrev_b32 v{tmp+1}, 4, v{l}')
    k.e(f'v_xor_b32 v{tmp+2}, v{tmp}, v{tmp+1}')
    k.e(f'v_lshlrev_b32 v{tmp+2}, 4, v{tmp+2}')
    k.e(f'v_lshrrev_b32 v{tmp+3}, 3, v{l}')
    k.e(f'v_lshl_add_u32 v{vox[0]}, v{tmp+3}, 10, v{tmp+2}')
    k.e(f'v_xor_b32 v{vox[1]}, 64, v{vox[0]}')
    k.e(f'v_add_u32 v{vox[1]}, {8192-1024}, v{vox[1]}')
    k.e(f'v_and_b32 v{tmp+1}, 1, v{tmp+1}')
    k.e(f'v_lshlrev_b32 v{tmp+1}, 2, v{tmp+1}')
    k.e(f'v_xor_b32 v{tmp}, v{tmp}, v{tmp+1}')
    k.e(f'v_lshlrev_b32 v{tmp}, 4, v{tmp}')
    k.e(f'v_mul_u32_u24 v{tmp+3}, 3072, v{tmp+3}')
    k.e(f'v_add_u32 v{vow[0]}, v{tmp}, v{tmp+3}')
    k.e(f'v_add_u32 v{vow[1]}, {8*3072-1024}, v{vow[0]}')
    k.e(f's_lshl_b32 s{sxo}, s{sw}, 14')
    k.e(f's_mul_i32 s{swo}, s{sw}, {16*3072}')
    k.e(f's_lshl_b32 s{st0}, s{sj}, 7')
    k.e(f's_add_u32 s{swo}, s{swo}, s{st0}')
    k.e(f's_lshl_b32 s{smx}, s{sw}, 11')
    k.e(f's_lshl_b32 s{st0}, s{srb}, 16')
    k.e(f's_cmp_eq_u32 s{srole}, 0')
    k.e(f's_cbranch_scc1 {k.lab("compute")}')
    k.e('s_waitcnt lgkmcnt(0)')
    srd(k, SX, sX, sX+1, 65536, f's{st0}')
    srd(k, SW, sX+2, sX+3, 512*3072)
    nvm = [0]; done_at = {}
    def piece(c, j):
        sb = (c % NSLOT) * SLOT
        if j == 0:
            k.e(f's_add_u32 s{st0}, s{srot}, {c}')
            k.e(f's_and_b32 s{st0}, s{st0}, 7')
            k.e(f's_lshl_b32 s{sdx}, s{st0}, 7')
            k.e(f's_add_u32 m0, s{smx}, {sb}')
            k.e(f's_add_u32 s{sdx}, s{sdx}, s{sxo}')
            k.e(f'buffer_load_dwordx4 v{vox[0]}, {sr(SX,4)}, s{sdx} offen lds')
            k.e(f'buffer_load_dwordx4 v{vox[1]}, {sr(SX,4)}, s{sdx} offen offset:1024 lds')
            k.e(f's_mul_i32 s{sdw}, s{st0}, {64*3072}')
            k.e(f's_add_u32 s{sdw}, s{sdw}, s{swo}')
        else:
            k.e(f's_add_u32 m0, s{smx}, {sb + j*8192}')
            if j > 1:
                k.e(f's_add_u32 s{sdw}, s{sdw}, 1024')
            else:
                k.e('s_nop 0')
            k.e(f'buffer_load_dwordx4 v{vow[0]}, {sr(SW,4)}, s{sdw} offen lds')
            k.e(f'buffer_load_dwordx4 v{vow[1]}, {sr(SW,4)}, s{sdw} offen offset:1024 lds')
        nvm[0] += 2
        if j == 3: done_at[c] = nvm[0]
    for c in SCHED[0]:
        for j in range(4): piece(c, j)
    def zero_fill():
        srd(k, SO, sWS, sWS+1, 12*MB, OF)
        for d in range(4):
            k.e(f'v_mov_b32 v{tmp+4+d}, 0')
        k.e(f's_lshl_b32 s{st0}, s2, 2')
        k.e(f's_add_u32 s{st0}, s{st0}, s{sw}')
        k.e(f's_mul_i32 s{st0}, s{st0}, 12288')
        k.e(f'v_lshlrev_b32 v{tmp+1}, 4, v{l}')
        if ZPOL is None:
            k.e(f's_lshl_b32 s{st0}, s2, 2')
            k.e(f's_add_u32 s{st0}, s{st0}, s{sw}')
            k.e(f's_lshl_b32 s{st0}, s{st0}, 10')
            srd(k, SO, sWS, sWS+1, FLB, FL)
            k.e(f'buffer_store_dwordx4 {vr(tmp+4,4)}, v{tmp+1}, {sr(SO,4)}, s{st0} offen')
            nvm[0] += 1
            return
        for q in range(3):
            for i in range(4):
                k.e(f'buffer_store_dwordx4 {vr(tmp+4,4)}, v{tmp+1}, {sr(SO,4)}, s{st0} offen offset:{i*1024}{ZPOL}')
            k.e(f's_add_u32 s{st0}, s{st0}, 4096')
        nvm[0] += 12
    if ZAT < 0: zero_fill()
    for c in range(NCH):
        k.e(f's_waitcnt vmcnt({nvm[0] - done_at[c]})')
        k.e('s_barrier')
        for q in (SCHED[c+1] if c + 1 < len(SCHED) else ()):
            assert q - NSLOT <= c - 1
            for j in range(4): piece(q, j)
        if c == ZAT: zero_fill()
    k.e('s_endpgm')
    k.label('compute')
    if TOUCH:
        sidx, stx, stw = k.s(), k.s(), k.s()
        vtx, vtw, vtd = k.v(), k.v(), k.v()
        k.e(f's_lshr_b32 s{sidx}, s2, 3')
        k.e(f'v_lshlrev_b32 v{vtx}, 10, v{l}')
        k.e(f'v_lshrrev_b32 v{tmp+1}, 4, v{l}')
        k.e(f'v_lshl_add_u32 v{vtx}, v{tmp+1}, 20, v{vtx}')
        k.e(f's_and_b32 s{stx}, s{sidx}, 3')
        k.e(f's_lshl_b32 s{stx}, s{stx}, 14')
        k.e(f's_lshl_b32 s{st2}, s{sw}, 7')
        k.e(f's_add_u32 s{stx}, s{stx}, s{st2}')
        k.e(f'v_and_b32 v{vtw}, 7, v{l}')
        k.e(f'v_mul_u32_u24 v{vtw}, 3072, v{vtw}')
        k.e(f'v_lshrrev_b32 v{tmp+2}, 3, v{l}')
        k.e(f'v_lshl_add_u32 v{vtw}, v{tmp+2}, 10, v{vtw}')
        k.e(f'v_cmp_lt_u32 vcc, 2, v{tmp+2}')
        k.e(f'v_mov_b32 v{tmp+3}, 0x2000000')
        k.e(f's_lshr_b32 s{stw}, s{sidx}, 2')
        k.e(f'v_cndmask_b32 v{vtw}, v{vtw}, v{tmp+3}, vcc')
        k.e(f's_mul_i32 s{stw}, s{stw}, {8*3072}')
        k.e(f's_mul_i32 s{sdw}, s{sw}, {64*3072}')
        k.e(f's_add_u32 s{stw}, s{stw}, s{sdw}')
        k.e(f's_lshl_b32 s{sdw}, s{sj}, 7')
        k.e(f's_add_u32 s{stw}, s{stw}, s{sdw}')
        k.e('s_waitcnt lgkmcnt(0)')
        srd(k, SX, sX, sX+1, 65536, f's{st0}')
        srd(k, SW, sX+2, sX+3, 512*3072)
        def touch():
            k.e(f'buffer_load_dword v{vtd}, v{vtx}, {sr(SX,4)}, s{stx} offen')
            k.e(f'buffer_load_dword v{vtd}, v{vtw}, {sr(SW,4)}, s{stw} offen')
        if TOUCH == 1:
            touch()
        else:
            k.e(f's_cmp_ge_u32 s{sw}, 2')
            k.e(f's_cbranch_scc1 {k.lab("t1")}')
            touch()
            k.label('t1')
    POOL = k.v(64, 4)
    ax = [[POOL + 4*s + i for i in range(4)] for s in range(3)]
    aw = [[POOL + 12 + 4*s + i for i in range(4)] for s in range(3)]
    k.e(f'v_bfe_u32 v{tmp}, v{t}, 1, 3')
    k.e(f'v_xor_b32 v{tmp}, v{tmp}, v{h}')
    k.e(f'v_lshlrev_b32 v{tmp+1}, 7, v{t}')
    k.e(f's_lshl_b32 s{st0}, s{stq}, 12')
    k.e(f'v_add_u32 v{tmp+1}, s{st0}, v{tmp+1}')
    k.e(f'v_bfe_u32 v{tmp+3}, v{l}, 2, 2')
    k.e(f'v_lshl_add_u32 v{tmp+2}, v{h}, 3, v{tmp+3}')
    k.e(f'v_lshlrev_b32 v{tmp+2}, 7, v{tmp+2}')
    k.e(f'v_lshrrev_b32 v{tmp+3}, 1, v{tmp+3}')
    k.e(f'v_xor_b32 v{tmp+3}, s{scg}, v{tmp+3}')
    k.e(f'v_lshl_add_u32 v{tmp+2}, v{tmp+3}, 6, v{tmp+2}')
    k.e(f'v_bfe_u32 v{tmp+3}, v{l}, 4, 1')
    k.e(f'v_lshl_add_u32 v{tmp+2}, v{tmp+3}, 5, v{tmp+2}')
    k.e(f'v_and_b32 v{tmp+3}, 3, v{l}')
    k.e(f'v_lshl_add_u32 v{tmp+2}, v{tmp+3}, 3, v{tmp+2}')
    k.e(f'v_add_u32 v{tmp+2}, 8192, v{tmp+2}')
    for i in range(4):
        k.e(f's_xor_b32 s{st0}, s{sw}, {i}')
        k.e(f's_lshl_b32 s{st1}, s{st0}, 1')
        k.e(f'v_xor_b32 v{tmp+4}, s{st1}, v{tmp}')
        k.e(f'v_lshl_add_u32 v{ax[0][i]}, v{tmp+4}, 4, v{tmp+1}')
        k.e(f's_lshl_b32 s{st1}, s{st0}, 11')
        k.e(f'v_add_u32 v{aw[0][i]}, s{st1}, v{tmp+2}')
        for s in (1, 2):
            k.e(f'v_add_u32 v{ax[s][i]}, {2*SLOT*s}, v{ax[0][i]}')
            k.e(f'v_add_u32 v{aw[s][i]}, {2*SLOT*s}, v{aw[0][i]}')
    SEL = selector(k, l, tmp)
    XF = [POOL + 24, POOL + 28]
    WF = [[POOL + 32 + 12*s + 4*b for b in range(3)] for s in range(2)]
    ACC = [k.v(16) for b in range(3)]
    SXA = k.v(4)
    CSA = [k.v(4) for b in range(3)]
    sxx = [k.v(), k.v()]
    UP = POOL + 56
    for r_ in sxx:
        k.e(f'v_mov_b32 v{r_}, 0')
    def rd(n, part):
        c, i = n // 4, n % 4
        slot = c % NSLOT
        s, rel = slot // 2, (slot % 2) * SLOT
        p = n & 1
        if part == 0:
            k.e(f'ds_read_b128 {vr(XF[p],4)}, v{ax[s][i]} offset:{rel}')
        for w2 in range(2):
            k.e(f'ds_read_b64_tr_b16 {vr(WF[p][part]+2*w2,2)}, v{aw[s][i]} offset:{rel + part*8192 + w2*512}')
    def sync(c):
        k.e('s_waitcnt lgkmcnt(0)')
        k.e('s_barrier')
    if TOUCH == 2:
        k.e(f's_cmp_lt_u32 s{sw}, 2')
        k.e(f's_cbranch_scc1 {k.lab("t2")}')
        touch()
        k.label('t2')
    sync(0)
    if TOUCH:
        k.e(f's_add_u32 s{stx}, s{stx}, 512')
        k.e(f's_add_u32 s{stw}, s{stw}, {4*64*3072}')
        touch()
    srd(k, SO, sWS, sWS+1, FL)
    k.stamp('first')
    for part in range(3): rd(0, part)
    NK = 4 * NCH
    for n in range(NK):
        p = n & 1
        c, i = n // 4, n % 4
        last = n + 1 == NK
        k.c(f'kstep {n}')
        if n in (8, 16, 24): k.stamp(f'k{n}')
        C = (lambda b: '0') if n == 0 else (lambda b: vr(ACC[b], 16))
        xs = i in (0, 2)
        k.e('s_waitcnt lgkmcnt(4)')
        k.e(f'v_mfma_f32_32x32x16_bf16 {vr(ACC[0],16)}, {vr(WF[p][0],4)}, {vr(XF[p],4)}, {C(0)}')
        if i == 3 and not last:
            sync(c + 1)
        if not last: rd(n + 1, 0)
        if xs:
            for d in range(2):
                k.e(f'v_lshlrev_b32 v{UP+2*d}, 16, v{XF[p]+d}')
                k.e(f'v_and_b32 v{UP+2*d+1}, 0xffff0000, v{XF[p]+d}')
        if i != 3 or last:
            k.e(f's_waitcnt lgkmcnt({2 if last else 5})')
        k.e(f'v_mfma_f32_32x32x16_bf16 {vr(ACC[1],16)}, {vr(WF[p][1],4)}, {vr(XF[p],4)}, {C(1)}')
        if not last: rd(n + 1, 1)
        if xs:
            for d in range(2, 4):
                k.e(f'v_lshlrev_b32 v{UP+2*d}, 16, v{XF[p]+d}')
                k.e(f'v_and_b32 v{UP+2*d+1}, 0xffff0000, v{XF[p]+d}')
        if i != 3 or last:
            k.e(f's_waitcnt lgkmcnt({0 if last else 5})')
        k.e(f'v_mfma_f32_32x32x16_bf16 {vr(ACC[2],16)}, {vr(XF[p],4)}, {vr(WF[p][2],4)}, {C(2)}')
        if not last: rd(n + 1, 2)
        if xs:
            for d in range(4):
                k.e(f'v_fmac_f32 v{sxx[d&1]}, v{UP+d}, v{UP+d}')
            Cx = '0' if n == 0 else vr(SXA, 4)
            k.e(f'v_mfma_f32_16x16x32_bf16 {vr(SXA,4)}, {vr(SEL,4)}, {vr(XF[p],4)}, {Cx}')
            for d in range(4, 8):
                k.e(f'v_fmac_f32 v{sxx[d&1]}, v{UP+d}, v{UP+d}')
        if i in (0, 1):
            for b in range(3):
                Cx = '0' if n == 0 else vr(CSA[b], 4)
                k.e(f'v_mfma_f32_16x16x32_bf16 {vr(CSA[b],4)}, {vr(SEL,4)}, {vr(WF[p][b],4)}, {Cx}')
    k.stamp('loopend')
    a0, a1, a2, a3 = k.v(), k.v(), k.v(), k.v()
    STT = k.v(2); PS = k.v(2); pcv = k.v()
    k.e(f'v_add_f32 v{STT+1}, v{sxx[0]}, v{sxx[1]}')
    k.e(f's_lshl_b32 s{st0}, s{sw}, 10')
    k.e(f'v_lshlrev_b32 v{a0}, 2, v{t}')
    k.e(f'v_add_u32 v{a1}, s{st0}, v{a0}')
    for b in range(3):
        k.e(f'ds_write_b32 v{a1}, v{CSA[b]} offset:{b*128}')
    half_sum(k, [STT+1], tmp)
    k.e(f'v_mov_b32 v{STT}, v{SXA}')
    k.e(f'v_add_u32 v{a2}, v{a1}, v{a0}')
    k.e(f'ds_write_b64 v{a2}, {vr(STT,2)} offset:384')
    k.e(f'v_xor_b32 v{a2}, 1024, v{a2}')
    k.e(f'v_xor_b32 v{a0}, 2048, v{a1}')
    k.e(f'v_lshlrev_b32 v{a3}, 4, v{h}')
    k.e(f'v_add_u32 v{a3}, s{st0}, v{a3}')
    k.e(f'v_xor_b32 v{tmp}, 2048, v{a3}')
    k.e('s_waitcnt lgkmcnt(0)')
    k.e('s_barrier')
    MR = k.v(16); RR = k.v(16); CS = POOL; CS2 = POOL + 32
    k.e(f'ds_read_b64 {vr(PS,2)}, v{a2} offset:384')
    k.e(f'ds_read_b32 v{pcv}, v{a0} offset:256')
    for b in range(2):
        for g in range(4):
            k.e(f'ds_read_b128 {vr(CS+16*b+4*g,4)}, v{a3} offset:{b*128+g*32}')
    for g in range(4):
        k.e(f'ds_read_b128 {vr(CS2+16+4*g,4)}, v{tmp} offset:{128+g*32}')
    k.e('s_waitcnt lgkmcnt(12)')
    mean, rstd = k.v(2), k.v(2)
    k.e(f'v_add_f32 v{STT}, v{STT}, v{PS}')
    k.e(f'v_add_f32 v{STT+1}, v{STT+1}, v{PS+1}')
    k.e(f'v_add_f32 v{pcv}, v{pcv}, v{CSA[2]}')
    for g in range(4):
        k.e(f'ds_read_b128 {vr(CS2+4*g,4)}, v{tmp} offset:{g*32}')
    ln_finish(k, STT, STT+1, mean, rstd)
    k.e(f'v_sub_f32 v{mean}, 0, v{mean}')
    k.e(f'ds_write_b32 v{a1}, v{mean} offset:640')
    k.e(f'ds_write_b32 v{a1}, v{rstd} offset:768')
    rq = k.v(2)
    k.e(f'v_mul_f32 v{rq}, {f32(QSCALE)}, v{rstd}')
    vo, vov = k.v(), k.v()
    k.e(f'v_lshlrev_b32 v{vo}, 4, v{l}')
    k.e(f'v_bfe_u32 v{tmp}, v{l}, 4, 1')
    k.e(f'v_lshlrev_b32 v{vov}, 16, v{tmp}')
    k.e(f'v_lshl_add_u32 v{vov}, v{h}, 8, v{vov}')
    k.e(f'v_and_b32 v{tmp}, 15, v{l}')
    k.e(f'v_lshl_add_u32 v{vov}, v{tmp}, 4, v{vov}')
    k.e(f's_lshl_b32 s{st0}, s{sj}, 1')
    k.e(f's_add_u32 s{st0}, s{st0}, s{scg}')
    k.e(f's_lshl_b32 s{st0}, s{st0}, 17')
    k.e(f's_lshl_b32 s{st1}, s{srb}, 1')
    k.e(f's_add_u32 s{st1}, s{st1}, s{stq}')
    k.e(f's_lshl_b32 s{st1}, s{st1}, 10')
    k.e(f's_add_u32 s{st0}, s{st0}, s{st1}')
    k.e('s_waitcnt lgkmcnt(0)')
    for g in range(4):
        k.e(f'ds_read_b128 {vr(MR+4*g,4)}, v{a3} offset:{640+g*32}')
    for g in range(4):
        k.e(f'ds_read_b128 {vr(RR+4*g,4)}, v{a3} offset:{768+g*32}')
    OUT = [k.v(8, 4) for b in range(3)]
    for b in (1, 0):
        sc = rq if b == 0 else rstd
        for r_ in range(0, 16, 2):
            k.e(f'v_pk_add_f32 {vr(CS+16*b+r_,2)}, {vr(CS+16*b+r_,2)}, {vr(CS2+16*b+r_,2)}')
        for r_ in range(0, 16, 2):
            k.e(f'v_pk_fma_f32 {vr(ACC[b]+r_,2)}, {vr(CS+16*b+r_,2)}, {vr(mean,2)}, {vr(ACC[b]+r_,2)} op_sel_hi:[1,0,1]')
        for r_ in range(0, 16, 2):
            k.e(f'v_pk_mul_f32 {vr(ACC[b]+r_,2)}, {vr(ACC[b]+r_,2)}, {vr(sc,2)} op_sel_hi:[1,0]')
        for q in range(8):
            k.e(f'v_cvt_pk_bf16_f32 v{OUT[b]+q}, v{ACC[b]+2*q}, v{ACC[b]+2*q+1}')
        base = QF if b == 0 else KF
        k.e(f's_add_u32 s{st1}, s{st0}, {base}')
        k.e(f's_add_u32 s{st2}, s{st0}, {base+65536}')
        k.e(f'buffer_store_dwordx4 {vr(OUT[b],4)}, v{vo}, {sr(SO,4)}, s{st1} offen')
        k.e(f'buffer_store_dwordx4 {vr(OUT[b]+4,4)}, v{vo}, {sr(SO,4)}, s{st2} offen')
    D2 = CS
    for hd in range(2):
        k.e(f'v_pk_mul_f32 {vr(D2+2*hd,2)}, {vr(ACC[0]+8*hd,2)}, {vr(ACC[1]+8*hd,2)}')
        for r_ in range(2, 8, 2):
            k.e(f'v_pk_fma_f32 {vr(D2+2*hd,2)}, {vr(ACC[0]+8*hd+r_,2)}, {vr(ACC[1]+8*hd+r_,2)}, {vr(D2+2*hd,2)}')
    k.e(f'v_add_f32 v{D2}, v{D2}, v{D2+1}')
    k.e(f'v_add_f32 v{D2+1}, v{D2+2}, v{D2+3}')
    k.e(f's_lshr_b32 s{st1}, s{st0}, 3')
    k.e(f'v_lshlrev_b32 v{D2+2}, 2, v{t}')
    k.e(f'v_permlane32_swap_b32 v{D2}, v{D2+1}')
    k.e(f'v_lshl_add_u32 v{D2+2}, v{h}, 13, v{D2+2}')
    k.e(f's_add_u32 s{st1}, s{st1}, {DG}')
    k.e(f'v_add_f32 v{D2}, v{D2}, v{D2+1}')
    k.e(f'v_sub_f32 v{D2}, 0, v{D2}')
    k.e(f'buffer_store_dword v{D2}, v{D2+2}, {sr(SO,4)}, s{st1} offen')
    pc2 = k.v(2)
    k.e(f'v_mov_b32 v{pc2}, v{pcv}')
    k.e('s_waitcnt lgkmcnt(0)')
    for r_ in range(0, 16, 2):
        k.e(f'v_pk_fma_f32 {vr(ACC[2]+r_,2)}, {vr(MR+r_,2)}, {vr(pc2,2)}, {vr(ACC[2]+r_,2)} op_sel_hi:[1,0,1]')
    for r_ in range(0, 16, 2):
        k.e(f'v_pk_mul_f32 {vr(ACC[2]+r_,2)}, {vr(ACC[2]+r_,2)}, {vr(RR+r_,2)}')
    for q in range(8):
        k.e(f'v_cvt_pk_bf16_f32 v{OUT[2]+q}, v{ACC[2]+2*q}, v{ACC[2]+2*q+1}')
    k.e(f's_add_u32 s{st1}, s{st0}, {VF}')
    k.e(f'buffer_store_dwordx4 {vr(OUT[2],4)}, v{vov}, {sr(SO,4)}, s{st1} offen')
    k.e(f'buffer_store_dwordx4 {vr(OUT[2]+4,4)}, v{vov}, {sr(SO,4)}, s{st1} offen offset:512')
    k.stamp('stored')
    k.label('end')
    k.e('s_endpgm')
    return k, (256, 512, NSLOT*SLOT)
```

```python
from fw import *
from k1 import *

ARCH = 152
XT_O, FA_O, F3_O, F4_O = 0, 1024, 2048, 3072
POLL_LIMIT = 200000

def gen_mega(name='block_kernel', KVPOL='', SIDE0=8, TCH=1, CODE=0, LD=' sc1', PRE=12, W2POS=99, HEADMAP=0, KVFAST=0, SPT=1, HO0=21, W20=18, STEP=1, UPR=2, PRIO=1, XUP=4, HUP=12, KVB=1, SIDE2=8, CSL=1, WB=1, NT1=5, NT2=10, NPRE=26, THIN=3, FLA=56, FLB_=3, CKB=20, STN=12, WBN=46, FPS=3):
    k = Kern(name)
    sWS, sX, sWO, sOUT = k.s(2), k.s(2), k.s(2), k.s(2)
    sW12 = k.s(4)
    SA, SB, SC, SFL = k.s(4), k.s(4), k.s(4), k.s(4)
    sPA, sPB = k.s(2), k.s(2)
    sw, sr4, srole, sg, sm, sfast, st0, st1, st2, sit, sa, sb, sc_, sd = [k.s() for _ in range(14)]
    shead, sqb = 2, 3
    k.dbgreg = f's{sfast}'
    nl = [0]
    def L(p='x'):
        nl[0] += 1
        return f'{p}{nl[0]}'
    k.e('s_cmp_ge_u32 s2, 256')
    k.e(f's_cbranch_scc1 {k.lab("end")}')
    k.e(f's_load_dwordx2 {sr(sWS,2)}, s[0:1], 64')
    k.e(f's_load_dwordx2 {sr(sX,2)}, s[0:1], 0')
    k.e(f's_load_dwordx2 {sr(sWO,2)}, s[0:1], 16')
    k.e(f's_load_dwordx2 {sr(sOUT,2)}, s[0:1], 48')
    k.e(f's_load_dwordx4 {sr(sW12,4)}, s[0:1], 32')
    R = lane_regs(k)
    l, t, h = R['l'], R['t'], R['h']
    vl16 = k.v()
    tmp = k.v(4)
    BASE = k.vn
    k.e(f'v_lshrrev_b32 v{tmp}, 6, v0')
    k.e(f's_and_b32 s{sg}, s2, 7')
    k.e(f'v_readfirstlane_b32 s{sw}, v{tmp}')
    k.e(f's_lshr_b32 s{sm}, s2, 3')
    k.e(f's_getreg_b32 s{sfast}, hwreg(HW_REG_XCC_ID, 0, 4)')
    k.e(f's_lshr_b32 s{srole}, s{sw}, 2')
    k.e(f's_and_b32 s{sr4}, s{sw}, 3')
    k.e(f's_add_u32 s{sfast}, s{sfast}, 1')
    if HEADMAP:
        k.e(f's_and_b32 s{sqb}, s{sm}, 7')
        k.e(f's_lshr_b32 s{st0}, s{sm}, 3')
        k.e(f's_lshl_b32 s{shead}, s{sg}, 2')
        k.e(f's_add_u32 s{shead}, s{shead}, s{st0}')
    else:
        k.e(f's_mov_b32 s{sqb}, s{sg}')
        k.e(f's_mov_b32 s{shead}, s{sm}')
    k.e(f'v_lshlrev_b32 v{vl16}, 4, v{l}')

    def stores(lst, through=False):
        if through:
            for s_ in lst: k.e(s_ + ' sc1')
            return
        a, b = L('st'), L('st')
        k.e(f's_cmp_eq_u32 s{sfast}, 0')
        k.e(f's_cbranch_scc1 {k.lab(a)}')
        for s_ in lst: k.e(s_)
        k.e(f's_branch {k.lab(b)}')
        k.label(a)
        for s_ in lst: k.e(s_ + ' sc1')
        k.label(b)
    def flag(soff, nyounger=0, D=None, through=False):
        D = SFL if D is None else D
        k.e(f'v_mov_b32 v{tmp}, 0')
        k.e(f'v_mov_b32 v{tmp+1}, 1')
        k.e(f's_waitcnt vmcnt({nyounger})')
        k.e('s_mov_b64 exec, 1')
        stores([f'buffer_store_dword v{tmp+1}, v{tmp}, {sr(D,4)}, s{soff} offen'], through)
        k.e('s_mov_b64 exec, -1')
    def poll(soff, mask_lo, mask_hi):
        a, b = L('pl'), L('pl')
        k.e(f'v_lshlrev_b32 v{tmp}, 2, v{l}')
        k.e(f's_mov_b32 exec_lo, {mask_lo}')
        k.e(f's_mov_b32 exec_hi, {mask_hi}')
        k.e(f's_mov_b32 s{sit}, 0')
        k.label(a)
        k.e(f'buffer_load_dword v{tmp+1}, v{tmp}, {sr(SFL,4)}, s{soff} offen sc1')
        k.e(f's_add_u32 s{sit}, s{sit}, 1')
        k.e('s_waitcnt vmcnt(0)')
        k.e(f'v_cmp_eq_u32 vcc, 0, v{tmp+1}')
        k.e(f's_cmp_ge_u32 s{sit}, {POLL_LIMIT}')
        k.e(f's_cbranch_vccz {k.lab(b)}')
        k.e(f's_cbranch_scc0 {k.lab(a)}')
        k.label(b)
        k.e('s_mov_b64 exec, -1')

    KB, VB, ONES = 0, 65536, 131072
    UN = 4
    EXA = ONES + UN*1024
    XRES = 155648
    stb, sla, sga = sa, sb, sc_
    k.e(f's_lshl_b32 s{stb}, s{sqb}, 3')
    k.e(f's_lshl_b32 s{st1}, s{sr4}, 1')
    k.e(f's_add_u32 s{stb}, s{stb}, s{st1}')
    k.e(f's_add_u32 s{stb}, s{stb}, s{srole}')
    Q = [k.v(4), k.v(4)]
    vk, vv, vinc, vxt, dummy = k.v(), k.v(), k.v(), k.v(), k.v()
    S = [k.v(16), k.v(16)]
    NM = [k.v(16), k.v(16)]
    O = [k.v(16), k.v(16)]
    P = [k.v(8), k.v(8)]
    KFr = k.v(4); V0 = k.v(4); V1 = k.v(4)
    ON = S[0]
    k.e(f'v_and_b32 v{tmp}, 11, v0')
    k.e(f'v_cmp_eq_u32 vcc, 0, v{tmp}')
    k.e(f'v_mov_b32 v{tmp+1}, 0x3f803f80')
    k.e(f'v_lshlrev_b32 v{tmp}, 4, v0')
    k.e(f'v_cndmask_b32 v{ON}, 0, v{tmp+1}, vcc')
    k.e(f'v_and_b32 v{tmp}, {UN*1024-1}, v{tmp}')
    for d in range(1, 4):
        k.e(f'v_mov_b32 v{ON+d}, v{ON}')
    k.e(f'v_add_u32 v{tmp}, {ONES}, v{tmp}')
    k.e(f'ds_write_b128 v{tmp}, {vr(ON,4)}')
    CNT = 154112
    k.e(f'v_mov_b32 v{tmp}, {CNT}')
    k.e(f'v_mov_b32 v{tmp+2}, 0')
    k.e(f'v_mov_b32 v{tmp+3}, 0')
    k.e(f'ds_write_b64 v{tmp}, {vr(tmp+2,2)}')
    k.e(f's_lshl_b32 s{st0}, s{shead}, 16')
    k.e(f's_and_b32 s{st1}, s{sw}, 1')
    k.e(f's_lshl_b32 s{sla}, s{st1}, 16')
    k.e(f's_lshl_b32 s{sga}, s{st1}, 21')
    k.e(f's_bfe_u32 s{st1}, s{sw}, 0x10001')
    k.e(f's_lshl_b32 s{st1}, s{st1}, 15')
    k.e(f's_lshl_b32 s{st2}, s{srole}, 10')
    k.e(f's_add_u32 s{st1}, s{st1}, s{st2}')
    k.e(f's_add_u32 s{sla}, s{sla}, s{st1}')
    k.e(f's_add_u32 s{sga}, s{sga}, s{st1}')
    k.e(f's_add_u32 s{sga}, s{sga}, s{st0}')
    k.e(f's_add_u32 s{sga}, s{sga}, {KF}')
    k.e(f's_lshl_b32 s{st1}, s{stb}, 10')
    k.e(f's_add_u32 s{st1}, s{st1}, s{st0}')
    k.e(f's_xor_b32 s{st2}, s{st1}, 1024')
    k.e(f's_lshl_b32 s{sit}, s{sg}, 12')
    k.e(f's_add_u32 s{sit}, s{sit}, {FL}')
    k.e('s_waitcnt lgkmcnt(0)')
    k.stamp('karg')
    srd(k, SA, sWS, sWS+1, FL)
    nvm = [0]; done = {}
    def vm(txt, tag=None):
        k.e(txt); nvm[0] += 1
        if tag is not None: done[tag] = nvm[0]
    def kv_round(r):
        k.e(f's_add_u32 m0, s{sla}, {r*2048}')
        k.e(f's_add_u32 s{st0}, s{sga}, {r*2048}')
        vm(f'buffer_load_dwordx4 v{vl16}, {sr(SA,4)}, s{st0} offen{KVPOL} lds', ('kv', r))
    vm(f'buffer_load_dwordx4 {vr(Q[0],4)}, v{vl16}, {sr(SA,4)}, s{st1} offen')
    vm(f'buffer_load_dwordx4 {vr(Q[1],4)}, v{vl16}, {sr(SA,4)}, s{st2} offen')
    k.e(f'v_lshlrev_b32 v{tmp}, 2, v{t}')
    for s_, so in ((0, st1), (1, st2)):
        k.e(f's_lshr_b32 s{so}, s{so}, 3')
        k.e(f's_add_u32 s{so}, s{so}, {DG}')
        vm(f'buffer_load_dword v{NM[s_]}, v{tmp}, {sr(SA,4)}, s{so} offen')
    for r in range(UPR): kv_round(r)
    srd(k, SFL, sWS, sWS+1, 4096, f's{sit}')
    HK = k.a(8); AWO = k.a(32); AW1 = k.a(64)
    swoA, sw1A = sPA, sPA+1
    srd(k, SB, sWO, sWO+1, 512*1024)
    srd(k, SC, sW12, sW12+1, 512*3584)
    k.e(f's_lshl_b32 s{swoA}, s{sr4}, 15')
    k.e(f's_lshl_b32 s{st0}, s{srole}, 18')
    k.e(f's_add_u32 s{swoA}, s{swoA}, s{st0}')
    k.e(f's_and_b32 s{st0}, s{sm}, 7')
    k.e(f's_lshl_b32 s{st0}, s{st0}, 7')
    k.e(f's_add_u32 s{swoA}, s{swoA}, s{st0}')
    k.e(f's_cmp_ge_u32 s{sm}, 14')
    k.e(f's_cselect_b32 s{st1}, 14, 0')
    k.e(f's_sub_u32 s{st1}, s{sm}, s{st1}')
    k.e(f's_lshl_b32 s{sw1A}, s{st1}, 8')
    k.e(f's_mul_i32 s{st1}, s{sr4}, {128*3584}')
    k.e(f's_add_u32 s{sw1A}, s{sw1A}, s{st1}')
    k.e(f's_xor_b32 s{st1}, s{srole}, 1')
    k.e(f's_lshl_b32 s{st1}, s{st1}, 7')
    k.e(f's_add_u32 s{sw1A}, s{sw1A}, s{st1}')
    k.e(f's_mul_i32 s{st0}, s{sm}, 57344')
    k.e(f's_min_u32 s{st1}, s{sw}, 6')
    k.e(f's_lshl_b32 s{st1}, s{st1}, 13')
    k.e(f's_add_u32 s{st0}, s{st0}, s{st1}')
    k.e(f's_add_u32 s{sPB}, s{sW12+2}, s{st0}')
    k.e(f's_addc_u32 s{sPB+1}, s{sW12+3}, 0')
    k.e(f's_lshl_b32 s{st0}, s{srole}, 15')
    k.e(f'v_add_u32 v{vk}, s{st0}, v{vl16}')
    k.e(f'v_and_b32 v{tmp}, 15, v{l}')
    k.e(f'v_lshlrev_b32 v{tmp}, 4, v{tmp}')
    k.e(f'v_lshl_add_u32 v{tmp}, v{h}, 8, v{tmp}')
    k.e(f'v_bfe_u32 v{tmp+1}, v{l}, 4, 1')
    k.e(f'v_xor_b32 v{tmp+2}, 1, v{tmp+1}')
    k.e(f'v_lshlrev_b32 v{vinc}, 12, v{tmp+2}')
    k.e(f'v_mul_u32_u24 v{tmp+2}, s{st0}, v{tmp+2}')
    k.e(f'v_lshl_add_u32 v{vv}, v{tmp+1}, 16, v{tmp}')
    k.e(f'v_add_u32 v{vv}, v{vv}, v{tmp+2}')
    k.e(f'v_add_u32 v{vv}, {VB}, v{vv}')
    for s_ in range(2):
        for r_ in range(16):
            k.e(f'v_mov_b32 v{O[s_]+r_}, 0')
        for d in range(4):
            k.e(f'v_mov_b32 v{P[s_]+4+d}, 0')
    gwo, gw1, gx = tmp+2, tmp+3, tmp+1
    k.e(f'v_bfe_u32 v{tmp}, v{l}, 4, 1')
    k.e(f'v_lshlrev_b32 v{tmp}, 2, v{tmp}')
    k.e(f'v_and_b32 v{gx}, 7, v{l}')
    k.e(f'v_xor_b32 v{tmp}, v{tmp}, v{gx}')
    k.e(f'v_lshlrev_b32 v{tmp}, 4, v{tmp}')
    k.e(f'v_lshrrev_b32 v{vxt}, 3, v{l}')
    k.e(f'v_lshl_add_u32 v{gwo}, v{vxt}, 10, v{tmp}')
    k.e(f'v_mul_u32_u24 v{gw1}, 3584, v{vxt}')
    k.e(f'v_add_u32 v{gw1}, v{gw1}, v{tmp}')
    k.e(f'v_lshrrev_b32 v{tmp}, 4, v{l}')
    k.e(f'v_xor_b32 v{gx}, v{gx}, v{tmp}')
    k.e(f's_and_b32 s{st0}, s{sw}, 1')
    k.e(f's_lshl_b32 s{st0}, s{st0}, 2')
    k.e(f'v_xor_b32 v{gx}, s{st0}, v{gx}')
    k.e(f'v_lshlrev_b32 v{gx}, 4, v{gx}')
    k.e(f'v_lshl_add_u32 v{gx}, v{vxt}, 10, v{gx}')
    def kvsync(r):
        k.e(f's_waitcnt vmcnt({nvm[0] - done[("kv", r)]})')
        k.e('s_barrier')
    kvsync(0)
    k.stamp('first')
    for r in range(UPR, 4): kv_round(r)
    k.e(f'ds_read_b128 {vr(KFr,4)}, v{vk}')
    k.e(f'ds_read_b128 {vr(V1,4)}, v{vv} offset:512')
    k.e(f'ds_read_b128 {vr(V0,4)}, v{vv}')
    for s_ in range(2):
        k.e(f'v_mov_b32 v{NM[s_]+1}, v{NM[s_]}')
        for r_ in range(2, 16, 2):
            k.e(f'v_pk_mov_b32 {vr(NM[s_]+r_,2)}, {vr(NM[s_],2)}, {vr(NM[s_],2)}')
        if s_ == 0:
            k.e('s_waitcnt lgkmcnt(2)')
            k.e('s_nop 0')
            k.e(f'v_mfma_f32_32x32x16_bf16 {vr(S[0],16)}, {vr(KFr,4)}, {vr(Q[0],4)}, {vr(NM[0],16)}')
    def rowmax16(src, dst):
        k.e(f'v_max3_f32 v{dst}, v{src}, v{src+1}, v{src+2}')
        for q in range(3, 15, 2):
            k.e(f'v_max3_f32 v{dst}, v{dst}, v{src+q}, v{src+q+1}')
        k.e(f'v_max_f32 v{dst}, v{dst}, v{src+15}')
    def set_negm(m, nm):
        k.e(f'v_mov_b32 v{m+1}, v{m}')
        k.e('s_nop 1')
        k.e(f'v_permlane32_swap_b32 v{m}, v{m+1}')
        k.e('s_nop 1')
        k.e(f'v_max_f32 v{m}, v{m}, v{m+1}')
        for r_ in range(16):
            k.e(f'v_sub_f32 v{nm+r_}, 0, v{m}')
    k.e('s_waitcnt lgkmcnt(0)')
    k.e('s_nop 0')
    k.stamp('loop')
    def MQK(s_): k.e(f'v_mfma_f32_32x32x16_bf16 {vr(S[s_],16)}, {vr(KFr,4)}, {vr(Q[s_],4)}, {vr(NM[s_],16)}')
    def MP(s_, u): k.e(f'v_mfma_f32_32x32x16_bf16 {vr(O[s_],16)}, {vr(V1 if u else V0,4)}, {vr(P[s_]+4*u,4)}, {vr(O[s_],16)}')
    def E(s_, a_, b_):
        for r_ in range(a_, b_): k.e(f'v_exp_f32 v{S[s_]+r_}, v{S[s_]+r_}')
    def C(s_, a_, b_):
        for q in range(a_, b_): k.e(f'v_cvt_pk_bf16_f32 v{P[s_]+q}, v{S[s_]+2*q}, v{S[s_]+2*q+1}')
    side = []
    for q in range(8):
        side.append(lambda q=q: (k.e(f's_add_u32 s{st0}, s{swoA}, {(q//4)*131072 + (q%4)*8192}'),
                                 vm(f'buffer_load_dwordx4 {ar(AWO+4*q,4)}, v{gwo}, {sr(SB,4)}, s{st0} offen')))
    for q in range(16):
        side.append(lambda q=q: (k.e(f's_add_u32 s{st0}, s{sw1A}, {q*8*3584}'),
                                 vm(f'buffer_load_dwordx4 {ar(AW1+4*q,4)}, v{gw1}, {sr(SC,4)}, s{st0} offen')))
    def xres_copy():
        k.e(f's_lshr_b32 s{st0}, s{sm}, 3')
        k.e(f's_lshl_b32 s{st1}, s{sg}, 2')
        k.e(f's_add_u32 s{st0}, s{st0}, s{st1}')
        k.e(f's_lshl_b32 s{st0}, s{st0}, 16')
        srd(k, SB, sX, sX+1, 65536, f's{st0}')
        k.e(f's_lshl_b32 s{st0}, s{sw}, 10')
        k.e(f's_add_u32 m0, s{st0}, {XRES}')
        k.e(f's_lshl_b32 s{st0}, s{sw}, 13')
        k.e(f's_and_b32 s{st1}, s{sm}, 7')
        k.e(f's_lshl_b32 s{st1}, s{st1}, 7')
        k.e(f's_add_u32 s{st0}, s{st0}, s{st1}')
        vm(f'buffer_load_dwordx4 v{gx}, {sr(SB,4)}, s{st0} offen lds')
        srd(k, SB, sWS, sWS+1, 2*MB, OF)
    side.append(xres_copy)
    def w2_touch():
        k.e(f'v_lshlrev_b32 v{tmp}, 7, v{l}')
        vm(f'global_load_dword v{dummy}, v{tmp}, {sr(sPB,2)}')
    def ho_touch():
        sbs, ssh, ssr, smk = st0, st1, st2, sit
        k.e(f's_lshr_b32 s{sd}, s{sm}, 3')
        k.e(f's_lshl_b32 s{ssh}, s{sg}, 2')
        k.e(f's_add_u32 s{sd}, s{sd}, s{ssh}')
        k.e(f's_and_b32 s{smk}, s{sm}, 7')
        k.e(f's_lshl_b32 s{sbs}, s{sd}, 13')
        k.e(f's_lshl_b32 s{ssh}, s{smk}, 9')
        k.e(f's_add_u32 s{sbs}, s{sbs}, s{ssh}')
        k.e(f's_add_u32 s{sbs}, s{sbs}, {ST}')
        k.e(f's_lshl_b32 s{sd}, s{sd}, 16')
        k.e(f's_lshl_b32 s{smk}, s{smk}, 12')
        k.e(f's_add_u32 s{sd}, s{sd}, s{smk}')
        k.e(f's_add_u32 s{sd}, s{sd}, {HF}')
        k.e(f's_cmp_eq_u32 s{sw}, 4')
        k.e(f's_cselect_b32 s{sbs}, s{sd}, s{sbs}')
        k.e(f's_cselect_b32 s{smk}, 31, 3')
        k.e(f's_cselect_b32 s{ssr}, 15, 12')
        k.e(f's_mov_b32 s{ssh}, 5')
        k.e(f's_lshl_b32 s{sd}, s{sg}, 8')
        k.e(f's_add_u32 s{sd}, s{sd}, s{sm}')
        k.e(f's_lshl_b32 s{sd}, s{sd}, 10')
        k.e(f's_add_u32 s{sd}, s{sd}, {OF}')
        k.e(f's_cmp_eq_u32 s{sw}, {15 if HEADMAP else 5}')
        k.e(f's_cselect_b32 s{sbs}, s{sd}, s{sbs}')
        k.e(f's_cselect_b32 s{smk}, 7, s{smk}')
        k.e(f's_cselect_b32 s{ssr}, 15, s{ssr}')
        k.e(f's_cselect_b32 s{ssh}, 3, s{ssh}')
        k.e(f'v_lshrrev_b32 v{tmp}, s{ssh}, v{l}')
        k.e(f'v_lshlrev_b32 v{tmp}, s{ssr}, v{tmp}')
        k.e(f's_cmp_ge_u32 s{sm}, 14')
        k.e(f's_cselect_b32 s{ssh}, 4, 0')
        k.e(f's_cselect_b32 s{ssr}, 14, 0')
        k.e(f's_lshl_b32 s{sd}, s{sg}, 3')
        k.e(f's_add_u32 s{sd}, s{sd}, s{ssh}')
        k.e(f's_add_u32 s{sd}, s{sd}, s{sr4}')
        k.e(f's_mul_i32 s{sd}, s{sd}, {112*1024}')
        k.e(f's_sub_u32 s{ssr}, s{sm}, s{ssr}')
        k.e(f's_min_u32 s{ssr}, s{ssr}, 13')
        k.e(f's_lshl_b32 s{ssr}, s{ssr}, 13')
        k.e(f's_add_u32 s{sd}, s{sd}, s{ssr}')
        k.e(f's_add_u32 s{sd}, s{sd}, {FF}')
        k.e(f's_cmp_eq_u32 s{srole}, 0')
        k.e(f's_cselect_b32 s{sbs}, s{sd}, s{sbs}')
        k.e(f's_cselect_b32 s{smk}, 63, s{smk}')
        k.e(f's_cselect_b32 s{ssr}, 0, -1')
        k.e(f'v_and_b32 v{tmp}, s{ssr}, v{tmp}')
        k.e(f'v_and_b32 v{vxt}, s{smk}, v{l}')
        k.e(f'v_lshl_add_u32 v{tmp}, v{vxt}, 7, v{tmp}')
        k.e(f'v_add_u32 v{vxt}, s{sbs}, v{tmp}')
        k.e(f'v_lshlrev_b32 v{tmp}, 7, v{l}')
    def staggered(j):
        for j0, txt in ((HO0, f'global_load_dword v{dummy}, v{vxt}, {sr(sWS,2)}'), (W20, f'global_load_dword v{dummy}, v{tmp}, {sr(sPB,2)}')):
            if j0 is not None and j >= j0 and (j - j0) % STEP == 0 and (j - j0) // STEP < 8:
                a_ = L('tc')
                k.e(f's_cmp_lg_u32 s{sw}, {(j - j0) // STEP}')
                k.e(f's_cbranch_scc1 {k.lab(a_)}')
                k.e(txt)
                k.label(a_)
    def code_touch():
        a_ = L('pc')
        k.e(f's_getpc_b64 {sr(sPB,2)}')
        k.label(a_)
        k.e(f's_add_u32 s{sPB}, s{sPB}, {k.lab("fin")}-{k.lab(a_)}')
        k.e(f's_addc_u32 s{sPB+1}, s{sPB+1}, 0')
        k.e(f's_lshl_b32 s{st0}, s{sw}, 13')
        k.e(f's_min_u32 s{st0}, s{st0}, {k.lab("slow")}-{k.lab("fin")}-8192')
        k.e(f'v_lshlrev_b32 v{tmp}, 7, v{l}')
        k.e(f'v_add_u32 v{tmp}, s{st0}, v{tmp}')
        vm(f'global_load_dword v{dummy}, v{tmp}, {sr(sPB,2)}')
    if CODE:
        side.append(code_touch)
    def xt_store():
        a_ = L('xt')
        k.e(f's_cmp_lg_u32 s{sw}, 0')
        k.e(f's_cbranch_scc1 {k.lab(a_)}')
        k.e(f'v_mov_b32 v{tmp}, 0')
        k.e(f'v_mov_b32 v{vxt}, s{sfast}')
        k.e(f's_lshl_b32 s{st0}, s{sm}, 2')
        k.e('s_mov_b64 exec, 1')
        k.e(f'buffer_store_dword v{vxt}, v{tmp}, {sr(SFL,4)}, s{st0} offen sc1')
        k.e('s_mov_b64 exec, -1')
        k.label(a_)
    def xt_load():
        k.e(f'v_lshlrev_b32 v{tmp}, 2, v{t}')
        vm(f'buffer_load_dword v{vxt}, v{tmp}, {sr(SFL,4)}, 0 offen sc1')
    for j in range(32):
        i = j % UN
        k.c(f'key tile {j}')
        if KVB and j >= 15:
            if j in (15, 19, 23, 28): k.e(f's_setprio {3 - (15, 19, 23, 28).index(j)}')
        elif not KVFAST:
            k.e(f's_setprio {(2 - i) & 3}')
        elif j % 8 == 0:
            k.e(f's_setprio {3 - j // 8}')
        MQK(1)
        E(0, 0, 3)
        MP(1, 1)
        k.e(f'ds_read_b128 {vr(V1,4)}, v{vv} offset:{i*1024+512}')
        k.e(f'ds_read_b128 {vr(KFr,4)}, v{vk} offset:{(j+1)*1024}')
        E(0, 3, 8)
        C(0, 0, 4)
        if KVB:
            if j + 4 < 16: kv_round(j + 4)
        elif KVFAST:
            for r in (2*j + 4, 2*j + 5):
                if r < 16: kv_round(r)
        elif j % 2 == 0 and j // 2 + 4 < 16:
            kv_round(j // 2 + 4)
        E(0, 8, 11)
        k.e('s_waitcnt lgkmcnt(2)')
        MP(0, 0)
        E(0, 11, 16)
        C(0, 4, 8)
        k.e('s_waitcnt lgkmcnt(0)')
        E(1, 0, 2)
        MQK(0)
        E(1, 2, 5)
        MP(0, 1)
        E(1, 5, 8)
        C(1, 0, 4)
        for _ in range(2 if j >= SIDE2 else SPT):
            if side and j >= SIDE0:
                side.pop(0)()
        if j == 29:
            xt_load()
        if j == 2:
            xt_store()
        if j == 3:
            ho_touch()
        staggered(j)
        E(1, 8, 11)
        MP(1, 0)
        if i == UN - 1:
            k.e(f'v_add_u32 v{vv}, v{vv}, v{vinc}')
            k.e(f'ds_read_b128 {vr(V0,4)}, v{vv}')
        else:
            k.e(f'ds_read_b128 {vr(V0,4)}, v{vv} offset:{(i+1)*1024}')
        E(1, 11, 16)
        C(1, 4, 8)
        if j == 0:
            kvsync(1)
        elif KVB:
            if j in (2, 6, 10): kvsync((j + 5) // 2)
            if j == 14: kvsync(15)
        elif KVFAST:
            if j == 2: kvsync(3)
            if j == 6: kvsync(15)
        elif i == 2 and j + 2 < 32:
            kvsync((j + 5) // 2)
    assert not side
    k.stamp('loopend')
    k.e('s_setprio 0')
    MP(1, 1)
    k.e(f's_mul_i32 s{st0}, s{sw}, 2304')
    k.e(f's_add_u32 s{st0}, s{st0}, {EXA}')
    k.e(f'v_add_u32 v{tmp}, s{st0}, v{vl16}')
    k.e(f's_xor_b32 s{st1}, s{sw}, 4')
    k.e(f's_mul_i32 s{st1}, s{st1}, 2304')
    k.e(f's_add_u32 s{st1}, s{st1}, {EXA}')
    k.e(f'v_add_u32 v{tmp+1}, s{st1}, v{vl16}')
    k.e(f'v_lshlrev_b32 v{tmp+2}, 2, v{l}')
    k.e(f'v_add_u32 v{tmp+3}, s{st1}, v{tmp+2}')
    k.e(f'v_add_u32 v{tmp+2}, s{st0}, v{tmp+2}')
    k.e('s_waitcnt vmcnt(0)')
    k.e(f'v_cmp_ne_u32 vcc, s{sfast}, v{vxt}')
    k.e(f'ds_write_b128 v{tmp}, {vr(O[1],4)}')
    k.e(f'ds_write_b128 v{tmp}, {vr(O[1]+4,4)} offset:1024')
    k.e(f'ds_write_b32 v{tmp+2}, v{O[1]+8} offset:2048')
    k.e('s_cmp_eq_u64 vcc, 0')
    k.e(f's_cselect_b32 s{sfast}, 1, 0')
    k.e('s_waitcnt lgkmcnt(0)')
    k.e('s_barrier')
    k.e(f'ds_read_b32 v{S[0]+8}, v{tmp+3} offset:2048')
    k.e(f'ds_read_b128 {vr(S[0],4)}, v{tmp+1}')
    k.e(f'ds_read_b128 {vr(S[0]+4,4)}, v{tmp+1} offset:1024')
    k.e(f's_mov_b32 s{st0}, {f32(2.0**40)}')
    k.e('s_waitcnt lgkmcnt(0)')
    for r_ in (8, 0, 1, 2, 3, 4, 5, 6, 7):
        k.e(f'v_add_f32 v{O[0]+r_}, v{O[0]+r_}, v{S[0]+r_}')
    k.e(f'v_cmp_nlt_f32 vcc, v{O[0]+8}, s{st0}')
    k.e(f's_mov_b32 s{st1}, {f32(2.0**-40)}')
    k.e(f's_cbranch_vccnz {k.lab("slow")}')
    k.e(f'v_cmp_ngt_f32 vcc, v{O[0]+8}, s{st1}')
    k.e('s_nop 0')
    k.e(f's_cbranch_vccnz {k.lab("slow")}')
    k.label('fin')
    k.e(f'v_rcp_f32 v{tmp}, v{O[0]+8}')
    k.e(f's_lshl_b32 s{st0}, s{stb}, 15')
    k.e(f's_lshl_b32 s{st1}, s{shead}, 10')
    k.e(f's_add_u32 s{st0}, s{st0}, s{st1}')
    for r_ in range(8):
        k.e(f'v_mul_f32 v{O[0]+r_}, v{O[0]+r_}, v{tmp}')
    for q in range(4):
        k.e(f'v_cvt_pk_bf16_f32 v{P[0]+q}, v{O[0]+2*q}, v{O[0]+2*q+1}')
    stores([f'buffer_store_dwordx4 {vr(P[0],4)}, v{vl16}, {sr(SB,4)}, s{st0} offen'], HEADMAP)
    slow_regs = dict(Q=Q, S=S, NM=NM, O=O, P=P, KFr=KFr, V0=V0, V1=V1, vk=vk, vv=vv)
    sfl = sb
    k.e(f's_lshl_b32 s{sfl}, s{sr4}, 8')
    k.e(f's_lshl_b32 s{st0}, s{shead}, 3')
    k.e(f's_add_u32 s{sfl}, s{sfl}, s{st0}')
    k.e(f's_lshl_b32 s{st0}, s{srole}, 2')
    k.e(f's_add_u32 s{sfl}, s{sfl}, s{st0}')
    k.e(f's_add_u32 s{sfl}, s{sfl}, {FA_O}')
    srb, scb = sa, sc_
    k.e(f's_lshr_b32 s{srb}, s{sm}, 3')
    k.e(f's_lshl_b32 s{st0}, s{sg}, 2')
    k.e(f's_add_u32 s{srb}, s{srb}, s{st0}')
    k.e(f's_and_b32 s{scb}, s{sm}, 7')
    k.e(f's_lshl_b32 s{st0}, s{sr4}, 12')
    k.e(f's_lshl_b32 s{st1}, s{srole}, 15')
    k.e(f's_add_u32 s{st0}, s{st0}, s{st1}')
    k.e(f'v_add_u32 v{tmp+2}, s{st0}, v{vl16}')
    for q in range(8):
        k.e(f'ds_write_b128 v{tmp+2}, {ar(AWO+4*q,4)} offset:{(q//4)*16384 + (q%4)*1024}')
    if HEADMAP:
        k.e(f's_lshl_b32 s{st0}, s{sqb}, 12')
        k.e(f's_add_u32 s{st0}, s{st0}, {FL}')
        srd(k, SC, sWS, sWS+1, 4096, f's{st0}')
        flag(sfl, 0, SC, True)
    else:
        flag(sfl, 0)
    k.stamp('flagA')
    def w1_flush(q0=0, q1=16):
        if q0 == 0:
            k.e(f's_lshl_b32 s{st0}, s{sr4}, 14')
            k.e(f's_xor_b32 s{st1}, s{srole}, 1')
            k.e(f's_lshl_b32 s{st1}, s{st1}, 16')
            k.e(f's_add_u32 s{st0}, s{st0}, s{st1}')
            k.e(f'v_add_u32 v{tmp+3}, s{st0}, v{vl16}')
        for q in range(q0, q1):
            k.e(f'ds_write_b128 v{tmp+3}, {ar(AW1+4*q,4)} offset:{q*1024}')
    def arrive(word, drained=False):
        k.e(f'v_mov_b32 v{tmp}, {CNT}')
        k.e(f'v_mov_b32 v{tmp+1}, 1')
        if not drained: k.e('s_waitcnt lgkmcnt(0)')
        k.e('s_mov_b64 exec, 1')
        k.e(f'ds_add_u32 v{tmp}, v{tmp+1} offset:{4*word}')
        k.e('s_mov_b64 exec, -1')
    def lwait(word, target):
        a_ = L('wc')
        k.e(f'v_mov_b32 v{tmp}, {CNT}')
        k.label(a_)
        k.e(f'ds_read_b32 v{tmp+1}, v{tmp} offset:{4*word}')
        k.e('s_waitcnt lgkmcnt(0)')
        k.e(f'v_cmp_gt_u32 vcc, {target}, v{tmp+1}')
        k.e(f's_cbranch_vccnz {k.lab(a_)}')
    w1_arrive = lambda: arrive(0)
    w1_wait = lambda: lwait(0, 8)
    def tr_base(dst, sblk):
        k.e(f'v_bfe_u32 v{tmp}, v{l}, 2, 2')
        k.e(f'v_lshl_add_u32 v{tmp+1}, v{h}, 2, v{tmp}')
        k.e(f'v_lshlrev_b32 v{tmp+1}, 7, v{tmp+1}')
        k.e(f'v_lshrrev_b32 v{tmp}, 1, v{tmp}')
        k.e(f'v_xor_b32 v{tmp}, s{sblk}, v{tmp}')
        k.e(f'v_lshl_add_u32 v{tmp+1}, v{tmp}, 6, v{tmp+1}')
        k.e(f'v_bfe_u32 v{tmp}, v{l}, 4, 1')
        k.e(f'v_lshl_add_u32 v{tmp+1}, v{tmp}, 5, v{tmp+1}')
        k.e(f'v_and_b32 v{tmp}, 3, v{l}')
        k.e(f'v_lshl_add_u32 v{dst}, v{tmp}, 3, v{tmp+1}')
    class Cnt:
        def __init__(self, name, cap): self.n = 0; self.at = {}; self.name = name; self.cap = cap; self.floor = 0
        def op(self, txt, tag=None):
            k.e(txt); self.n += 1
            if tag is not None: self.at[tag] = self.n
        def need(self, tag):
            if self.at[tag] <= self.floor: return None
            self.floor = self.at[tag]
            return f'{self.name}({min(self.cap, self.n - self.at[tag])})'
        def all(self):
            self.floor = self.n
            return f'{self.name}(0)'
    def wait(*parts):
        parts = [p_ for p_ in parts if p_]
        if parts: k.e('s_waitcnt ' + ' '.join(parts))
    EX = 153600
    SLOTS = [16, 17, 19, 0, 1, 2, 3, 4, 5, 6, 7, 8, 9, 10, 11, 12, 13, 14, 15, 18, 16, 17, 19, 0, 1, 2, 3, 4]
    k.e(f's_cmp_eq_u32 s{srole}, 0')
    k.e(f's_cbranch_scc1 {k.lab("comp")}')

    k.vn = BASE
    vow = [k.v() for _ in range(2)]
    WR = k.v(112, 4)
    law = k.v()
    k.e(f's_and_b32 s{st2}, s{sr4}, 1')
    tr_base(law, st2)
    k.e(f's_lshr_b32 s{st2}, s{sr4}, 1')
    k.e(f's_lshl_b32 s{st2}, s{st2}, 16')
    k.e(f'v_add_u32 v{law}, s{st2}, v{law}')
    LSEL = selector(k, l, tmp)
    LWF = [k.v(4) for _ in range(3)]
    LCS = k.v(4)
    k.e(f'v_bfe_u32 v{tmp}, v{l}, 4, 1')
    k.e(f'v_lshlrev_b32 v{tmp}, 2, v{tmp}')
    k.e(f'v_and_b32 v{tmp+1}, 7, v{l}')
    k.e(f'v_xor_b32 v{tmp}, v{tmp}, v{tmp+1}')
    k.e(f'v_lshlrev_b32 v{tmp}, 4, v{tmp}')
    k.e(f'v_lshrrev_b32 v{tmp+2}, 3, v{l}')
    k.e(f'v_lshl_add_u32 v{vow[0]}, v{tmp+2}, 10, v{tmp}')
    k.e(f'v_add_u32 v{vow[1]}, 8192, v{vow[0]}')
    swo, smw = sPA, sPA+1
    k.e(f's_lshl_b32 s{swo}, s{sr4}, 14')
    k.e(f's_lshl_b32 s{st0}, s{scb}, 7')
    k.e(f's_add_u32 s{swo}, s{swo}, s{st0}')
    k.e(f's_lshl_b32 s{smw}, s{sr4}, 11')
    sxo, smx = sPB, sPB+1
    k.e(f's_lshl_b32 s{sxo}, s{srb}, 16')
    k.e(f's_lshr_b32 s{st0}, s{sr4}, 1')
    k.e(f's_lshl_b32 s{st0}, s{st0}, 15')
    k.e(f's_and_b32 s{st1}, s{sr4}, 1')
    k.e(f's_lshl_b32 s{st1}, s{st1}, 12')
    k.e(f's_add_u32 s{smx}, s{st0}, s{st1}')
    k.e(f's_add_u32 s{sxo}, s{sxo}, s{smx}')
    srd(k, SA, sW12+2, sW12+3, 1792*1024)
    k.e(f's_lshr_b32 s{st0}, s{sm}, 3')
    k.e(f's_lshl_b32 s{st0}, s{st0}, 8')
    k.e(f's_add_u32 s{st0}, s{st0}, {FA_O}')
    poll(st0, -1, -1)
    k.stamp('L:pollA')
    def ochunk(c):
        k.e(f's_add_u32 m0, s{smx}, {65536 + c*8192}')
        k.e(f's_add_u32 s{st0}, s{sxo}, {c*8192}')
        for i in range(4):
            k.e(f'buffer_load_dwordx4 v{vl16}, {sr(SB,4)}, s{st0} offen offset:{i*1024}{LD} lds')
    ochunk(0); ochunk(1)
    k.e('s_waitcnt vmcnt(4) lgkmcnt(0)')
    k.e('s_barrier')
    ochunk(2); ochunk(3)
    for c in range(1, 4):
        k.e(f's_waitcnt vmcnt({4*(3-c)})')
        k.e('s_barrier')
    k.e('s_barrier')
    k.stamp('L:b3end')
    VM = Cnt('vmcnt', 63)
    def wreg(q, i):
        q = q - 26 if q >= 26 else q
        return vr(WR+8*q+4*i, 4) if q < 14 else ar(AWO+8*(q-14)+4*i, 4)
    def wload(q, thin=False):
        c, hf = (q, 0) if q < 14 else (q - 14, 1)
        k.e(f's_add_u32 s{st0}, s{swo}, {c*131072 + hf*65536}')
        for i in range(2):
            VM.op(f'buffer_load_dwordx4 {wreg(q,i)}, v{vow[i]}, {sr(SA,4)}, s{st0} offen', q)
        if thin: k.e(f's_waitcnt vmcnt({THIN})')
    wa = [k.v() for _ in range(3)]
    k.e(f'v_add_u32 v{wa[0]}, s{smw}, v{vl16}')
    k.e(f'v_add_u32 v{wa[1]}, 65536, v{wa[0]}')
    k.e(f'v_add_u32 v{wa[2]}, 131072, v{wa[0]}')
    def wflush(q):
        wait(VM.need(q))
        for i in range(2):
            off = SLOTS[q]*8192 + i*1024
            k.e(f'ds_write_b128 v{wa[off//65536]}, {wreg(q,i)} offset:{off % 65536}')
    a_, b_ = L('ld'), L('ld')
    k.e(f's_cmp_ge_u32 s{sm}, 28')
    k.e(f's_cbranch_scc1 {k.lab(a_)}')
    w1_flush()
    w1_arrive()
    k.label(a_)
    for q in range(NT1): wload(q, True)
    k.e(f's_cmp_ge_u32 s{sm}, 28')
    k.e(f's_cbranch_scc1 {k.lab(b_)}')
    w1_wait()
    for n in range(32):
        if n == 0:
            for n2 in range(2):
                for w2 in range(2):
                    k.e(f'ds_read_b64_tr_b16 {vr(LWF[n2]+2*w2,2)}, v{law} offset:{n2*2048 + w2*1024}')
        if n + 2 < 32:
            for w2 in range(2):
                k.e(f'ds_read_b64_tr_b16 {vr(LWF[(n+2)%3]+2*w2,2)}, v{law} offset:{(n+2)*2048 + w2*1024}')
        k.e(f's_waitcnt lgkmcnt({min(4, 2*(31-n))})')
        k.e(f'v_mfma_f32_16x16x32_bf16 {vr(LCS,4)}, {vr(LSEL,4)}, {vr(LWF[n%3],4)}, {"0" if n == 0 else vr(LCS,4)}')
    k.e(f's_lshl_b32 s{st0}, s{sr4}, 7')
    k.e(f's_add_u32 s{st0}, s{st0}, {EX}')
    k.e(f'v_lshlrev_b32 v{tmp}, 2, v{t}')
    k.e(f'v_add_u32 v{tmp}, s{st0}, v{tmp}')
    k.e('s_nop 3')
    k.e(f'ds_write_b32 v{tmp}, v{LCS}')
    arrive(0)
    k.stamp('+L:cs')
    k.label(b_)
    for q in range(NT1, NT1 + NT2): wload(q, True)
    b_ = L('ld')
    k.e(f's_cmp_ge_u32 s{sm}, 28')
    k.e(f's_cbranch_scc1 {k.lab(b_)}')
    lwait(1, 4)
    k.label(b_)
    fl_ = list(range(11))
    for q in range(NT1 + NT2, NPRE):
        wload(q)
        if fl_ and fl_[0] < NT1 + NT2: wflush(fl_.pop(0))
    k.stamp('+L:w2iss')
    for q in fl_: wflush(q)
    k.e('s_waitcnt lgkmcnt(0)')
    k.stamp('L:w2')
    k.e('s_barrier')
    for q in range(NPRE, 28): wload(q)
    for q in range(11, 19): wflush(q)
    k.e('s_waitcnt lgkmcnt(0)')
    k.e('s_barrier')
    for q in range(19, 28): wflush(q)
    k.e('s_waitcnt lgkmcnt(0)')
    k.e('s_barrier')
    k.e('s_barrier')
    if WB:
        a_ = L('wb')
        k.e(f's_lshl_b32 s{st0}, s{sm}, 2')
        k.e(f's_add_u32 s{st0}, s{st0}, s{sr4}')
        k.e(f's_cmp_lg_u32 s{st0}, 0')
        k.e(f's_cbranch_scc1 {k.lab(a_)}')
        k.e('buffer_wbl2 sc1')
        k.label(a_)
    k.e('s_barrier')
    k.e(f's_branch {k.lab("done")}')

    k.label('comp')
    if PRIO: k.e('s_setprio 3')
    k.vn = BASE
    stq, scq = sPA, sPA+1
    k.e(f's_lshr_b32 s{stq}, s{sr4}, 1')
    k.e(f's_and_b32 s{scq}, s{sr4}, 1')
    awb = [k.v()]
    KEEP5 = k.vn
    axb = k.v()
    axr = [k.v() for _ in range(4)]
    k.e(f's_lshl_b32 s{st0}, s{stq}, 15')
    k.e(f's_add_u32 s{st0}, s{st0}, 65536')
    k.e(f'v_add_u32 v{axb}, s{st0}, v{vl16}')
    tr_base(awb[0], scq)
    k.e(f'v_bfe_u32 v{tmp}, v{t}, 1, 3')
    k.e(f's_lshl_b32 s{st0}, s{scq}, 2')
    k.e(f'v_xor_b32 v{tmp}, s{st0}, v{tmp}')
    k.e(f'v_lshlrev_b32 v{tmp+1}, 7, v{t}')
    k.e(f'v_lshl_add_u32 v{tmp+1}, v{h}, 3, v{tmp+1}')
    k.e(f's_lshl_b32 s{st0}, s{stq}, 12')
    k.e(f's_add_u32 s{st0}, s{st0}, {XRES}')
    k.e(f'v_add_u32 v{tmp+1}, s{st0}, v{tmp+1}')
    for g_ in range(4):
        k.e(f'v_xor_b32 v{tmp+2}, {g_}, v{tmp}')
        k.e(f'v_lshl_add_u32 v{axr[g_]}, v{tmp+2}, 4, v{tmp+1}')
    DEPTH = 4
    XF = [k.v(4) for _ in range(DEPTH)]
    WF = [k.v(4) for _ in range(DEPTH)]
    ACC = k.v(16)
    RES = k.v(8, 4); U = k.v(16); OUT = k.v(8, 4)
    srd(k, SB, sWS, sWS+1, 2*MB, HF)
    srd(k, SC, sWS, sWS+1, 256*1024, ST)
    def gemm64(NKS, xaddr, waddr, tag, extra=None):
        def reads(n):
            p = n % DEPTH
            xa, xo = xaddr(n); wa, wo = waddr(n)
            k.e(f'ds_read_b128 {vr(XF[p],4)}, v{xa} offset:{xo}')
            for w2 in range(2):
                k.e(f'ds_read_b64_tr_b16 {vr(WF[p]+2*w2,2)}, v{wa} offset:{wo + w2*1024}')
        k.e('s_waitcnt lgkmcnt(0)')
        k.e('s_barrier')
        k.stamp(tag + ':c0')
        reads(0); reads(1)
        for n in range(NKS):
            if n + 2 < NKS:
                if (n + 2) % 8 == 0:
                    k.e('s_waitcnt lgkmcnt(0)')
                    k.e('s_barrier')
                    reads(n + 2)
                else:
                    reads(n + 2)
                    if (n + 2) % 8 != 1:
                        k.e('s_waitcnt lgkmcnt(6)')
            else:
                k.e(f's_waitcnt lgkmcnt({3*(NKS-1-n)})')
            Cop = '0' if n == 0 else vr(ACC, 16)
            p = n % DEPTH
            k.e(f'v_mfma_f32_32x32x16_bf16 {vr(ACC,16)}, {vr(WF[p],4)}, {vr(XF[p],4)}, {Cop}')
            if extra: extra(n)
    def extra3(n):
        if n == 28:
            for g_ in range(4):
                k.e(f'ds_read_b64 {vr(RES+2*g_,2)}, v{axr[g_]}')
    gemm64(32, lambda n: (axb, n*1024), lambda n: (awb[0], n*2048), 'p3', extra3)
    k.e('s_barrier')
    k.stamp('p3:end')
    for d in range(8):
        k.e(f'v_lshlrev_b32 v{U+2*d}, 16, v{RES+d}')
        k.e(f'v_and_b32 v{U+2*d+1}, 0xffff0000, v{RES+d}')
    k.e(f's_lshl_b32 s{st0}, s{srb}, 1')
    k.e(f's_add_u32 s{st0}, s{st0}, s{stq}')
    k.e(f's_lshl_b32 s{st2}, s{st0}, 12')
    k.e(f's_and_b32 s{sfl}, s{st0}, 7')
    k.e(f's_lshl_b32 s{sfl}, s{sfl}, 6')
    k.e(f's_lshl_b32 s{st0}, s{st0}, 15')
    k.e(f's_lshl_b32 s{st1}, s{scb}, 1')
    k.e(f's_add_u32 s{st1}, s{st1}, s{scq}')
    k.e(f's_lshl_b32 s{sit}, s{st1}, 11')
    k.e(f's_add_u32 s{st0}, s{st0}, s{sit}')
    k.e(f's_lshl_b32 s{sit}, s{st1}, 8')
    k.e(f's_add_u32 s{st2}, s{st2}, s{sit}')
    k.e(f's_lshl_b32 s{sit}, s{st1}, 2')
    k.e(f's_add_u32 s{sfl}, s{sfl}, s{sit}')
    k.e(f's_add_u32 s{sfl}, s{sfl}, {F3_O}')
    for r_ in range(0, 16, 2):
        k.e(f'v_pk_add_f32 {vr(U+r_,2)}, {vr(U+r_,2)}, {vr(ACC+r_,2)}')
    for q in range(8):
        k.e(f'v_cvt_pk_bf16_f32 v{OUT+q}, v{U+2*q}, v{U+2*q+1}')
    stores([f'buffer_store_dwordx4 {vr(OUT,4)}, v{vl16}, {sr(SB,4)}, s{st0} offen',
            f'buffer_store_dwordx4 {vr(OUT+4,4)}, v{vl16}, {sr(SB,4)}, s{st0} offen offset:1024'])
    SQ = ACC
    k.e(f'v_pk_mul_f32 {vr(SQ,2)}, {vr(U,2)}, {vr(U,2)}')
    for r_ in range(2, 16, 2):
        k.e(f'v_pk_fma_f32 {vr(SQ,2)}, {vr(U+r_,2)}, {vr(U+r_,2)}, {vr(SQ,2)}')
    for r_ in range(2, 16, 2):
        k.e(f'v_pk_add_f32 {vr(U,2)}, {vr(U,2)}, {vr(U+r_,2)}')
    k.e(f'v_add_f32 v{SQ+2}, v{U}, v{U+1}')
    k.e(f'v_add_f32 v{SQ+3}, v{SQ}, v{SQ+1}')
    k.e(f'v_mov_b32 v{SQ+4}, v{SQ+2}')
    k.e(f'v_mov_b32 v{SQ+5}, v{SQ+3}')
    k.e(f'v_lshlrev_b32 v{tmp+2}, 3, v{t}')
    k.e('s_nop 0')
    k.e(f'v_permlane32_swap_b32 v{SQ+2}, v{SQ+4}')
    k.e(f'v_permlane32_swap_b32 v{SQ+3}, v{SQ+5}')
    for q in range(8):
        k.e(f'v_accvgpr_write_b32 a{HK+q}, v{OUT+q}')
    k.e(f'v_pk_add_f32 {vr(SQ+2,2)}, {vr(SQ+2,2)}, {vr(SQ+4,2)}')
    stores([f'buffer_store_dwordx2 {vr(SQ+2,2)}, v{tmp+2}, {sr(SC,4)}, s{st2} offen'])
    a_ = L('w1')
    k.e(f's_cmp_ge_u32 s{sm}, 28')
    k.e(f's_cbranch_scc1 {k.lab(a_)}')
    w1_flush(0, 6)
    k.label(a_)
    flag(sfl, 0)
    k.stamp('flag3')
    k.e(f's_cmp_ge_u32 s{sm}, 28')
    k.e(f's_cbranch_scc1 {k.lab("c5")}')

    k.vn = KEEP5
    w1_flush(6, 16)
    stb4, scb4 = sPB, sPB+1
    k.e(f's_cmp_ge_u32 s{sm}, 14')
    k.e(f's_cselect_b32 s{st1}, 1, 0')
    k.e(f's_lshl_b32 s{stb4}, s{st1}, 2')
    k.e(f's_add_u32 s{stb4}, s{stb4}, s{sr4}')
    k.e(f's_mul_i32 s{st1}, s{st1}, 14')
    k.e(f's_sub_u32 s{scb4}, s{sm}, s{st1}')
    bw = [k.v(), k.v()]
    k.e(f's_lshl_b32 s{st0}, s{scq}, 6')
    k.e(f'v_xor_b32 v{bw[0]}, s{st0}, v{awb[0]}')
    k.e(f'v_xor_b32 v{bw[1]}, 64, v{bw[0]}')
    nm = k.v(2)
    HV = k.v(32)
    WF = [[k.v(4) for b_ in range(2)] for p in range(3)]
    ACC4 = [k.v(16) for i in range(4)]
    CS = k.v(16)
    vfl, vcs = tmp+2, tmp+3
    k.e(f'v_lshlrev_b32 v{nm}, 3, v{t}')
    k.e(f'v_lshl_add_u32 v{nm}, v{h}, 11, v{nm}')
    k.e(f's_lshl_b32 s{st0}, s{sg}, 3')
    k.e(f's_add_u32 s{st0}, s{st0}, s{stb4}')
    k.e(f's_lshl_b32 s{st1}, s{st0}, 15')
    k.e(f's_add_u32 s{st1}, s{st1}, {HF}')
    srd(k, SA, sWS, sWS+1, 32768, f's{st1}')
    k.e(f's_lshl_b32 s{st1}, s{st0}, 12')
    k.e(f's_add_u32 s{st1}, s{st1}, {ST}')
    srd(k, SC, sWS, sWS+1, 4096, f's{st1}')
    k.e(f's_mul_i32 s{st1}, s{st0}, {112*1024}')
    k.e(f's_lshl_b32 s{st2}, s{scb4}, 13')
    k.e(f's_add_u32 s{st1}, s{st1}, s{st2}')
    k.e(f's_add_u32 s{st1}, s{st1}, {FF}')
    srd(k, SB, sWS, sWS+1, 8192, f's{st1}')
    k.e(f's_lshl_b32 s{sfl}, s{stb4}, 6')
    k.e(f's_lshl_b32 s{st0}, s{scb4}, 2')
    k.e(f's_add_u32 s{sfl}, s{sfl}, s{st0}')
    k.e(f's_add_u32 s{sfl}, s{sfl}, {F4_O}')
    w1_arrive()
    k.e(f's_lshl_b32 s{st0}, s{stb4}, 6')
    k.e(f's_add_u32 s{st0}, s{st0}, {F3_O}')
    poll(st0, 0xffff, 0)
    k.stamp('poll3')
    VM = Cnt('vmcnt', 63); LG = Cnt('lgkmcnt', 15)
    hreg = lambda n: vr(HV+4*n, 4) if n < 8 else ar(AWO+4*(n-8), 4)
    def hload(n):
        if n % 4 == 0:
            k.e(f's_mov_b32 s{st2}, {n*1024}')
        VM.op(f'buffer_load_dwordx4 {hreg(n)}, v{vl16}, {sr(SA,4)}, s{st2} offen offset:{(n%4)*1024}{LD}', ('h', n))
    for n in range(HUP): hload(n)
    nh = [HUP]
    def rd4(g, b_):
        ps, n = g // 32, g % 32
        if g == 32:
            k.e(f'v_add_u32 v{bw[b_]}, 65536, v{bw[b_]}')
        for w2 in range(2):
            LG.op(f'ds_read_b64_tr_b16 {vr(WF[g%3][b_]+2*w2,2)}, v{bw[b_]} offset:{n*2048 + w2*1024}', ('w', g))
    w1_wait()
    k.e(f'v_lshlrev_b32 v{vcs}, 4, v{h}')
    k.e(f'v_add_u32 v{vcs}, {EX}, v{vcs}')
    k.e(f'v_lshlrev_b32 v{vfl}, 2, v{l}')
    k.stamp('p4:b0')
    for g in range(3):
        rd4(g, 0); rd4(g, 1)
    def csread(i, dst):
        for g_ in range(4):
            LG.op(f'ds_read_b128 {vr(dst+4*g_,4)}, v{vcs} offset:{i*128 + g_*32}', ('cs', i))
    def fstore(i):
        so = '0' if i < 2 else f's{st2}'
        stores([f'buffer_store_dwordx4 {vr(ACC4[i],4)}, v{vl16}, {sr(SB,4)}, {so} offen offset:{(i%2)*2048}',
                f'buffer_store_dwordx4 {vr(ACC4[i]+4,4)}, v{vl16}, {sr(SB,4)}, {so} offen offset:{(i%2)*2048+1024}'])
        VM.n += 2; VM.at[('f', i)] = VM.n
    fill = []
    for i, cs_ in ((0, CS), (1, HV)):
        fill.append(lambda i=i: wait(LG.need(('cs', i))))
        for r_ in range(16):
            fill.append(lambda i=i, r_=r_, cs_=cs_: k.e(f'v_fma_f32 v{ACC4[i]+r_}, v{cs_+r_}, v{nm}, v{ACC4[i]+r_}'))
        for q in range(8):
            fill.append(lambda i=i, q=q: k.e(f'v_cvt_pk_bf16_f32 v{ACC4[i]+q}, v{ACC4[i]+2*q}, v{ACC4[i]+2*q+1}'))
        for q in range(8):
            fill.append(lambda i=i, q=q: k.e(f'v_pk_max_i16 v{ACC4[i]+q}, v{ACC4[i]+q}, 0'))
        fill.append(lambda i=i: fstore(i))
    def p5_scalars():
        k.e(f's_lshl_b32 s{st0}, s{srb}, 1')
        k.e(f's_add_u32 s{st0}, s{st0}, s{stq}')
        k.e(f's_mul_i32 s{st1}, s{st0}, {112*1024}')
        k.e(f's_add_u32 s{st1}, s{st1}, {FF}')
        srd(k, SA, sWS, sWS+1, 112*1024, f's{st1}')
        k.e(f's_lshl_b32 s{st1}, s{st0}, 12')
        k.e(f's_add_u32 s{st1}, s{st1}, {ST}')
        srd(k, SC, sWS, sWS+1, 4096, f's{st1}')
        k.e(f's_and_b32 s{sd}, s{st0}, 7')
        k.e(f's_lshl_b32 s{sd}, s{sd}, 6')
        k.e(f's_add_u32 s{sd}, s{sd}, {F4_O}')
    for g in range(64):
        ps, n = g // 32, g % 32
        if g in (8, 16, 32, 48): k.stamp(f'+p4g{g}')
        M = lambda b_: k.e(f'v_mfma_f32_32x32x16_bf16 {vr(ACC4[2*ps+b_],16)}, {vr(WF[g%3][b_],4)}, {hreg(n)}, {"0" if n == 0 else vr(ACC4[2*ps+b_],16)}')
        def F(nn):
            for _ in range(nn):
                if g >= 35 and fill: fill.pop(0)()
        wait(VM.need(('h', n)), LG.need(('w', g)))
        M(0)
        if g == 32:
            arrive(1, True); LG.n += 1
            LG.op(f'ds_read_b32 v{tmp+1}, v{tmp}', 'cnt')
        if g + 3 < 64: rd4(g + 3, 0)
        if nh[0] < 32 and g % 2 == 0:
            hload(nh[0]); nh[0] += 1
        F(FPS)
        M(1)
        if g + 3 < 64: rd4(g + 3, 1)
        if nh[0] < 32:
            hload(nh[0]); nh[0] += 1
        F(FPS)
        if g == 16:
            assert nh[0] == 32
            for q in range(8):
                VM.op(f'buffer_load_dword v{CS+q}, v{nm}, {sr(SC,4)}, 0 offen offset:{q*256}{LD}', 'st')
        if g == 27:
            wait(VM.need('st'))
            for z in range(4): k.e(f'v_add_f32 v{CS+z}, v{CS+z}, v{CS+z+4}')
        if g == 28:
            for q in (2, 1):
                for z in range(q): k.e(f'v_add_f32 v{CS+z}, v{CS+z}, v{CS+z+q}')
        if g == 29:
            half_sum(k, [CS], CS+2)
        if g == 30:
            k.e(f'v_mul_f32 v{nm}, {f32(-1/512)}, v{CS}')
            round_bf16(k, nm)
        if g == 33:
            a_ = L('cw')
            wait(LG.need('cnt'))
            k.e(f'v_cmp_gt_u32 vcc, 12, v{tmp+1}')
            k.e(f's_cbranch_vccz {k.lab(a_)}')
            lwait(0, 12)
            k.label(a_)
            csread(0, CS)
        if g == 36: csread(1, HV)
        if g == 54:
            assert not fill
            p5_scalars()
        if g == FLA:
            flag(sfl, VM.n - VM.at[('f', 1)]); VM.n += 1
            k.e(f's_add_u32 s{sfl}, s{sfl}, 512')
        if g == 62:
            csread(2, CS); csread(3, HV)
            VM.op(f'buffer_load_dword v{HV+16}, v{vfl}, {sr(SFL,4)}, s{sd} offen sc1', 'fa')
    k.stamp('p4:end')
    wait(LG.all())
    k.e('s_barrier')
    a_ = L('fa')
    wait(VM.need('fa'))
    k.e(f'v_cmp_eq_u32 vcc, 0, v{HV+16}')
    k.e(f's_and_b32 s{st0}, vcc_lo, 0x3fff')
    k.e(f's_cbranch_scc0 {k.lab(a_)}')
    poll(sd, 0x3fff, 0)
    k.label(a_)
    k.stamp('poll4')
    NXR = 24
    XR5 = AWO
    sx5 = sPB
    VM = Cnt('vmcnt', 63)
    def xload(n):
        hf, c, u = n // 28, (n % 28) // 2, n % 2
        if u == 0:
            k.e(f's_add_u32 s{st1}, s{sx5}, {c*8192 + hf*4096}')
        VM.op(f'buffer_load_dwordx4 {ar(XR5+4*(n % NXR),4)}, v{vl16}, {sr(SA,4)}, s{st1} offen offset:{u*1024}{LD}', n)
    def xstart():
        k.e(f's_lshl_b32 s{sx5}, s{scq}, 11')
        for n in range(2*XUP): xload(n)
    xstart()
    k.e(f's_mov_b32 s{st2}, 4096')
    for i, cs_ in ((2, CS), (3, HV)):
        for r_ in range(0, 16, 2):
            k.e(f'v_pk_fma_f32 {vr(ACC4[i]+r_,2)}, {vr(cs_+r_,2)}, {vr(nm,2)}, {vr(ACC4[i]+r_,2)} op_sel_hi:[1,0,1]')
        for q in range(8):
            k.e(f'v_cvt_pk_bf16_f32 v{ACC4[i]+q}, v{ACC4[i]+2*q}, v{ACC4[i]+2*q+1}')
        for q in range(8):
            k.e(f'v_pk_max_i16 v{ACC4[i]+q}, v{ACC4[i]+q}, 0')
        fstore(i)
    k.e(f's_branch {k.lab("c5b")}')
    k.label('c5')
    p5_scalars()
    poll(sd, 0x3fff, 0)
    k.e('s_barrier')
    n_keep, at_keep = VM.n, dict(VM.at)
    xstart()
    for q in range(4):
        k.e(f'buffer_load_dword v{tmp}, v{vl16}, {sr(SA,4)}, 0 offen')
    VM.n, VM.at = n_keep, at_keep
    k.label('c5b')
    k.vn = KEEP5
    aw5 = [[k.v() for b_ in range(2)] for s_ in range(3)]
    WF5 = [[k.v(4) for b_ in range(2)] for p in range(3)]
    AC5 = [k.v(16) for b_ in range(2)]
    vst5, vf5 = k.v(), k.v()
    assert k.vn <= ACC4[2]
    k.vn = max(k.vn, ACC4[3] + 16)
    mean5, rstd5 = k.v(2), k.v(2)
    ST5 = ACC4[2]; RES = ACC4[3]; U = WF5[0][0]; OUT = ACC4[2]
    k.e(f's_lshl_b32 s{st0}, s{scq}, 12')
    k.e(f'v_add_u32 v{aw5[0][0]}, s{st0}, v{awb[0]}')
    k.e(f'v_xor_b32 v{aw5[0][1]}, 64, v{aw5[0][0]}')
    for s_ in (1, 2):
        for b_ in range(2):
            k.e(f'v_add_u32 v{aw5[s_][b_]}, {65536*s_}, v{aw5[0][b_]}')
    LG = Cnt('lgkmcnt', 15)
    def rd5(n, b_):
        off = SLOTS[n // 2]*8192 + (n % 2)*2048
        for w2 in range(2):
            LG.op(f'ds_read_b64_tr_b16 {vr(WF5[n%3][b_]+2*w2,2)}, v{aw5[off//65536][b_]} offset:{off % 65536 + w2*1024}', n)
    for n in range(3):
        rd5(n, 0); rd5(n, 1)
    k.e(f'v_lshlrev_b32 v{vst5}, 3, v{t}')
    k.e(f'v_lshl_add_u32 v{vst5}, v{h}, 11, v{vst5}')
    k.e(f'v_lshlrev_b32 v{vf5}, 2, v{l}')
    k.e(f's_add_u32 s{sd}, s{sd}, 512')
    k.stamp('p5:c0')
    nx = [2*XUP]; lim = [28]
    def xmore(n):
        if nx[0] < lim[0] and nx[0] - NXR < n:
            xload(nx[0]); nx[0] += 1
    for n in range(56):
        X = XR5 + 4*(n % NXR)
        if n in (8, 16, 28, 40): k.stamp(f'+p5k{n}')
        M = lambda b_: k.e(f'v_mfma_f32_32x32x16_bf16 {vr(AC5[b_],16)}, {vr(WF5[n%3][b_],4)}, {ar(X,4)}, {"0" if n == 0 else vr(AC5[b_],16)}')
        wait(VM.need(n), LG.need(n))
        M(0)
        if n in (19, 35):
            wait(LG.all())
            k.e('s_barrier')
        if n == WBN:
            k.e('s_barrier')
        if n + 3 < 56: rd5(n + 3, 0)
        xmore(n)
        M(1)
        if n + 3 < 56: rd5(n + 3, 1)
        xmore(n + 1)
        if n == FLB_:
            a_ = L('fb')
            k.e(f's_cmp_ge_u32 s{sm}, 28')
            k.e(f's_cbranch_scc1 {k.lab(a_)}')
            flag(sfl, VM.n - VM.at[('f', 3)])
            k.label(a_)
            k.e(f's_lshl_b32 s{st0}, s{srb}, 16')
            srd(k, SB, sOUT, sOUT+1, 65536, f's{st0}')
        if n == CKB - 5:
            VM.op(f'buffer_load_dword v{mean5}, v{vf5}, {sr(SFL,4)}, s{sd} offen sc1', 'fb')
        if n == CKB:
            a_ = L('fb')
            wait(VM.need('fb'))
            k.e(f'v_cmp_eq_u32 vcc, 0, v{mean5}')
            k.e(f's_and_b32 s{st0}, vcc_lo, 0x3fff')
            k.e(f's_cbranch_scc0 {k.lab(a_)}')
            poll(sd, 0x3fff, 0)
            k.label(a_)
            lim[0] = 56
        if n == STN:
            for q in range(8):
                VM.op(f'buffer_load_dwordx2 {vr(ST5+2*q,2)}, v{vst5}, {sr(SC,4)}, 0 offen offset:{q*256}{LD}', 'st')
        if n == 49:
            wait(VM.need('st'))
            for z in range(4):
                for e_ in range(2): k.e(f'v_add_f32 v{ST5+2*z+e_}, v{ST5+2*z+e_}, v{ST5+2*(z+4)+e_}')
        if n == 50:
            for q in (2, 1):
                for z in range(q):
                    for e_ in range(2): k.e(f'v_add_f32 v{ST5+2*z+e_}, v{ST5+2*z+e_}, v{ST5+2*(z+q)+e_}')
        if n == 51:
            half_sum(k, [ST5, ST5+1], ST5+2)
        if n == 53:
            ln_finish(k, ST5, ST5+1, mean5, rstd5)
        if n == 46:
            for d in range(8):
                k.e(f'v_accvgpr_read_b32 v{RES+d}, a{HK+d}')
    k.stamp('p5:end')
    RED = 5*8192
    k.e(f's_xor_b32 s{st0}, s{sr4}, 1')
    k.e(f's_lshl_b32 s{st0}, s{st0}, 12')
    k.e(f's_add_u32 s{st0}, s{st0}, 65536')
    k.e(f'v_add_u32 v{aw5[1][0]}, s{st0}, v{vl16}')
    k.e(f'v_xor_b32 v{aw5[0][0]}, 4096, v{aw5[1][0]}')
    vr_ = vst5
    k.e(f'v_lshlrev_b32 v{vr_}, 10, v{t}')
    k.e(f'v_lshl_add_u32 v{vr_}, v{h}, 4, v{vr_}')
    k.e(f's_lshl_b32 s{st0}, s{stq}, 15')
    k.e(f's_lshl_b32 s{st1}, s{scb}, 7')
    k.e(f's_add_u32 s{st0}, s{st0}, s{st1}')
    k.e(f's_lshl_b32 s{st1}, s{scq}, 6')
    k.e(f's_add_u32 s{st0}, s{st0}, s{st1}')
    for g_ in range(4):
        k.e(f'ds_write_b128 v{aw5[1][0]}, {vr(AC5[1]+4*g_,4)} offset:{g_*1024}')
    for d in range(8):
        k.e(f'v_lshlrev_b32 v{U+2*d}, 16, v{RES+d}')
        k.e(f'v_and_b32 v{U+2*d+1}, 0xffff0000, v{RES+d}')
    for r_ in range(0, 16, 2):
        k.e(f'v_pk_fma_f32 {vr(U+r_,2)}, {vr(AC5[0]+r_,2)}, {vr(rstd5,2)}, {vr(U+r_,2)} op_sel_hi:[1,0,1]')
    k.e('s_waitcnt lgkmcnt(0)')
    k.e('s_barrier')
    for g_ in range(4):
        k.e(f'ds_read_b128 {vr(AC5[1]+4*g_,4)}, v{aw5[0][0]} offset:{g_*1024}')
    for g_ in range(4):
        k.e(f's_waitcnt lgkmcnt({3-g_})')
        for r_ in (4*g_, 4*g_+2):
            k.e(f'v_pk_fma_f32 {vr(U+r_,2)}, {vr(AC5[1]+r_,2)}, {vr(rstd5,2)}, {vr(U+r_,2)} op_sel_hi:[1,0,1]')
    for q in range(8):
        k.e(f'v_cvt_pk_bf16_f32 v{OUT+q}, v{U+2*q}, v{U+2*q+1}')
    k.e('s_nop 1')
    for pz in range(2):
        k.e(f'v_permlane32_swap_b32 v{OUT+4*pz}, v{OUT+4*pz+2}')
        k.e(f'v_permlane32_swap_b32 v{OUT+4*pz+1}, v{OUT+4*pz+3}')
    k.e(f'buffer_store_dwordx4 {vr(OUT,4)}, v{vr_}, {sr(SB,4)}, s{st0} offen')
    k.e(f'buffer_store_dwordx4 {vr(OUT+4,4)}, v{vr_}, {sr(SB,4)}, s{st0} offen offset:32')
    k.label('done')
    k.label('end')
    k.e('s_endpgm')

    k.label('slow')
    k.e(f's_lshl_b32 s{st0}, s{shead}, 16')
    k.e(f's_add_u32 s{st0}, s{st0}, {KF}')
    k.e(f'v_mov_b32 v{tmp}, 0xff800000')
    k.e(f's_mov_b32 s{sit}, 0')
    k.label('slow1')
    k.e(f's_add_u32 s{st1}, s{st0}, s{sit}')
    k.e(f'buffer_load_dwordx4 {vr(KFr,4)}, v{vl16}, {sr(SA,4)}, s{st1} offen')
    k.e('s_waitcnt vmcnt(0)')
    k.e(f'v_mfma_f32_32x32x16_bf16 {vr(S[0],16)}, {vr(KFr,4)}, {vr(Q[0],4)}, 0')
    k.e('s_nop 15')
    rowmax16(S[0], tmp+2)
    k.e(f'v_max_f32 v{tmp}, v{tmp}, v{tmp+2}')
    k.e(f's_add_u32 s{sit}, s{sit}, 1024')
    k.e(f's_cmp_lt_u32 s{sit}, 65536')
    k.e(f's_cbranch_scc1 {k.lab("slow1")}')
    set_negm(tmp, NM[0])
    for r_ in range(16):
        k.e(f'v_mov_b32 v{O[0]+r_}, 0')
    k.e(f'v_and_b32 v{vv}, 15, v{l}')
    k.e(f'v_lshlrev_b32 v{vv}, 4, v{vv}')
    k.e(f'v_lshl_add_u32 v{vv}, v{h}, 8, v{vv}')
    k.e(f'v_bfe_u32 v{tmp+1}, v{l}, 4, 1')
    k.e(f'v_lshl_add_u32 v{vv}, v{tmp+1}, 25, v{vv}')
    k.e(f'v_and_b32 v{tmp}, 27, v{l}')
    k.e(f'v_cmp_eq_u32 vcc, 16, v{tmp}')
    k.e(f'v_mov_b32 v{tmp+1}, 0x3f803f80')
    k.e(f's_mov_b32 s{sit}, 0')
    k.e(f'v_cndmask_b32 v{vk}, 0, v{tmp+1}, vcc')
    k.label('slow2')
    k.e(f's_add_u32 s{st1}, s{st0}, s{sit}')
    k.e(f's_add_u32 s{st2}, s{st1}, {VF - KF}')
    k.e(f'buffer_load_dwordx4 {vr(KFr,4)}, v{vl16}, {sr(SA,4)}, s{st1} offen')
    k.e(f'buffer_load_dwordx4 {vr(V0,4)}, v{vv}, {sr(SA,4)}, s{st2} offen')
    k.e(f'buffer_load_dwordx4 {vr(V1,4)}, v{vv}, {sr(SA,4)}, s{st2} offen offset:512')
    k.e('s_waitcnt vmcnt(0)')
    k.e(f'v_mfma_f32_32x32x16_bf16 {vr(S[0],16)}, {vr(KFr,4)}, {vr(Q[0],4)}, {vr(NM[0],16)}')
    for d in range(4):
        k.e(f'v_or_b32 v{V0+d}, v{V0+d}, v{vk}')
        k.e(f'v_or_b32 v{V1+d}, v{V1+d}, v{vk}')
    k.e('s_nop 7')
    E(0, 0, 16)
    k.e('s_nop 0')
    C(0, 0, 8)
    k.e('s_nop 1')
    MP(0, 0)
    MP(0, 1)
    k.e(f's_add_u32 s{sit}, s{sit}, 1024')
    k.e(f's_cmp_lt_u32 s{sit}, 65536')
    k.e(f's_cbranch_scc1 {k.lab("slow2")}')
    k.e('s_nop 15')
    k.e(f's_branch {k.lab("fin")}')
    assert k.vmax <= ARCH, k.vmax
    assert k.an <= 256 - ARCH, k.an
    k.vmax = ARCH
    return k, (256, 512, 163840)
```

```python
class Kern:
    def __init__(self, name):
        self.name = name
        self.L = []
        self.vn = 1
        self.vmax = 1
        self.sn = 4
        self.smax = 4
        self.nlab = 0
        self.an = 0
    def e(self, s):
        for line in s.split('\n'):
            line = line.strip()
            if line:
                self.L.append('    ' + line)
    def c(self, s):
        self.L.append('    ; ' + s)
    def label(self, l):
        self.L.append(f'{self.name}_{l}:')
    def lab(self, l):
        return f'{self.name}_{l}'
    def v(self, n=1, align=None):
        if align is None:
            align = 2 if n >= 2 else 1
        b = (self.vn + align - 1) // align * align
        self.vn = b + n
        self.vmax = max(self.vmax, self.vn)
        return b
    def a(self, n):
        b = (self.an + 3) // 4 * 4
        self.an = b + n
        assert self.an <= 256
        return b
    def s(self, n=1, align=None):
        if align is None:
            align = 4 if n >= 4 else (2 if n >= 2 else 1)
        b = (self.sn + align - 1) // align * align
        self.sn = b + n
        self.smax = max(self.smax, self.sn)
        assert self.sn <= 100
        return b
    def stamp(self, tag=''):
        self.L.append(f'    ;@STAMP {tag}')
    def instrument(self, idx, todebug=None):
        NS = 18
        L = self.L
        pre = ['    s_memrealtime s[88:89]', '    s_memtime s[90:91]', '    s_mov_b32 s87, s2'] + [f'    s_mov_b32 s{50+2*q}, 0' for q in range(NS)]
        out = []
        n = 0
        self.tags = []
        for x in L:
            if x.strip().startswith(';@STAMP'):
                import os
                tag = x.strip()[8:]
                drop = os.environ.get('DROP', '').split(',')
                if os.environ.get('RT'):
                    if tag not in ('loop', 'loopend', 'flagA', 'p3:end', 'p4:end', 'p5:end') and not tag.startswith('@'): continue
                elif tag.startswith('@'): continue
                elif tag.startswith('+') != bool(os.environ.get('FINE')) and (tag.startswith('+') or tag in ('karg', 'loop', 'j15', 'L:b3end', 'poll3', 'p3:c0', 'flag3', 'L:pollA', 'L:w2', 'flagA', 'first', 'loopend')):
                    continue
                assert n < NS
                out.append(f'    s_mem{"real" if tag.startswith("@") else ""}time s[{50+2*n}:{51+2*n}]')
                self.tags.append(x.strip()[8:])
                n += 1
            else:
                out.append(x)
        L = out
        first_end = [i for i, x in enumerate(L) if x.strip() == f'{self.name}_end:'][0]
        post = ['    s_waitcnt vmcnt(0) lgkmcnt(0)', '    s_memrealtime s[92:93]', '    s_memtime s[94:95]', '    s_load_dwordx2 s[100:101], s[0:1], 64', '    s_waitcnt lgkmcnt(0)',
                '    s_sub_u32 s94, s94, s90',
                f'    s_add_u32 s96, s100, {(32<<20) + idx*262144}', '    s_addc_u32 s97, s101, 0', '    s_mov_b32 s98, 262144', '    s_mov_b32 s99, 0x20000',
                '    v_mov_b32 v4, s88', '    v_mov_b32 v5, s92', '    v_mov_b32 v6, s94', f'    v_mov_b32 v7, {getattr(self, "dbgreg", "0")}']
        for q in range(20):
            if q < n:
                post.append(f'    s_sub_u32 s{50+2*q}, s{50+2*q}, {"s88" if self.tags[q].startswith("@") else "s90"}')
                post.append(f'    v_mov_b32 v{8+q}, s{50+2*q}')
            else:
                post.append(f'    v_mov_b32 v{8+q}, 0')
        post += ['    v_lshrrev_b32 v1, 6, v0', '    v_lshlrev_b32 v1, 7, v1', '    s_lshl_b32 s100, s87, 10', '    v_add_u32 v1, s100, v1',
                '    s_mov_b64 exec, 1']
        for q in range(6):
            post.append(f'    buffer_store_dwordx4 v[{4+4*q}:{7+4*q}], v1, s[96:99], 0 offen offset:{16*q}')
        if todebug is not None:
            wg, wv, base, sel = todebug
            post += ['    v_lshrrev_b32 v1, 6, v0', '    s_nop 0', '    v_readfirstlane_b32 s100, v1', f'    s_cmp_lg_u32 s87, {wg}', f'    s_cbranch_scc1 {self.name}_end',
                     f'    s_cmp_lg_u32 s100, {wv}', f'    s_cbranch_scc1 {self.name}_end',
                     f'    s_sub_u32 s96, s96, {idx*262144}', '    s_subb_u32 s97, s97, 0', f'    v_mov_b32 v1, {wg*1024}',
                     '    buffer_load_dwordx4 v[28:31], v1, s[96:99], 0 offen', '    buffer_load_dword v31, v1, s[96:99], 0 offen offset:16',
                     '    s_load_dwordx2 s[100:101], s[0:1], 56', '    s_waitcnt lgkmcnt(0) vmcnt(0)',
                     '    s_mov_b32 s96, s100', '    s_mov_b32 s97, s101', '    s_mov_b32 s98, 256', '    v_mov_b32 v1, 0']
            for q, r_ in enumerate(sel):
                post.append(f'    buffer_store_dword v{r_}, v1, s[96:99], 0 offen offset:{base + 4*q}')
        self.L = pre + L[:first_end] + post + L[first_end:]
        assert self.smax <= 50, self.smax
        self.vmax = max(self.vmax, 32)
        self.smax = 102
    def text(self):
        return (f'.globl {self.name}\n.p2align 8\n.type {self.name},@function\n{self.name}:\n'
                + '\n'.join(self.L) + '\n')
    def desc(self):
        nv = self.vmax
        assert nv <= 256, nv
        acc = (nv + 3) // 4 * 4
        return f'''.p2align 6
.amdhsa_kernel {self.name}
  .amdhsa_next_free_vgpr {acc + self.an if self.an else nv}
  .amdhsa_next_free_sgpr {max(self.smax, 8)}
  .amdhsa_accum_offset {acc}
  .amdhsa_group_segment_fixed_size 0
  .amdhsa_kernarg_size 72
  .amdhsa_user_sgpr_count 2
  .amdhsa_user_sgpr_kernarg_segment_ptr 1
  .amdhsa_system_sgpr_workgroup_id_x 1
.end_amdhsa_kernel
'''
def vr(b, n):
    return f'v[{b}:{b+n-1}]' if n > 1 else f'v{b}'
def ar(b, n):
    return f'a[{b}:{b+n-1}]' if n > 1 else f'a{b}'
def sr(b, n):
    return f's[{b}:{b+n-1}]' if n > 1 else f's{b}'

def srd(k, d, lo, hi, nbytes, off=None):
    if off is None:
        k.e(f's_mov_b32 s{d}, s{lo}')
        k.e(f's_mov_b32 s{d+1}, s{hi}')
    else:
        k.e(f's_add_u32 s{d}, s{lo}, {off}')
        k.e(f's_addc_u32 s{d+1}, s{hi}, 0')
    k.e(f's_mov_b32 s{d+2}, {nbytes}')
    k.e(f's_mov_b32 s{d+3}, 0x20000')
```

```python
from fw import *
MB = 1 << 20
QF, KF, VF, OF, HF, FF = 0, 2*MB, 4*MB, 6*MB, 8*MB, 10*MB
ST = 17*MB
DG = 17*MB + 256*1024
FL = 17*MB + 512*1024
FLB = 65536
WS_USED = 18*MB
QSCALE = 0.25 * 1.4426950408889634

import struct
def f32(x):
    return '0x%08x' % struct.unpack('<I', struct.pack('<f', x))[0]

def lane_regs(k):
    R = {}
    for n in ('l', 't', 'h'):
        R[n] = k.v()
    k.e(f'v_and_b32 v{R["l"]}, 63, v0')
    k.e(f'v_and_b32 v{R["t"]}, 31, v0')
    k.e(f'v_bfe_u32 v{R["h"]}, v0, 5, 1')
    return R

def round_bf16(k, v):
    k.e(f'v_cvt_pk_bf16_f32 v{v}, v{v}, v{v}')
    k.e(f'v_and_b32 v{v}, 0xffff0000, v{v}')

def half_sum(k, regs, tmp):
    for i, r_ in enumerate(regs):
        k.e(f'v_mov_b32 v{tmp+i}, v{r_}')
    k.e('s_nop 1')
    for i, r_ in enumerate(regs):
        k.e(f'v_permlane32_swap_b32 v{r_}, v{tmp+i}')
    k.e('s_nop 1')
    for i, r_ in enumerate(regs):
        k.e(f'v_add_f32 v{r_}, v{r_}, v{tmp+i}')

def ln_finish(k, sx, sxx, mean, rstd):
    k.e(f'v_mul_f32 v{mean}, {f32(1/512)}, v{sx}')
    k.e(f'v_mul_f32 v{sxx}, {f32(1/512)}, v{sxx}')
    k.e(f'v_fma_f32 v{rstd}, -v{mean}, v{mean}, v{sxx}')
    k.e(f'v_max_f32 v{rstd}, 0, v{rstd}')
    round_bf16(k, mean)
    round_bf16(k, rstd)
    k.e(f'v_add_f32 v{rstd}, {f32(1e-5)}, v{rstd}')
    round_bf16(k, rstd)
    k.e(f'v_sqrt_f32 v{rstd}, v{rstd}')
    k.e('s_nop 0')
    round_bf16(k, rstd)
    k.e(f'v_rcp_f32 v{rstd}, v{rstd}')
    k.e('s_nop 0')

def ln_stats(k, sx, sxx, tmp, mean, rstd):
    half_sum(k, [sx, sxx], tmp)
    ln_finish(k, sx, sxx, mean, rstd)

def selector(k, l, tmp):
    SEL = k.v(4)
    k.e(f'v_lshrrev_b32 v{tmp}, 2, v{l}')
    k.e(f'v_lshrrev_b32 v{tmp+1}, 4, v{l}')
    k.e(f'v_xor_b32 v{tmp}, v{tmp}, v{tmp+1}')
    k.e(f'v_and_b32 v{tmp}, 1, v{tmp}')
    k.e(f'v_add_u32 v{tmp}, -1, v{tmp}')
    k.e(f'v_and_b32 v{SEL}, 0x3f803f80, v{tmp}')
    for d in range(1, 4):
        k.e(f'v_mov_b32 v{SEL+d}, v{SEL}')
    return SEL

def gen_k1(name='qkv_kernel', SCHED=((0, 1), (2, 3), (4,), (5,), (6,), (7,)), ROT=6, TOUCH=0, ZAT=4, ZPOL=None, CODE=None, CAT=1, OPOL=' sc1'):
    k = Kern(name)
    SLOT = 32768
    NSLOT = 5
    NCH = 8
    sX, sWS = k.s(4), k.s(2)
    SX, SW, SO = k.s(4), k.s(4), k.s(4)
    sw, srb, sj, sxo, swo, smx, st0, st1, st2, srot, stq, scg, sdx, sdw, srole = [k.s() for _ in range(15)]
    k.e(f's_cmp_ge_u32 s2, 256')
    k.e(f's_cbranch_scc1 {k.lab("end")}')
    k.e(f's_load_dwordx4 {sr(sX,4)}, s[0:1], 0')
    k.e(f's_load_dwordx2 {sr(sWS,2)}, s[0:1], 64')
    R = lane_regs(k)
    l, t, h = R['l'], R['t'], R['h']
    tmp = k.v(8)
    k.e(f'v_lshrrev_b32 v{tmp}, 6, v0')
    k.e(f's_and_b32 s{st0}, s2, 7')
    k.e(f'v_readfirstlane_b32 s{sw}, v{tmp}')
    k.e(f's_lshr_b32 s{st1}, s2, 3')
    k.e(f's_lshr_b32 s{srole}, s{sw}, 2')
    k.e(f's_and_b32 s{sw}, s{sw}, 3')
    k.e(f's_lshr_b32 s{srb}, s{st0}, 1')
    k.e(f's_lshl_b32 s{srb}, s{srb}, 3')
    k.e(f's_lshr_b32 s{st2}, s{st1}, 2')
    k.e(f's_add_u32 s{srb}, s{srb}, s{st2}')
    k.e(f's_and_b32 s{sj}, s{st0}, 1')
    k.e(f's_lshl_b32 s{sj}, s{sj}, 2')
    k.e(f's_and_b32 s{st1}, s{st1}, 3')
    k.e(f's_add_u32 s{sj}, s{sj}, s{st1}')
    k.e(f's_lshl_b32 s{srot}, s{st1}, 1')
    k.e(f's_add_u32 s{srot}, s{srot}, s{st2}')
    if ROT == 0:
        k.e(f's_mov_b32 s{srot}, 0')
    elif ROT == 2:
        k.e(f's_and_b32 s{srot}, s{st2}, 1')
    elif ROT == 4:
        k.e(f's_and_b32 s{srot}, s{srot}, 1')
        k.e(f's_lshl_b32 s{srot}, s{srot}, 2')
    elif ROT == 5:
        k.e(f's_add_u32 s{srot}, s{st1}, s{st2}')
        k.e(f's_and_b32 s{srot}, s{srot}, 3')
        k.e(f's_lshl_b32 s{srot}, s{srot}, 1')
    elif ROT == 6:
        k.e(f's_add_u32 s{srot}, s{st1}, s{st2}')
        k.e(f's_and_b32 s{srot}, s{srot}, 1')
        k.e(f's_lshl_b32 s{srot}, s{srot}, 2')
        k.e(f's_lshr_b32 s{sdx}, s{st0}, 1')
        k.e(f's_add_u32 s{srot}, s{srot}, s{sdx}')
    elif ROT == 3:
        k.e(f's_lshr_b32 s{srot}, s{st0}, 1')
        k.e(f's_lshl_b32 s{srot}, s{srot}, 1')
    k.e(f's_lshr_b32 s{stq}, s{sw}, 1')
    k.e(f's_and_b32 s{scg}, s{sw}, 1')
    vox = [k.v(), k.v()]
    vow = [k.v(), k.v()]
    k.e(f'v_and_b32 v{tmp}, 7, v{l}')
    k.e(f'v_lshrrev_b32 v{tmp+1}, 4, v{l}')
    k.e(f'v_xor_b32 v{tmp+2}, v{tmp}, v{tmp+1}')
    k.e(f'v_lshlrev_b32 v{tmp+2}, 4, v{tmp+2}')
    k.e(f'v_lshrrev_b32 v{tmp+3}, 3, v{l}')
    k.e(f'v_lshl_add_u32 v{vox[0]}, v{tmp+3}, 10, v{tmp+2}')
    k.e(f'v_xor_b32 v{vox[1]}, 64, v{vox[0]}')
    k.e(f'v_add_u32 v{vox[1]}, {8192-1024}, v{vox[1]}')
    k.e(f'v_and_b32 v{tmp+1}, 1, v{tmp+1}')
    k.e(f'v_lshlrev_b32 v{tmp+1}, 2, v{tmp+1}')
    k.e(f'v_xor_b32 v{tmp}, v{tmp}, v{tmp+1}')
    k.e(f'v_lshlrev_b32 v{tmp}, 4, v{tmp}')
    k.e(f'v_mul_u32_u24 v{tmp+3}, 3072, v{tmp+3}')
    k.e(f'v_add_u32 v{vow[0]}, v{tmp}, v{tmp+3}')
    k.e(f'v_add_u32 v{vow[1]}, {8*3072-1024}, v{vow[0]}')
    k.e(f's_lshl_b32 s{sxo}, s{sw}, 14')
    k.e(f's_mul_i32 s{swo}, s{sw}, {16*3072}')
    k.e(f's_lshl_b32 s{st0}, s{sj}, 7')
    k.e(f's_add_u32 s{swo}, s{swo}, s{st0}')
    k.e(f's_lshl_b32 s{smx}, s{sw}, 11')
    k.e(f's_lshl_b32 s{st0}, s{srb}, 16')
    k.e(f's_cmp_eq_u32 s{srole}, 0')
    k.e(f's_cbranch_scc1 {k.lab("compute")}')
    k.e('s_waitcnt lgkmcnt(0)')
    srd(k, SX, sX, sX+1, 65536, f's{st0}')
    srd(k, SW, sX+2, sX+3, 512*3072)
    nvm = [0]; done_at = {}
    def piece(c, j):
        sb = (c % NSLOT) * SLOT
        if j == 0:
            k.e(f's_add_u32 s{st0}, s{srot}, {c}')
            k.e(f's_and_b32 s{st0}, s{st0}, 7')
            k.e(f's_lshl_b32 s{sdx}, s{st0}, 7')
            k.e(f's_add_u32 m0, s{smx}, {sb}')
            k.e(f's_add_u32 s{sdx}, s{sdx}, s{sxo}')
            k.e(f'buffer_load_dwordx4 v{vox[0]}, {sr(SX,4)}, s{sdx} offen lds')
            k.e(f'buffer_load_dwordx4 v{vox[1]}, {sr(SX,4)}, s{sdx} offen offset:1024 lds')
            k.e(f's_mul_i32 s{sdw}, s{st0}, {64*3072}')
            k.e(f's_add_u32 s{sdw}, s{sdw}, s{swo}')
        else:
            k.e(f's_add_u32 m0, s{smx}, {sb + j*8192}')
            if j > 1:
                k.e(f's_add_u32 s{sdw}, s{sdw}, 1024')
            else:
                k.e('s_nop 0')
            k.e(f'buffer_load_dwordx4 v{vow[0]}, {sr(SW,4)}, s{sdw} offen lds')
            k.e(f'buffer_load_dwordx4 v{vow[1]}, {sr(SW,4)}, s{sdw} offen offset:1024 lds')
        nvm[0] += 2
        if j == 3: done_at[c] = nvm[0]
    for c in SCHED[0]:
        for j in range(4): piece(c, j)
    def zero_fill():
        srd(k, SO, sWS, sWS+1, 12*MB, OF)
        for d in range(4):
            k.e(f'v_mov_b32 v{tmp+4+d}, 0')
        k.e(f's_lshl_b32 s{st0}, s2, 2')
        k.e(f's_add_u32 s{st0}, s{st0}, s{sw}')
        k.e(f's_mul_i32 s{st0}, s{st0}, 12288')
        k.e(f'v_lshlrev_b32 v{tmp+1}, 4, v{l}')
        if ZPOL is None:
            k.e(f's_lshl_b32 s{st0}, s2, 2')
            k.e(f's_add_u32 s{st0}, s{st0}, s{sw}')
            k.e(f's_lshl_b32 s{st0}, s{st0}, 10')
            srd(k, SO, sWS, sWS+1, FLB, FL)
            k.e(f'buffer_store_dwordx4 {vr(tmp+4,4)}, v{tmp+1}, {sr(SO,4)}, s{st0} offen')
            nvm[0] += 1
            return
        for q in range(3):
            for i in range(4):
                k.e(f'buffer_store_dwordx4 {vr(tmp+4,4)}, v{tmp+1}, {sr(SO,4)}, s{st0} offen offset:{i*1024}{ZPOL}')
            k.e(f's_add_u32 s{st0}, s{st0}, 4096')
        nvm[0] += 12
    if ZAT < 0: zero_fill()
    for c in range(NCH):
        k.e(f's_waitcnt vmcnt({nvm[0] - done_at[c]})')
        k.e('s_barrier')
        for q in (SCHED[c+1] if c + 1 < len(SCHED) else ()):
            assert q - NSLOT <= c - 1
            for j in range(4): piece(q, j)
        if c == ZAT: zero_fill()
        if c == CAT and CODE:
            k.e(f's_getpc_b64 {sr(SO,2)}')
            k.label('pc')
            k.e(f's_add_u32 s{SO}, s{SO}, {k.lab("epi")}-{k.lab("pc")}')
            k.e(f's_addc_u32 s{SO+1}, s{SO+1}, 0')
            k.e(f's_lshr_b32 s{st0}, s2, 3')
            k.e(f's_and_b32 s{st0}, s{st0}, 1')
            k.e(f's_lshl_b32 s{st0}, s{st0}, 2')
            k.e(f's_add_u32 s{st0}, s{st0}, s{sw}')
            k.e(f's_lshl_b32 s{st0}, s{st0}, 13')
            k.e(f's_min_u32 s{st0}, s{st0}, {CODE}-{k.lab("epi")}-8192')
            k.e(f'v_lshlrev_b32 v{tmp}, 7, v{l}')
            k.e(f'v_add_u32 v{tmp}, s{st0}, v{tmp}')
            k.e(f'global_load_dword v{tmp+2}, v{tmp}, {sr(SO,2)}')
            nvm[0] += 1
    k.e('s_endpgm')
    k.label('compute')
    if TOUCH:
        sidx, stx, stw = k.s(), k.s(), k.s()
        vtx, vtw, vtd = k.v(), k.v(), k.v()
        k.e(f's_lshr_b32 s{sidx}, s2, 3')
        k.e(f'v_lshlrev_b32 v{vtx}, 10, v{l}')
        k.e(f'v_lshrrev_b32 v{tmp+1}, 4, v{l}')
        k.e(f'v_lshl_add_u32 v{vtx}, v{tmp+1}, 20, v{vtx}')
        k.e(f's_and_b32 s{stx}, s{sidx}, 3')
        k.e(f's_lshl_b32 s{stx}, s{stx}, 14')
        k.e(f's_lshl_b32 s{st2}, s{sw}, 7')
        k.e(f's_add_u32 s{stx}, s{stx}, s{st2}')
        k.e(f'v_and_b32 v{vtw}, 7, v{l}')
        k.e(f'v_mul_u32_u24 v{vtw}, 3072, v{vtw}')
        k.e(f'v_lshrrev_b32 v{tmp+2}, 3, v{l}')
        k.e(f'v_lshl_add_u32 v{vtw}, v{tmp+2}, 10, v{vtw}')
        k.e(f'v_cmp_lt_u32 vcc, 2, v{tmp+2}')
        k.e(f'v_mov_b32 v{tmp+3}, 0x2000000')
        k.e(f's_lshr_b32 s{stw}, s{sidx}, 2')
        k.e(f'v_cndmask_b32 v{vtw}, v{vtw}, v{tmp+3}, vcc')
        k.e(f's_mul_i32 s{stw}, s{stw}, {8*3072}')
        k.e(f's_mul_i32 s{sdw}, s{sw}, {64*3072}')
        k.e(f's_add_u32 s{stw}, s{stw}, s{sdw}')
        k.e(f's_lshl_b32 s{sdw}, s{sj}, 7')
        k.e(f's_add_u32 s{stw}, s{stw}, s{sdw}')
        k.e('s_waitcnt lgkmcnt(0)')
        srd(k, SX, sX, sX+1, 65536, f's{st0}')
        srd(k, SW, sX+2, sX+3, 512*3072)
        def touch():
            k.e(f'buffer_load_dword v{vtd}, v{vtx}, {sr(SX,4)}, s{stx} offen')
            k.e(f'buffer_load_dword v{vtd}, v{vtw}, {sr(SW,4)}, s{stw} offen')
        if TOUCH == 1:
            touch()
        else:
            k.e(f's_cmp_ge_u32 s{sw}, 2')
            k.e(f's_cbranch_scc1 {k.lab("t1")}')
            touch()
            k.label('t1')
    POOL = k.v(64, 4)
    ax = [[POOL + 4*s + i for i in range(4)] for s in range(3)]
    aw = [[POOL + 12 + 4*s + i for i in range(4)] for s in range(3)]
    k.e(f'v_bfe_u32 v{tmp}, v{t}, 1, 3')
    k.e(f'v_xor_b32 v{tmp}, v{tmp}, v{h}')
    k.e(f'v_lshlrev_b32 v{tmp+1}, 7, v{t}')
    k.e(f's_lshl_b32 s{st0}, s{stq}, 12')
    k.e(f'v_add_u32 v{tmp+1}, s{st0}, v{tmp+1}')
    k.e(f'v_bfe_u32 v{tmp+3}, v{l}, 2, 2')
    k.e(f'v_lshl_add_u32 v{tmp+2}, v{h}, 3, v{tmp+3}')
    k.e(f'v_lshlrev_b32 v{tmp+2}, 7, v{tmp+2}')
    k.e(f'v_lshrrev_b32 v{tmp+3}, 1, v{tmp+3}')
    k.e(f'v_xor_b32 v{tmp+3}, s{scg}, v{tmp+3}')
    k.e(f'v_lshl_add_u32 v{tmp+2}, v{tmp+3}, 6, v{tmp+2}')
    k.e(f'v_bfe_u32 v{tmp+3}, v{l}, 4, 1')
    k.e(f'v_lshl_add_u32 v{tmp+2}, v{tmp+3}, 5, v{tmp+2}')
    k.e(f'v_and_b32 v{tmp+3}, 3, v{l}')
    k.e(f'v_lshl_add_u32 v{tmp+2}, v{tmp+3}, 3, v{tmp+2}')
    k.e(f'v_add_u32 v{tmp+2}, 8192, v{tmp+2}')
    for i in range(4):
        k.e(f's_xor_b32 s{st0}, s{sw}, {i}')
        k.e(f's_lshl_b32 s{st1}, s{st0}, 1')
        k.e(f'v_xor_b32 v{tmp+4}, s{st1}, v{tmp}')
        k.e(f'v_lshl_add_u32 v{ax[0][i]}, v{tmp+4}, 4, v{tmp+1}')
        k.e(f's_lshl_b32 s{st1}, s{st0}, 11')
        k.e(f'v_add_u32 v{aw[0][i]}, s{st1}, v{tmp+2}')
        for s in (1, 2):
            k.e(f'v_add_u32 v{ax[s][i]}, {2*SLOT*s}, v{ax[0][i]}')
            k.e(f'v_add_u32 v{aw[s][i]}, {2*SLOT*s}, v{aw[0][i]}')
    SEL = selector(k, l, tmp)
    XF = [POOL + 24, POOL + 28]
    WF = [[POOL + 32 + 12*s + 4*b for b in range(3)] for s in range(2)]
    ACC = [k.v(16) for b in range(3)]
    SXA = k.v(4)
    CSA = [k.v(4) for b in range(3)]
    sxx = [k.v(), k.v()]
    UP = POOL + 56
    for r_ in sxx:
        k.e(f'v_mov_b32 v{r_}, 0')
    def rd(n, part):
        c, i = n // 4, n % 4
        slot = c % NSLOT
        s, rel = slot // 2, (slot % 2) * SLOT
        p = n & 1
        if part == 0:
            k.e(f'ds_read_b128 {vr(XF[p],4)}, v{ax[s][i]} offset:{rel}')
        for w2 in range(2):
            k.e(f'ds_read_b64_tr_b16 {vr(WF[p][part]+2*w2,2)}, v{aw[s][i]} offset:{rel + part*8192 + w2*512}')
    def sync(c):
        k.e('s_waitcnt lgkmcnt(0)')
        k.e('s_barrier')
    if TOUCH == 2:
        k.e(f's_cmp_lt_u32 s{sw}, 2')
        k.e(f's_cbranch_scc1 {k.lab("t2")}')
        touch()
        k.label('t2')
    sync(0)
    if TOUCH:
        k.e(f's_add_u32 s{stx}, s{stx}, 512')
        k.e(f's_add_u32 s{stw}, s{stw}, {4*64*3072}')
        touch()
    srd(k, SO, sWS, sWS+1, FL)
    k.stamp('first')
    for part in range(3): rd(0, part)
    NK = 4 * NCH
    for n in range(NK):
        p = n & 1
        c, i = n // 4, n % 4
        last = n + 1 == NK
        k.c(f'kstep {n}')
        if n in (8, 16, 24): k.stamp(f'k{n}')
        C = (lambda b: '0') if n == 0 else (lambda b: vr(ACC[b], 16))
        xs = i in (0, 2)
        k.e('s_waitcnt lgkmcnt(4)')
        k.e(f'v_mfma_f32_32x32x16_bf16 {vr(ACC[0],16)}, {vr(WF[p][0],4)}, {vr(XF[p],4)}, {C(0)}')
        if i == 3 and not last:
            sync(c + 1)
        if not last: rd(n + 1, 0)
        if xs:
            for d in range(2):
                k.e(f'v_lshlrev_b32 v{UP+2*d}, 16, v{XF[p]+d}')
                k.e(f'v_and_b32 v{UP+2*d+1}, 0xffff0000, v{XF[p]+d}')
        if i != 3 or last:
            k.e(f's_waitcnt lgkmcnt({2 if last else 5})')
        k.e(f'v_mfma_f32_32x32x16_bf16 {vr(ACC[1],16)}, {vr(WF[p][1],4)}, {vr(XF[p],4)}, {C(1)}')
        if not last: rd(n + 1, 1)
        if xs:
            for d in range(2, 4):
                k.e(f'v_lshlrev_b32 v{UP+2*d}, 16, v{XF[p]+d}')
                k.e(f'v_and_b32 v{UP+2*d+1}, 0xffff0000, v{XF[p]+d}')
        if i != 3 or last:
            k.e(f's_waitcnt lgkmcnt({0 if last else 5})')
        k.e(f'v_mfma_f32_32x32x16_bf16 {vr(ACC[2],16)}, {vr(XF[p],4)}, {vr(WF[p][2],4)}, {C(2)}')
        if not last: rd(n + 1, 2)
        if xs:
            for d in range(4):
                k.e(f'v_fmac_f32 v{sxx[d&1]}, v{UP+d}, v{UP+d}')
            Cx = '0' if n == 0 else vr(SXA, 4)
            k.e(f'v_mfma_f32_16x16x32_bf16 {vr(SXA,4)}, {vr(SEL,4)}, {vr(XF[p],4)}, {Cx}')
            for d in range(4, 8):
                k.e(f'v_fmac_f32 v{sxx[d&1]}, v{UP+d}, v{UP+d}')
        if i in (0, 1):
            for b in range(3):
                Cx = '0' if n == 0 else vr(CSA[b], 4)
                k.e(f'v_mfma_f32_16x16x32_bf16 {vr(CSA[b],4)}, {vr(SEL,4)}, {vr(WF[p][b],4)}, {Cx}')
    k.stamp('loopend')
    k.label('epi')
    a0, a1, a2, a3 = k.v(), k.v(), k.v(), k.v()
    STT = k.v(2); PS = k.v(2); pcv = k.v()
    k.e(f'v_add_f32 v{STT+1}, v{sxx[0]}, v{sxx[1]}')
    k.e(f's_lshl_b32 s{st0}, s{sw}, 10')
    k.e(f'v_lshlrev_b32 v{a0}, 2, v{t}')
    k.e(f'v_add_u32 v{a1}, s{st0}, v{a0}')
    for b in range(3):
        k.e(f'ds_write_b32 v{a1}, v{CSA[b]} offset:{b*128}')
    half_sum(k, [STT+1], tmp)
    k.e(f'v_mov_b32 v{STT}, v{SXA}')
    k.e(f'v_add_u32 v{a2}, v{a1}, v{a0}')
    k.e(f'ds_write_b64 v{a2}, {vr(STT,2)} offset:384')
    k.e(f'v_xor_b32 v{a2}, 1024, v{a2}')
    k.e(f'v_xor_b32 v{a0}, 2048, v{a1}')
    k.e(f'v_lshlrev_b32 v{a3}, 4, v{h}')
    k.e(f'v_add_u32 v{a3}, s{st0}, v{a3}')
    k.e(f'v_xor_b32 v{tmp}, 2048, v{a3}')
    k.e('s_waitcnt lgkmcnt(0)')
    k.e('s_barrier')
    MR = k.v(16); RR = k.v(16); CS = POOL; CS2 = POOL + 32
    k.e(f'ds_read_b64 {vr(PS,2)}, v{a2} offset:384')
    k.e(f'ds_read_b32 v{pcv}, v{a0} offset:256')
    for b in range(2):
        for g in range(4):
            k.e(f'ds_read_b128 {vr(CS+16*b+4*g,4)}, v{a3} offset:{b*128+g*32}')
    for g in range(4):
        k.e(f'ds_read_b128 {vr(CS2+16+4*g,4)}, v{tmp} offset:{128+g*32}')
    k.e('s_waitcnt lgkmcnt(12)')
    mean, rstd = k.v(2), k.v(2)
    k.e(f'v_add_f32 v{STT}, v{STT}, v{PS}')
    k.e(f'v_add_f32 v{STT+1}, v{STT+1}, v{PS+1}')
    k.e(f'v_add_f32 v{pcv}, v{pcv}, v{CSA[2]}')
    for g in range(4):
        k.e(f'ds_read_b128 {vr(CS2+4*g,4)}, v{tmp} offset:{g*32}')
    ln_finish(k, STT, STT+1, mean, rstd)
    k.e(f'v_sub_f32 v{mean}, 0, v{mean}')
    k.e(f'ds_write_b32 v{a1}, v{mean} offset:640')
    k.e(f'ds_write_b32 v{a1}, v{rstd} offset:768')
    rq = k.v(2)
    k.e(f'v_mul_f32 v{rq}, {f32(QSCALE)}, v{rstd}')
    vo, vov = k.v(), k.v()
    k.e(f'v_lshlrev_b32 v{vo}, 4, v{l}')
    k.e(f'v_bfe_u32 v{tmp}, v{l}, 4, 1')
    k.e(f'v_lshlrev_b32 v{vov}, 16, v{tmp}')
    k.e(f'v_lshl_add_u32 v{vov}, v{h}, 8, v{vov}')
    k.e(f'v_and_b32 v{tmp}, 15, v{l}')
    k.e(f'v_lshl_add_u32 v{vov}, v{tmp}, 4, v{vov}')
    k.e(f's_lshl_b32 s{st0}, s{sj}, 1')
    k.e(f's_add_u32 s{st0}, s{st0}, s{scg}')
    k.e(f's_lshl_b32 s{st0}, s{st0}, 17')
    k.e(f's_lshl_b32 s{st1}, s{srb}, 1')
    k.e(f's_add_u32 s{st1}, s{st1}, s{stq}')
    k.e(f's_lshl_b32 s{st1}, s{st1}, 10')
    k.e(f's_add_u32 s{st0}, s{st0}, s{st1}')
    k.e('s_waitcnt lgkmcnt(0)')
    for g in range(4):
        k.e(f'ds_read_b128 {vr(MR+4*g,4)}, v{a3} offset:{640+g*32}')
    for g in range(4):
        k.e(f'ds_read_b128 {vr(RR+4*g,4)}, v{a3} offset:{768+g*32}')
    OUT = [k.v(8, 4) for b in range(3)]
    for b in (1, 0):
        sc = rq if b == 0 else rstd
        for r_ in range(0, 16, 2):
            k.e(f'v_pk_add_f32 {vr(CS+16*b+r_,2)}, {vr(CS+16*b+r_,2)}, {vr(CS2+16*b+r_,2)}')
        for r_ in range(0, 16, 2):
            k.e(f'v_pk_fma_f32 {vr(ACC[b]+r_,2)}, {vr(CS+16*b+r_,2)}, {vr(mean,2)}, {vr(ACC[b]+r_,2)} op_sel_hi:[1,0,1]')
        for r_ in range(0, 16, 2):
            k.e(f'v_pk_mul_f32 {vr(ACC[b]+r_,2)}, {vr(ACC[b]+r_,2)}, {vr(sc,2)} op_sel_hi:[1,0]')
        for q in range(8):
            k.e(f'v_cvt_pk_bf16_f32 v{OUT[b]+q}, v{ACC[b]+2*q}, v{ACC[b]+2*q+1}')
        base = QF if b == 0 else KF
        k.e(f's_add_u32 s{st1}, s{st0}, {base}')
        k.e(f's_add_u32 s{st2}, s{st0}, {base+65536}')
        k.e(f'buffer_store_dwordx4 {vr(OUT[b],4)}, v{vo}, {sr(SO,4)}, s{st1} offen{OPOL}')
        k.e(f'buffer_store_dwordx4 {vr(OUT[b]+4,4)}, v{vo}, {sr(SO,4)}, s{st2} offen{OPOL}')
    D2 = CS
    for hd in range(2):
        k.e(f'v_pk_mul_f32 {vr(D2+2*hd,2)}, {vr(ACC[0]+8*hd,2)}, {vr(ACC[1]+8*hd,2)}')
        for r_ in range(2, 8, 2):
            k.e(f'v_pk_fma_f32 {vr(D2+2*hd,2)}, {vr(ACC[0]+8*hd+r_,2)}, {vr(ACC[1]+8*hd+r_,2)}, {vr(D2+2*hd,2)}')
    k.e(f'v_add_f32 v{D2}, v{D2}, v{D2+1}')
    k.e(f'v_add_f32 v{D2+1}, v{D2+2}, v{D2+3}')
    k.e(f's_lshr_b32 s{st1}, s{st0}, 3')
    k.e(f'v_lshlrev_b32 v{D2+2}, 2, v{t}')
    k.e(f'v_permlane32_swap_b32 v{D2}, v{D2+1}')
    k.e(f'v_lshl_add_u32 v{D2+2}, v{h}, 13, v{D2+2}')
    k.e(f's_add_u32 s{st1}, s{st1}, {DG}')
    k.e(f'v_add_f32 v{D2}, v{D2}, v{D2+1}')
    k.e(f'v_sub_f32 v{D2}, 0, v{D2}')
    k.e(f'buffer_store_dword v{D2}, v{D2+2}, {sr(SO,4)}, s{st1} offen')
    pc2 = k.v(2)
    k.e(f'v_mov_b32 v{pc2}, v{pcv}')
    k.e('s_waitcnt lgkmcnt(0)')
    for r_ in range(0, 16, 2):
        k.e(f'v_pk_fma_f32 {vr(ACC[2]+r_,2)}, {vr(MR+r_,2)}, {vr(pc2,2)}, {vr(ACC[2]+r_,2)} op_sel_hi:[1,0,1]')
    for r_ in range(0, 16, 2):
        k.e(f'v_pk_mul_f32 {vr(ACC[2]+r_,2)}, {vr(ACC[2]+r_,2)}, {vr(RR+r_,2)}')
    for q in range(8):
        k.e(f'v_cvt_pk_bf16_f32 v{OUT[2]+q}, v{ACC[2]+2*q}, v{ACC[2]+2*q+1}')
    k.e(f's_add_u32 s{st1}, s{st0}, {VF}')
    k.e(f'buffer_store_dwordx4 {vr(OUT[2],4)}, v{vov}, {sr(SO,4)}, s{st1} offen{OPOL}')
    k.e(f'buffer_store_dwordx4 {vr(OUT[2]+4,4)}, v{vov}, {sr(SO,4)}, s{st1} offen offset:512{OPOL}')
    k.stamp('stored')
    k.label('end')
    k.e('s_endpgm')
    return k, (256, 512, NSLOT*SLOT)
```

```python
from fw import *
from k1 import *

ARCH = 152
XT_O, FA_O, F3_O, F4_O = 0, 1024, 2048, 3072
POLL_LIMIT = 200000

def gen_mega(name='block_kernel', KVPOL='', SIDE0=8, TCH=1, CODE=0, LD=' sc1', PRE=12, W2POS=99, HEADMAP=0, KVFAST=0, SPT=1, HO0=21, W20=18, STEP=1, UPR=2, PRIO=1, XUP=4, HUP=12, KVB=1, SIDE2=8, CSL=1, WB=1, NT1=5, NT2=10, NPRE=26, THIN=3, FLA=52, FLB_=2, CKB=22, STN=12, WBN=46, FPS=3, FFIRST=1, W1E=3, NA=0, NB=0, PP=0, CB5=1, FCK=57, EVA=64):
    k = Kern(name)
    sWS, sX, sWO, sOUT = k.s(2), k.s(2), k.s(2), k.s(2)
    sW12 = k.s(4)
    SA, SB, SC, SFL = k.s(4), k.s(4), k.s(4), k.s(4)
    sPA, sPB = k.s(2), k.s(2)
    sw, sr4, srole, sg, sm, sfast, st0, st1, st2, sit, sa, sb, sc_, sd = [k.s() for _ in range(14)]
    shead, sqb = 2, 3
    k.dbgreg = f's{sfast}'
    nl = [0]
    def L(p='x'):
        nl[0] += 1
        return f'{p}{nl[0]}'
    k.e('s_cmp_ge_u32 s2, 256')
    k.e(f's_cbranch_scc1 {k.lab("end")}')
    k.e(f's_load_dwordx2 {sr(sWS,2)}, s[0:1], 64')
    k.e(f's_load_dwordx2 {sr(sX,2)}, s[0:1], 0')
    k.e(f's_load_dwordx2 {sr(sWO,2)}, s[0:1], 16')
    k.e(f's_load_dwordx2 {sr(sOUT,2)}, s[0:1], 48')
    k.e(f's_load_dwordx4 {sr(sW12,4)}, s[0:1], 32')
    R = lane_regs(k)
    l, t, h = R['l'], R['t'], R['h']
    vl16 = k.v()
    tmp = k.v(4)
    BASE = k.vn
    k.e(f'v_lshrrev_b32 v{tmp}, 6, v0')
    k.e(f's_and_b32 s{sg}, s2, 7')
    k.e(f'v_readfirstlane_b32 s{sw}, v{tmp}')
    k.e(f's_lshr_b32 s{sm}, s2, 3')
    k.e(f's_getreg_b32 s{sfast}, hwreg(HW_REG_XCC_ID, 0, 4)')
    k.e(f's_lshr_b32 s{srole}, s{sw}, 2')
    k.e(f's_and_b32 s{sr4}, s{sw}, 3')
    k.e(f's_add_u32 s{sfast}, s{sfast}, 1')
    if HEADMAP:
        k.e(f's_and_b32 s{sqb}, s{sm}, 7')
        k.e(f's_lshr_b32 s{st0}, s{sm}, 3')
        k.e(f's_lshl_b32 s{shead}, s{sg}, 2')
        k.e(f's_add_u32 s{shead}, s{shead}, s{st0}')
    else:
        k.e(f's_mov_b32 s{sqb}, s{sg}')
        k.e(f's_mov_b32 s{shead}, s{sm}')
    k.e(f'v_lshlrev_b32 v{vl16}, 4, v{l}')

    def stores(lst, through=False):
        if through:
            for s_ in lst: k.e(s_ + ' sc1')
            return
        a, b = L('st'), L('st')
        k.e(f's_cmp_eq_u32 s{sfast}, 0')
        k.e(f's_cbranch_scc1 {k.lab(a)}')
        for s_ in lst: k.e(s_)
        k.e(f's_branch {k.lab(b)}')
        k.label(a)
        for s_ in lst: k.e(s_ + ' sc1')
        k.label(b)
    def flag(soff, nyounger=0, D=None, through=False):
        D = SFL if D is None else D
        k.e(f'v_mov_b32 v{tmp}, 0')
        k.e(f'v_mov_b32 v{tmp+1}, 1')
        k.e(f's_waitcnt vmcnt({nyounger})')
        k.e('s_mov_b64 exec, 1')
        stores([f'buffer_store_dword v{tmp+1}, v{tmp}, {sr(D,4)}, s{soff} offen'], through)
        k.e('s_mov_b64 exec, -1')
    def poll(soff, mask_lo, mask_hi, r2=None):
        a, b = L('pl'), L('pl')
        ld = lambda r_: k.e(f'buffer_load_dword v{r_}, v{tmp}, {sr(SFL,4)}, s{soff} offen sc1')
        k.e(f'v_lshlrev_b32 v{tmp}, 2, v{l}')
        k.e(f's_mov_b32 exec_lo, {mask_lo}')
        k.e(f's_mov_b32 exec_hi, {mask_hi}')
        k.e(f's_mov_b32 s{sit}, 0')
        if r2 is not None and PP:
            ld(tmp+1)
            k.e('s_sleep 3')
            k.label(a)
            for x, y in ((r2, tmp+1), (tmp+1, r2)):
                ld(x)
                k.e('s_waitcnt vmcnt(1)')
                k.e(f'v_cmp_eq_u32 vcc, 0, v{y}')
                k.e(f's_add_u32 s{sit}, s{sit}, 1')
                k.e(f's_cbranch_vccz {k.lab(b)}')
            k.e(f's_cmp_ge_u32 s{sit}, {POLL_LIMIT}')
            k.e(f's_cbranch_scc0 {k.lab(a)}')
        else:
            k.label(a)
            ld(tmp+1)
            k.e(f's_add_u32 s{sit}, s{sit}, 1')
            k.e('s_waitcnt vmcnt(0)')
            k.e(f'v_cmp_eq_u32 vcc, 0, v{tmp+1}')
            k.e(f's_cmp_ge_u32 s{sit}, {POLL_LIMIT}')
            k.e(f's_cbranch_vccz {k.lab(b)}')
            k.e(f's_cbranch_scc0 {k.lab(a)}')
        k.label(b)
        k.e('s_mov_b64 exec, -1')

    KB, VB, ONES = 0, 65536, 131072
    UN = 4
    EXA = ONES + UN*1024
    XRES = 155648
    stb, sla, sga = sa, sb, sc_
    k.e(f's_lshl_b32 s{stb}, s{sqb}, 3')
    k.e(f's_lshl_b32 s{st1}, s{sr4}, 1')
    k.e(f's_add_u32 s{stb}, s{stb}, s{st1}')
    k.e(f's_add_u32 s{stb}, s{stb}, s{srole}')
    Q = [k.v(4), k.v(4)]
    vk, vv, vinc, vxt, dummy = k.v(), k.v(), k.v(), k.v(), k.v()
    S = [k.v(16), k.v(16)]
    NM = [k.v(16), k.v(16)]
    O = [k.v(16), k.v(16)]
    P = [k.v(8), k.v(8)]
    KFr = k.v(4); V0 = k.v(4); V1 = k.v(4)
    ON = S[0]
    k.e(f'v_and_b32 v{tmp}, 11, v0')
    k.e(f'v_cmp_eq_u32 vcc, 0, v{tmp}')
    k.e(f'v_mov_b32 v{tmp+1}, 0x3f803f80')
    k.e(f'v_lshlrev_b32 v{tmp}, 4, v0')
    k.e(f'v_cndmask_b32 v{ON}, 0, v{tmp+1}, vcc')
    k.e(f'v_and_b32 v{tmp}, {UN*1024-1}, v{tmp}')
    for d in range(1, 4):
        k.e(f'v_mov_b32 v{ON+d}, v{ON}')
    k.e(f'v_add_u32 v{tmp}, {ONES}, v{tmp}')
    k.e(f'ds_write_b128 v{tmp}, {vr(ON,4)}')
    CNT = 154112
    k.e(f'v_mov_b32 v{tmp}, {CNT}')
    k.e(f'v_mov_b32 v{tmp+2}, 0')
    k.e(f'v_mov_b32 v{tmp+3}, 0')
    k.e(f'ds_write_b64 v{tmp}, {vr(tmp+2,2)}')
    k.e(f'ds_write_b64 v{tmp}, {vr(tmp+2,2)} offset:8')
    k.e(f's_lshl_b32 s{st0}, s{shead}, 16')
    k.e(f's_and_b32 s{st1}, s{sw}, 1')
    k.e(f's_lshl_b32 s{sla}, s{st1}, 16')
    k.e(f's_lshl_b32 s{sga}, s{st1}, 21')
    k.e(f's_bfe_u32 s{st1}, s{sw}, 0x10001')
    k.e(f's_lshl_b32 s{st1}, s{st1}, 15')
    k.e(f's_lshl_b32 s{st2}, s{srole}, 10')
    k.e(f's_add_u32 s{st1}, s{st1}, s{st2}')
    k.e(f's_add_u32 s{sla}, s{sla}, s{st1}')
    k.e(f's_add_u32 s{sga}, s{sga}, s{st1}')
    k.e(f's_add_u32 s{sga}, s{sga}, s{st0}')
    k.e(f's_add_u32 s{sga}, s{sga}, {KF}')
    k.e(f's_lshl_b32 s{st1}, s{stb}, 10')
    k.e(f's_add_u32 s{st1}, s{st1}, s{st0}')
    k.e(f's_xor_b32 s{st2}, s{st1}, 1024')
    k.e(f's_lshl_b32 s{sit}, s{sg}, 12')
    k.e(f's_add_u32 s{sit}, s{sit}, {FL}')
    k.e('s_waitcnt lgkmcnt(0)')
    k.stamp('karg')
    srd(k, SA, sWS, sWS+1, FL)
    nvm = [0]; done = {}
    def vm(txt, tag=None):
        k.e(txt); nvm[0] += 1
        if tag is not None: done[tag] = nvm[0]
    def kv_round(r):
        k.e(f's_add_u32 m0, s{sla}, {r*2048}')
        k.e(f's_add_u32 s{st0}, s{sga}, {r*2048}')
        vm(f'buffer_load_dwordx4 v{vl16}, {sr(SA,4)}, s{st0} offen{KVPOL} lds', ('kv', r))
    vm(f'buffer_load_dwordx4 {vr(Q[0],4)}, v{vl16}, {sr(SA,4)}, s{st1} offen')
    vm(f'buffer_load_dwordx4 {vr(Q[1],4)}, v{vl16}, {sr(SA,4)}, s{st2} offen')
    k.e(f'v_lshlrev_b32 v{tmp}, 2, v{t}')
    for s_, so in ((0, st1), (1, st2)):
        k.e(f's_lshr_b32 s{so}, s{so}, 3')
        k.e(f's_add_u32 s{so}, s{so}, {DG}')
        vm(f'buffer_load_dword v{NM[s_]}, v{tmp}, {sr(SA,4)}, s{so} offen')
    for r in range(UPR): kv_round(r)
    srd(k, SFL, sWS, sWS+1, 4096, f's{sit}')
    HK = k.a(8); AWO = k.a(32); AW1 = k.a(64)
    swoA, sw1A = sPA, sPA+1
    srd(k, SB, sWO, sWO+1, 512*1024)
    srd(k, SC, sW12, sW12+1, 512*3584)
    k.e(f's_lshl_b32 s{swoA}, s{sr4}, 15')
    k.e(f's_lshl_b32 s{st0}, s{srole}, 18')
    k.e(f's_add_u32 s{swoA}, s{swoA}, s{st0}')
    k.e(f's_and_b32 s{st0}, s{sm}, 7')
    k.e(f's_lshl_b32 s{st0}, s{st0}, 7')
    k.e(f's_add_u32 s{swoA}, s{swoA}, s{st0}')
    k.e(f's_cmp_ge_u32 s{sm}, 14')
    k.e(f's_cselect_b32 s{st1}, 14, 0')
    k.e(f's_sub_u32 s{st1}, s{sm}, s{st1}')
    k.e(f's_lshl_b32 s{sw1A}, s{st1}, 8')
    k.e(f's_mul_i32 s{st1}, s{sr4}, {128*3584}')
    k.e(f's_add_u32 s{sw1A}, s{sw1A}, s{st1}')
    k.e(f's_xor_b32 s{st1}, s{srole}, 1')
    k.e(f's_lshl_b32 s{st1}, s{st1}, 7')
    k.e(f's_add_u32 s{sw1A}, s{sw1A}, s{st1}')
    k.e(f's_mul_i32 s{st0}, s{sm}, 57344')
    k.e(f's_min_u32 s{st1}, s{sw}, 6')
    k.e(f's_lshl_b32 s{st1}, s{st1}, 13')
    k.e(f's_add_u32 s{st0}, s{st0}, s{st1}')
    k.e(f's_add_u32 s{sPB}, s{sW12+2}, s{st0}')
    k.e(f's_addc_u32 s{sPB+1}, s{sW12+3}, 0')
    k.e(f's_lshl_b32 s{st0}, s{srole}, 15')
    k.e(f'v_add_u32 v{vk}, s{st0}, v{vl16}')
    k.e(f'v_and_b32 v{tmp}, 15, v{l}')
    k.e(f'v_lshlrev_b32 v{tmp}, 4, v{tmp}')
    k.e(f'v_lshl_add_u32 v{tmp}, v{h}, 8, v{tmp}')
    k.e(f'v_bfe_u32 v{tmp+1}, v{l}, 4, 1')
    k.e(f'v_xor_b32 v{tmp+2}, 1, v{tmp+1}')
    k.e(f'v_lshlrev_b32 v{vinc}, 12, v{tmp+2}')
    k.e(f'v_mul_u32_u24 v{tmp+2}, s{st0}, v{tmp+2}')
    k.e(f'v_lshl_add_u32 v{vv}, v{tmp+1}, 16, v{tmp}')
    k.e(f'v_add_u32 v{vv}, v{vv}, v{tmp+2}')
    k.e(f'v_add_u32 v{vv}, {VB}, v{vv}')
    for s_ in range(2):
        for r_ in range(16):
            k.e(f'v_mov_b32 v{O[s_]+r_}, 0')
        for d in range(4):
            k.e(f'v_mov_b32 v{P[s_]+4+d}, 0')
    gwo, gw1, gx = tmp+2, tmp+3, tmp+1
    k.e(f'v_bfe_u32 v{tmp}, v{l}, 4, 1')
    k.e(f'v_lshlrev_b32 v{tmp}, 2, v{tmp}')
    k.e(f'v_and_b32 v{gx}, 7, v{l}')
    k.e(f'v_xor_b32 v{tmp}, v{tmp}, v{gx}')
    k.e(f'v_lshlrev_b32 v{tmp}, 4, v{tmp}')
    k.e(f'v_lshrrev_b32 v{vxt}, 3, v{l}')
    k.e(f'v_lshl_add_u32 v{gwo}, v{vxt}, 10, v{tmp}')
    k.e(f'v_mul_u32_u24 v{gw1}, 3584, v{vxt}')
    k.e(f'v_add_u32 v{gw1}, v{gw1}, v{tmp}')
    k.e(f'v_lshrrev_b32 v{tmp}, 4, v{l}')
    k.e(f'v_xor_b32 v{gx}, v{gx}, v{tmp}')
    k.e(f's_and_b32 s{st0}, s{sw}, 1')
    k.e(f's_lshl_b32 s{st0}, s{st0}, 2')
    k.e(f'v_xor_b32 v{gx}, s{st0}, v{gx}')
    k.e(f'v_lshlrev_b32 v{gx}, 4, v{gx}')
    k.e(f'v_lshl_add_u32 v{gx}, v{vxt}, 10, v{gx}')
    def kvsync(r):
        k.e(f's_waitcnt vmcnt({nvm[0] - done[("kv", r)]})')
        k.e('s_barrier')
    kvsync(0)
    k.stamp('first')
    for r in range(UPR, 4): kv_round(r)
    k.e(f'ds_read_b128 {vr(KFr,4)}, v{vk}')
    k.e(f'ds_read_b128 {vr(V1,4)}, v{vv} offset:512')
    k.e(f'ds_read_b128 {vr(V0,4)}, v{vv}')
    for s_ in range(2):
        k.e(f'v_mov_b32 v{NM[s_]+1}, v{NM[s_]}')
        for r_ in range(2, 16, 2):
            k.e(f'v_pk_mov_b32 {vr(NM[s_]+r_,2)}, {vr(NM[s_],2)}, {vr(NM[s_],2)}')
        if s_ == 0:
            k.e('s_waitcnt lgkmcnt(2)')
            k.e('s_nop 0')
            k.e(f'v_mfma_f32_32x32x16_bf16 {vr(S[0],16)}, {vr(KFr,4)}, {vr(Q[0],4)}, {vr(NM[0],16)}')
    def rowmax16(src, dst):
        k.e(f'v_max3_f32 v{dst}, v{src}, v{src+1}, v{src+2}')
        for q in range(3, 15, 2):
            k.e(f'v_max3_f32 v{dst}, v{dst}, v{src+q}, v{src+q+1}')
        k.e(f'v_max_f32 v{dst}, v{dst}, v{src+15}')
    def set_negm(m, nm):
        k.e(f'v_mov_b32 v{m+1}, v{m}')
        k.e('s_nop 1')
        k.e(f'v_permlane32_swap_b32 v{m}, v{m+1}')
        k.e('s_nop 1')
        k.e(f'v_max_f32 v{m}, v{m}, v{m+1}')
        for r_ in range(16):
            k.e(f'v_sub_f32 v{nm+r_}, 0, v{m}')
    k.e('s_waitcnt lgkmcnt(0)')
    k.e('s_nop 0')
    k.stamp('loop')
    k.stamp('@loop')
    def MQK(s_): k.e(f'v_mfma_f32_32x32x16_bf16 {vr(S[s_],16)}, {vr(KFr,4)}, {vr(Q[s_],4)}, {vr(NM[s_],16)}')
    def MP(s_, u): k.e(f'v_mfma_f32_32x32x16_bf16 {vr(O[s_],16)}, {vr(V1 if u else V0,4)}, {vr(P[s_]+4*u,4)}, {vr(O[s_],16)}')
    def E(s_, a_, b_):
        for r_ in range(a_, b_): k.e(f'v_exp_f32 v{S[s_]+r_}, v{S[s_]+r_}')
    def C(s_, a_, b_):
        for q in range(a_, b_): k.e(f'v_cvt_pk_bf16_f32 v{P[s_]+q}, v{S[s_]+2*q}, v{S[s_]+2*q+1}')
    side = []
    for q in range(8):
        side.append(lambda q=q: (k.e(f's_add_u32 s{st0}, s{swoA}, {(q//4)*131072 + (q%4)*8192}'),
                                 vm(f'buffer_load_dwordx4 {ar(AWO+4*q,4)}, v{gwo}, {sr(SB,4)}, s{st0} offen')))
    for q in range(16):
        side.append(lambda q=q: (k.e(f's_add_u32 s{st0}, s{sw1A}, {q*8*3584}'),
                                 vm(f'buffer_load_dwordx4 {ar(AW1+4*q,4)}, v{gw1}, {sr(SC,4)}, s{st0} offen')))
    def xres_copy():
        k.e(f's_lshr_b32 s{st0}, s{sm}, 3')
        k.e(f's_lshl_b32 s{st1}, s{sg}, 2')
        k.e(f's_add_u32 s{st0}, s{st0}, s{st1}')
        k.e(f's_lshl_b32 s{st0}, s{st0}, 16')
        srd(k, SB, sX, sX+1, 65536, f's{st0}')
        k.e(f's_lshl_b32 s{st0}, s{sw}, 10')
        k.e(f's_add_u32 m0, s{st0}, {XRES}')
        k.e(f's_lshl_b32 s{st0}, s{sw}, 13')
        k.e(f's_and_b32 s{st1}, s{sm}, 7')
        k.e(f's_lshl_b32 s{st1}, s{st1}, 7')
        k.e(f's_add_u32 s{st0}, s{st0}, s{st1}')
        vm(f'buffer_load_dwordx4 v{gx}, {sr(SB,4)}, s{st0} offen lds')
        srd(k, SB, sWS, sWS+1, 2*MB, OF)
    side.append(xres_copy)
    def w2_touch():
        k.e(f'v_lshlrev_b32 v{tmp}, 7, v{l}')
        vm(f'global_load_dword v{dummy}, v{tmp}, {sr(sPB,2)}')
    def ho_touch():
        sbs, ssh, ssr, smk = st0, st1, st2, sit
        k.e(f's_lshr_b32 s{sd}, s{sm}, 3')
        k.e(f's_lshl_b32 s{ssh}, s{sg}, 2')
        k.e(f's_add_u32 s{sd}, s{sd}, s{ssh}')
        k.e(f's_and_b32 s{smk}, s{sm}, 7')
        k.e(f's_lshl_b32 s{sbs}, s{sd}, 13')
        k.e(f's_lshl_b32 s{ssh}, s{smk}, 9')
        k.e(f's_add_u32 s{sbs}, s{sbs}, s{ssh}')
        k.e(f's_add_u32 s{sbs}, s{sbs}, {ST}')
        k.e(f's_lshl_b32 s{sd}, s{sd}, 16')
        k.e(f's_lshl_b32 s{smk}, s{smk}, 12')
        k.e(f's_add_u32 s{sd}, s{sd}, s{smk}')
        k.e(f's_add_u32 s{sd}, s{sd}, {HF}')
        k.e(f's_cmp_eq_u32 s{sw}, 4')
        k.e(f's_cselect_b32 s{sbs}, s{sd}, s{sbs}')
        k.e(f's_cselect_b32 s{smk}, 31, 3')
        k.e(f's_cselect_b32 s{ssr}, 15, 12')
        k.e(f's_mov_b32 s{ssh}, 5')
        k.e(f's_lshl_b32 s{sd}, s{sg}, 8')
        k.e(f's_add_u32 s{sd}, s{sd}, s{sm}')
        k.e(f's_lshl_b32 s{sd}, s{sd}, 10')
        k.e(f's_add_u32 s{sd}, s{sd}, {OF}')
        k.e(f's_cmp_eq_u32 s{sw}, {15 if HEADMAP else 5}')
        k.e(f's_cselect_b32 s{sbs}, s{sd}, s{sbs}')
        k.e(f's_cselect_b32 s{smk}, 7, s{smk}')
        k.e(f's_cselect_b32 s{ssr}, 15, s{ssr}')
        k.e(f's_cselect_b32 s{ssh}, 3, s{ssh}')
        k.e(f'v_lshrrev_b32 v{tmp}, s{ssh}, v{l}')
        k.e(f'v_lshlrev_b32 v{tmp}, s{ssr}, v{tmp}')
        k.e(f's_cmp_ge_u32 s{sm}, 14')
        k.e(f's_cselect_b32 s{ssh}, 4, 0')
        k.e(f's_cselect_b32 s{ssr}, 14, 0')
        k.e(f's_lshl_b32 s{sd}, s{sg}, 3')
        k.e(f's_add_u32 s{sd}, s{sd}, s{ssh}')
        k.e(f's_add_u32 s{sd}, s{sd}, s{sr4}')
        k.e(f's_mul_i32 s{sd}, s{sd}, {112*1024}')
        k.e(f's_sub_u32 s{ssr}, s{sm}, s{ssr}')
        k.e(f's_min_u32 s{ssr}, s{ssr}, 13')
        k.e(f's_lshl_b32 s{ssr}, s{ssr}, 13')
        k.e(f's_add_u32 s{sd}, s{sd}, s{ssr}')
        k.e(f's_add_u32 s{sd}, s{sd}, {FF}')
        k.e(f's_cmp_eq_u32 s{srole}, 0')
        k.e(f's_cselect_b32 s{sbs}, s{sd}, s{sbs}')
        k.e(f's_cselect_b32 s{smk}, 63, s{smk}')
        k.e(f's_cselect_b32 s{ssr}, 0, -1')
        k.e(f'v_and_b32 v{tmp}, s{ssr}, v{tmp}')
        k.e(f'v_and_b32 v{vxt}, s{smk}, v{l}')
        k.e(f'v_lshl_add_u32 v{tmp}, v{vxt}, 7, v{tmp}')
        k.e(f'v_add_u32 v{vxt}, s{sbs}, v{tmp}')
        k.e(f'v_lshlrev_b32 v{tmp}, 7, v{l}')
    def staggered(j):
        for j0, txt in ((HO0, f'global_load_dword v{dummy}, v{vxt}, {sr(sWS,2)}'), (W20, f'global_load_dword v{dummy}, v{tmp}, {sr(sPB,2)}')):
            if j0 is not None and j >= j0 and (j - j0) % STEP == 0 and (j - j0) // STEP < 8:
                a_ = L('tc')
                k.e(f's_cmp_lg_u32 s{sw}, {(j - j0) // STEP}')
                k.e(f's_cbranch_scc1 {k.lab(a_)}')
                k.e(txt)
                k.label(a_)
    def code_touch():
        a_ = L('pc')
        k.e(f's_getpc_b64 {sr(sPB,2)}')
        k.label(a_)
        k.e(f's_add_u32 s{sPB}, s{sPB}, {k.lab("fin")}-{k.lab(a_)}')
        k.e(f's_addc_u32 s{sPB+1}, s{sPB+1}, 0')
        k.e(f's_lshl_b32 s{st0}, s{sw}, 13')
        k.e(f's_min_u32 s{st0}, s{st0}, {k.lab("slow")}-{k.lab("fin")}-8192')
        k.e(f'v_lshlrev_b32 v{tmp}, 7, v{l}')
        k.e(f'v_add_u32 v{tmp}, s{st0}, v{tmp}')
        vm(f'global_load_dword v{dummy}, v{tmp}, {sr(sPB,2)}')
    if CODE:
        side.append(code_touch)
    def xt_store():
        a_ = L('xt')
        k.e(f's_cmp_lg_u32 s{sw}, 0')
        k.e(f's_cbranch_scc1 {k.lab(a_)}')
        k.e(f'v_mov_b32 v{tmp}, 0')
        k.e(f'v_mov_b32 v{vxt}, s{sfast}')
        k.e(f's_lshl_b32 s{st0}, s{sm}, 2')
        k.e('s_mov_b64 exec, 1')
        k.e(f'buffer_store_dword v{vxt}, v{tmp}, {sr(SFL,4)}, s{st0} offen sc1')
        k.e('s_mov_b64 exec, -1')
        k.label(a_)
    def xt_load():
        k.e(f'v_lshlrev_b32 v{tmp}, 2, v{t}')
        vm(f'buffer_load_dword v{vxt}, v{tmp}, {sr(SFL,4)}, 0 offen sc1')
    for j in range(32):
        i = j % UN
        k.c(f'key tile {j}')
        if KVB and j >= 15:
            if j in (15, 19, 23, 28): k.e(f's_setprio {3 - (15, 19, 23, 28).index(j)}')
        elif not KVFAST:
            k.e(f's_setprio {(2 - i) & 3}')
        elif j % 8 == 0:
            k.e(f's_setprio {3 - j // 8}')
        MQK(1)
        E(0, 0, 3)
        MP(1, 1)
        k.e(f'ds_read_b128 {vr(V1,4)}, v{vv} offset:{i*1024+512}')
        k.e(f'ds_read_b128 {vr(KFr,4)}, v{vk} offset:{(j+1)*1024}')
        E(0, 3, 8)
        C(0, 0, 4)
        if KVB:
            if j + 4 < 16: kv_round(j + 4)
        elif KVFAST:
            for r in (2*j + 4, 2*j + 5):
                if r < 16: kv_round(r)
        elif j % 2 == 0 and j // 2 + 4 < 16:
            kv_round(j // 2 + 4)
        E(0, 8, 11)
        k.e('s_waitcnt lgkmcnt(2)')
        MP(0, 0)
        E(0, 11, 16)
        C(0, 4, 8)
        k.e('s_waitcnt lgkmcnt(0)')
        E(1, 0, 2)
        MQK(0)
        E(1, 2, 5)
        MP(0, 1)
        E(1, 5, 8)
        C(1, 0, 4)
        for _ in range(2 if j >= SIDE2 else SPT):
            if side and j >= SIDE0:
                side.pop(0)()
        if j == 29:
            xt_load()
        if j == 2:
            xt_store()
        if j == 3:
            ho_touch()
        staggered(j)
        E(1, 8, 11)
        MP(1, 0)
        if i == UN - 1:
            k.e(f'v_add_u32 v{vv}, v{vv}, v{vinc}')
            k.e(f'ds_read_b128 {vr(V0,4)}, v{vv}')
        else:
            k.e(f'ds_read_b128 {vr(V0,4)}, v{vv} offset:{(i+1)*1024}')
        E(1, 11, 16)
        C(1, 4, 8)
        if j == 0:
            kvsync(1)
        elif KVB:
            if j in (2, 6, 10): kvsync((j + 5) // 2)
            if j == 14: kvsync(15)
        elif KVFAST:
            if j == 2: kvsync(3)
            if j == 6: kvsync(15)
        elif i == 2 and j + 2 < 32:
            kvsync((j + 5) // 2)
    assert not side
    k.stamp('loopend')
    k.e('s_setprio 0')
    MP(1, 1)
    k.e(f's_mul_i32 s{st0}, s{sw}, 2304')
    k.e(f's_add_u32 s{st0}, s{st0}, {EXA}')
    k.e(f'v_add_u32 v{tmp}, s{st0}, v{vl16}')
    k.e(f's_xor_b32 s{st1}, s{sw}, 4')
    k.e(f's_mul_i32 s{st1}, s{st1}, 2304')
    k.e(f's_add_u32 s{st1}, s{st1}, {EXA}')
    k.e(f'v_add_u32 v{tmp+1}, s{st1}, v{vl16}')
    k.e(f'v_lshlrev_b32 v{tmp+2}, 2, v{l}')
    k.e(f'v_add_u32 v{tmp+3}, s{st1}, v{tmp+2}')
    k.e(f'v_add_u32 v{tmp+2}, s{st0}, v{tmp+2}')
    k.e('s_waitcnt vmcnt(0)')
    k.e(f'v_cmp_ne_u32 vcc, s{sfast}, v{vxt}')
    k.e(f'ds_write_b128 v{tmp}, {vr(O[1],4)}')
    k.e(f'ds_write_b128 v{tmp}, {vr(O[1]+4,4)} offset:1024')
    k.e(f'ds_write_b32 v{tmp+2}, v{O[1]+8} offset:2048')
    k.e('s_cmp_eq_u64 vcc, 0')
    k.e(f's_cselect_b32 s{sfast}, 1, 0')
    k.e('s_waitcnt lgkmcnt(0)')
    k.e('s_barrier')
    k.e(f'ds_read_b32 v{S[0]+8}, v{tmp+3} offset:2048')
    k.e(f'ds_read_b128 {vr(S[0],4)}, v{tmp+1}')
    k.e(f'ds_read_b128 {vr(S[0]+4,4)}, v{tmp+1} offset:1024')
    k.e(f's_mov_b32 s{st0}, {f32(2.0**40)}')
    k.e('s_waitcnt lgkmcnt(0)')
    for r_ in (8, 0, 1, 2, 3, 4, 5, 6, 7):
        k.e(f'v_add_f32 v{O[0]+r_}, v{O[0]+r_}, v{S[0]+r_}')
    k.e(f'v_cmp_nlt_f32 vcc, v{O[0]+8}, s{st0}')
    k.e(f's_mov_b32 s{st1}, {f32(2.0**-40)}')
    k.e(f's_cbranch_vccnz {k.lab("slow")}')
    k.e(f'v_cmp_ngt_f32 vcc, v{O[0]+8}, s{st1}')
    k.e('s_nop 0')
    k.e(f's_cbranch_vccnz {k.lab("slow")}')
    k.label('fin')
    k.e(f'v_rcp_f32 v{tmp}, v{O[0]+8}')
    k.e(f's_lshl_b32 s{st0}, s{stb}, 15')
    k.e(f's_lshl_b32 s{st1}, s{shead}, 10')
    k.e(f's_add_u32 s{st0}, s{st0}, s{st1}')
    for r_ in range(8):
        k.e(f'v_mul_f32 v{O[0]+r_}, v{O[0]+r_}, v{tmp}')
    for q in range(4):
        k.e(f'v_cvt_pk_bf16_f32 v{P[0]+q}, v{O[0]+2*q}, v{O[0]+2*q+1}')
    stores([f'buffer_store_dwordx4 {vr(P[0],4)}, v{vl16}, {sr(SB,4)}, s{st0} offen'], HEADMAP)
    slow_regs = dict(Q=Q, S=S, NM=NM, O=O, P=P, KFr=KFr, V0=V0, V1=V1, vk=vk, vv=vv)
    sfl = sb
    k.e(f's_lshl_b32 s{sfl}, s{sr4}, 8')
    k.e(f's_lshl_b32 s{st0}, s{shead}, 3')
    k.e(f's_add_u32 s{sfl}, s{sfl}, s{st0}')
    k.e(f's_lshl_b32 s{st0}, s{srole}, 2')
    k.e(f's_add_u32 s{sfl}, s{sfl}, s{st0}')
    k.e(f's_add_u32 s{sfl}, s{sfl}, {FA_O}')
    srb, scb = sa, sc_
    k.e(f's_lshr_b32 s{srb}, s{sm}, 3')
    k.e(f's_lshl_b32 s{st0}, s{sg}, 2')
    k.e(f's_add_u32 s{srb}, s{srb}, s{st0}')
    k.e(f's_and_b32 s{scb}, s{sm}, 7')
    if not FFIRST:
        k.e(f's_lshl_b32 s{st0}, s{sr4}, 12')
        k.e(f's_lshl_b32 s{st1}, s{srole}, 15')
        k.e(f's_add_u32 s{st0}, s{st0}, s{st1}')
        k.e(f'v_add_u32 v{tmp+2}, s{st0}, v{vl16}')
        for q in range(8):
            k.e(f'ds_write_b128 v{tmp+2}, {ar(AWO+4*q,4)} offset:{(q//4)*16384 + (q%4)*1024}')
    if HEADMAP:
        k.e(f's_lshl_b32 s{st0}, s{sqb}, 12')
        k.e(f's_add_u32 s{st0}, s{st0}, {FL}')
        srd(k, SC, sWS, sWS+1, 4096, f's{st0}')
        flag(sfl, 0, SC, True)
    else:
        flag(sfl, 0)
    k.stamp('flagA')
    k.stamp('@flagA')
    if FFIRST:
        k.e(f's_lshl_b32 s{st0}, s{sr4}, 12')
        k.e(f's_lshl_b32 s{st1}, s{srole}, 15')
        k.e(f's_add_u32 s{st0}, s{st0}, s{st1}')
        k.e(f'v_add_u32 v{tmp+2}, s{st0}, v{vl16}')
        for q in range(8):
            k.e(f'ds_write_b128 v{tmp+2}, {ar(AWO+4*q,4)} offset:{(q//4)*16384 + (q%4)*1024}')
    def w1_flush(q0=0, q1=16):
        if q0 == 0:
            k.e(f's_lshl_b32 s{st0}, s{sr4}, 14')
            k.e(f's_xor_b32 s{st1}, s{srole}, 1')
            k.e(f's_lshl_b32 s{st1}, s{st1}, 16')
            k.e(f's_add_u32 s{st0}, s{st0}, s{st1}')
            k.e(f'v_add_u32 v{tmp+3}, s{st0}, v{vl16}')
        for q in range(q0, q1):
            k.e(f'ds_write_b128 v{tmp+3}, {ar(AW1+4*q,4)} offset:{q*1024}')
    def arrive(word, drained=False):
        k.e(f'v_mov_b32 v{tmp}, {CNT}')
        k.e(f'v_mov_b32 v{tmp+1}, 1')
        if not drained: k.e('s_waitcnt lgkmcnt(0)')
        k.e('s_mov_b64 exec, 1')
        k.e(f'ds_add_u32 v{tmp}, v{tmp+1} offset:{4*word}')
        k.e('s_mov_b64 exec, -1')
    def lwait(word, target):
        a_ = L('wc')
        k.e(f'v_mov_b32 v{tmp}, {CNT}')
        k.label(a_)
        k.e(f'ds_read_b32 v{tmp+1}, v{tmp} offset:{4*word}')
        k.e('s_waitcnt lgkmcnt(0)')
        k.e(f'v_cmp_gt_u32 vcc, {target}, v{tmp+1}')
        k.e(f's_cbranch_vccnz {k.lab(a_)}')
    w1_arrive = lambda: arrive(0)
    w1_wait = lambda: lwait(0, 8)
    def tr_base(dst, sblk):
        k.e(f'v_bfe_u32 v{tmp}, v{l}, 2, 2')
        k.e(f'v_lshl_add_u32 v{tmp+1}, v{h}, 2, v{tmp}')
        k.e(f'v_lshlrev_b32 v{tmp+1}, 7, v{tmp+1}')
        k.e(f'v_lshrrev_b32 v{tmp}, 1, v{tmp}')
        k.e(f'v_xor_b32 v{tmp}, s{sblk}, v{tmp}')
        k.e(f'v_lshl_add_u32 v{tmp+1}, v{tmp}, 6, v{tmp+1}')
        k.e(f'v_bfe_u32 v{tmp}, v{l}, 4, 1')
        k.e(f'v_lshl_add_u32 v{tmp+1}, v{tmp}, 5, v{tmp+1}')
        k.e(f'v_and_b32 v{tmp}, 3, v{l}')
        k.e(f'v_lshl_add_u32 v{dst}, v{tmp}, 3, v{tmp+1}')
    class Cnt:
        def __init__(self, name, cap): self.n = 0; self.at = {}; self.name = name; self.cap = cap; self.floor = 0
        def op(self, txt, tag=None):
            k.e(txt); self.n += 1
            if tag is not None: self.at[tag] = self.n
        def need(self, tag):
            if self.at[tag] <= self.floor: return None
            self.floor = self.at[tag]
            return f'{self.name}({min(self.cap, self.n - self.at[tag])})'
        def all(self):
            self.floor = self.n
            return f'{self.name}(0)'
    def wait(*parts):
        parts = [p_ for p_ in parts if p_]
        if parts: k.e('s_waitcnt ' + ' '.join(parts))
    EX = 153600
    SLOTS = [16, 17, 19, 0, 1, 2, 3, 4, 5, 6, 7, 8, 9, 10, 11, 12, 13, 14, 15, 18, 16, 17, 19, 0, 1, 2, 3, 4]
    k.e(f's_cmp_eq_u32 s{srole}, 0')
    k.e(f's_cbranch_scc1 {k.lab("comp")}')

    k.vn = BASE
    vow = [k.v() for _ in range(2)]
    WR = k.v(112, 4)
    law = k.v()
    k.e(f's_and_b32 s{st2}, s{sr4}, 1')
    tr_base(law, st2)
    k.e(f's_lshr_b32 s{st2}, s{sr4}, 1')
    k.e(f's_lshl_b32 s{st2}, s{st2}, 16')
    k.e(f'v_add_u32 v{law}, s{st2}, v{law}')
    LSEL = selector(k, l, tmp)
    LWF = [k.v(4) for _ in range(3)]
    LCS = k.v(4)
    k.e(f'v_bfe_u32 v{tmp}, v{l}, 4, 1')
    k.e(f'v_lshlrev_b32 v{tmp}, 2, v{tmp}')
    k.e(f'v_and_b32 v{tmp+1}, 7, v{l}')
    k.e(f'v_xor_b32 v{tmp}, v{tmp}, v{tmp+1}')
    k.e(f'v_lshlrev_b32 v{tmp}, 4, v{tmp}')
    k.e(f'v_lshrrev_b32 v{tmp+2}, 3, v{l}')
    k.e(f'v_lshl_add_u32 v{vow[0]}, v{tmp+2}, 10, v{tmp}')
    k.e(f'v_add_u32 v{vow[1]}, 8192, v{vow[0]}')
    swo, smw = sPA, sPA+1
    k.e(f's_lshl_b32 s{swo}, s{sr4}, 14')
    k.e(f's_lshl_b32 s{st0}, s{scb}, 7')
    k.e(f's_add_u32 s{swo}, s{swo}, s{st0}')
    k.e(f's_lshl_b32 s{smw}, s{sr4}, 11')
    sxo, smx = sPB, sPB+1
    k.e(f's_lshl_b32 s{sxo}, s{srb}, 16')
    k.e(f's_lshr_b32 s{st0}, s{sr4}, 1')
    k.e(f's_lshl_b32 s{st0}, s{st0}, 15')
    k.e(f's_and_b32 s{st1}, s{sr4}, 1')
    k.e(f's_lshl_b32 s{st1}, s{st1}, 12')
    k.e(f's_add_u32 s{smx}, s{st0}, s{st1}')
    k.e(f's_add_u32 s{sxo}, s{sxo}, s{smx}')
    srd(k, SA, sW12+2, sW12+3, 1792*1024)
    VM = Cnt('vmcnt', 63)
    def wreg(q, i):
        q = q - 26 if q >= 26 else q
        return vr(WR+8*q+4*i, 4) if q < 14 else ar(AWO+8*(q-14)+4*i, 4)
    def wload(q, thin=False):
        c, hf = (q, 0) if q < 14 else (q - 14, 1)
        k.e(f's_add_u32 s{st0}, s{swo}, {c*131072 + hf*65536}')
        for i in range(2):
            VM.op(f'buffer_load_dwordx4 {wreg(q,i)}, v{vow[i]}, {sr(SA,4)}, s{st0} offen', q)
        if thin: k.e(f's_waitcnt vmcnt({THIN})')
    wa = [k.v() for _ in range(3)]
    k.e(f'v_add_u32 v{wa[0]}, s{smw}, v{vl16}')
    k.e(f'v_add_u32 v{wa[1]}, 65536, v{wa[0]}')
    k.e(f'v_add_u32 v{wa[2]}, 131072, v{wa[0]}')
    def wflush(q):
        wait(VM.need(q))
        for i in range(2):
            off = SLOTS[q]*8192 + i*1024
            k.e(f'ds_write_b128 v{wa[off//65536]}, {wreg(q,i)} offset:{off % 65536}')
    for q in range(NA): wload(q)
    k.e(f's_lshr_b32 s{st0}, s{sm}, 3')
    k.e(f's_lshl_b32 s{st0}, s{st0}, 8')
    k.e(f's_add_u32 s{st0}, s{st0}, {FA_O}')
    poll(st0, -1, -1, LCS)
    k.stamp('L:pollA')
    def ochunk(c):
        k.e(f's_add_u32 m0, s{smx}, {65536 + c*8192}')
        k.e(f's_add_u32 s{st0}, s{sxo}, {c*8192}')
        for i in range(4):
            k.e(f'buffer_load_dwordx4 v{vl16}, {sr(SB,4)}, s{st0} offen offset:{i*1024}{LD} lds')
    ochunk(0); ochunk(1)
    k.e('s_waitcnt vmcnt(4) lgkmcnt(0)')
    k.e('s_barrier')
    ochunk(2); ochunk(3)
    for q in range(NA, NA + NB): wload(q)
    for c in range(1, 4):
        k.e(f's_waitcnt vmcnt({4*(3-c) + 2*NB})')
        k.e('s_barrier')
    k.e('s_barrier')
    k.stamp('L:b3end')
    a_, b_ = L('ld'), L('ld')
    k.e(f's_cmp_ge_u32 s{sm}, 28')
    k.e(f's_cbranch_scc1 {k.lab(a_)}')
    w1_flush()
    w1_arrive()
    k.label(a_)
    NT1 += NA + NB
    assert NT1 <= 14
    for q in range(NA + NB, NT1): wload(q, True)
    k.e(f's_cmp_ge_u32 s{sm}, 28')
    k.e(f's_cbranch_scc1 {k.lab(b_)}')
    w1_wait()
    for n in range(32):
        if n == 0:
            for n2 in range(2):
                for w2 in range(2):
                    k.e(f'ds_read_b64_tr_b16 {vr(LWF[n2]+2*w2,2)}, v{law} offset:{n2*2048 + w2*1024}')
        if n + 2 < 32:
            for w2 in range(2):
                k.e(f'ds_read_b64_tr_b16 {vr(LWF[(n+2)%3]+2*w2,2)}, v{law} offset:{(n+2)*2048 + w2*1024}')
        k.e(f's_waitcnt lgkmcnt({min(4, 2*(31-n))})')
        k.e(f'v_mfma_f32_16x16x32_bf16 {vr(LCS,4)}, {vr(LSEL,4)}, {vr(LWF[n%3],4)}, {"0" if n == 0 else vr(LCS,4)}')
    k.e(f's_lshl_b32 s{st0}, s{sr4}, 7')
    k.e(f's_add_u32 s{st0}, s{st0}, {EX}')
    k.e(f'v_lshlrev_b32 v{tmp}, 2, v{t}')
    k.e(f'v_add_u32 v{tmp}, s{st0}, v{tmp}')
    k.e('s_nop 3')
    k.e(f'ds_write_b32 v{tmp}, v{LCS}')
    arrive(0)
    k.stamp('+L:cs')
    k.label(b_)
    for q in range(NT1, NT1 + NT2): wload(q, True)
    b_ = L('ld')
    k.e(f's_cmp_ge_u32 s{sm}, 28')
    k.e(f's_cbranch_scc1 {k.lab(b_)}')
    lwait(1, 4)
    k.label(b_)
    fl_ = list(range(11))
    for q in range(NT1 + NT2, NPRE):
        wload(q)
        if fl_ and fl_[0] < NT1 + NT2: wflush(fl_.pop(0))
    k.stamp('+L:w2iss')
    for q in fl_: wflush(q)
    if CB5:
        arrive(3)
        k.stamp('L:w2')
        for q in range(NPRE, 28): wload(q)
        lwait(2, 4)
    else:
        k.e('s_waitcnt lgkmcnt(0)')
        k.stamp('L:w2')
        k.e('s_barrier')
        for q in range(NPRE, 28): wload(q)
    for q in range(11, 19): wflush(q)
    k.e('s_waitcnt lgkmcnt(0)')
    k.e('s_barrier')
    for q in range(19, 28): wflush(q)
    k.e('s_waitcnt lgkmcnt(0)')
    k.e('s_barrier')
    k.e('s_barrier')
    if WB:
        a_ = L('wb')
        k.e(f's_lshl_b32 s{st0}, s{sm}, 2')
        k.e(f's_add_u32 s{st0}, s{st0}, s{sr4}')
        k.e(f's_cmp_lg_u32 s{st0}, 0')
        k.e(f's_cbranch_scc1 {k.lab(a_)}')
        k.e('buffer_wbl2 sc1')
        k.label(a_)
    k.e('s_barrier')
    k.e(f's_branch {k.lab("done")}')

    k.label('comp')
    if PRIO: k.e('s_setprio 3')
    k.vn = BASE
    stq, scq = sPA, sPA+1
    k.e(f's_lshr_b32 s{stq}, s{sr4}, 1')
    k.e(f's_and_b32 s{scq}, s{sr4}, 1')
    awb = [k.v()]
    KEEP5 = k.vn
    axb = k.v()
    axr = [k.v() for _ in range(4)]
    k.e(f's_lshl_b32 s{st0}, s{stq}, 15')
    k.e(f's_add_u32 s{st0}, s{st0}, 65536')
    k.e(f'v_add_u32 v{axb}, s{st0}, v{vl16}')
    tr_base(awb[0], scq)
    k.e(f'v_bfe_u32 v{tmp}, v{t}, 1, 3')
    k.e(f's_lshl_b32 s{st0}, s{scq}, 2')
    k.e(f'v_xor_b32 v{tmp}, s{st0}, v{tmp}')
    k.e(f'v_lshlrev_b32 v{tmp+1}, 7, v{t}')
    k.e(f'v_lshl_add_u32 v{tmp+1}, v{h}, 3, v{tmp+1}')
    k.e(f's_lshl_b32 s{st0}, s{stq}, 12')
    k.e(f's_add_u32 s{st0}, s{st0}, {XRES}')
    k.e(f'v_add_u32 v{tmp+1}, s{st0}, v{tmp+1}')
    for g_ in range(4):
        k.e(f'v_xor_b32 v{tmp+2}, {g_}, v{tmp}')
        k.e(f'v_lshl_add_u32 v{axr[g_]}, v{tmp+2}, 4, v{tmp+1}')
    DEPTH = 4
    XF = [k.v(4) for _ in range(DEPTH)]
    WF = [k.v(4) for _ in range(DEPTH)]
    ACC = k.v(16)
    RES = k.v(8, 4); U = k.v(16); OUT = k.v(8, 4)
    srd(k, SB, sWS, sWS+1, 2*MB, HF)
    srd(k, SC, sWS, sWS+1, 256*1024, ST)
    def gemm64(NKS, xaddr, waddr, tag, extra=None):
        def reads(n):
            p = n % DEPTH
            xa, xo = xaddr(n); wa, wo = waddr(n)
            k.e(f'ds_read_b128 {vr(XF[p],4)}, v{xa} offset:{xo}')
            for w2 in range(2):
                k.e(f'ds_read_b64_tr_b16 {vr(WF[p]+2*w2,2)}, v{wa} offset:{wo + w2*1024}')
        k.e('s_waitcnt lgkmcnt(0)')
        k.e('s_barrier')
        k.stamp(tag + ':c0')
        reads(0); reads(1)
        for n in range(NKS):
            if n + 2 < NKS:
                if (n + 2) % 8 == 0:
                    k.e('s_waitcnt lgkmcnt(0)')
                    k.e('s_barrier')
                    reads(n + 2)
                else:
                    reads(n + 2)
                    if (n + 2) % 8 != 1:
                        k.e('s_waitcnt lgkmcnt(6)')
            else:
                k.e(f's_waitcnt lgkmcnt({3*(NKS-1-n)})')
            Cop = '0' if n == 0 else vr(ACC, 16)
            p = n % DEPTH
            k.e(f'v_mfma_f32_32x32x16_bf16 {vr(ACC,16)}, {vr(WF[p],4)}, {vr(XF[p],4)}, {Cop}')
            if extra: extra(n)
    def extra3(n):
        if n == 28:
            for g_ in range(4):
                k.e(f'ds_read_b64 {vr(RES+2*g_,2)}, v{axr[g_]}')
    gemm64(32, lambda n: (axb, n*1024), lambda n: (awb[0], n*2048), 'p3', extra3)
    k.e('s_barrier')
    k.stamp('p3:end')
    k.stamp('@p3:end')
    for d in range(8):
        k.e(f'v_lshlrev_b32 v{U+2*d}, 16, v{RES+d}')
        k.e(f'v_and_b32 v{U+2*d+1}, 0xffff0000, v{RES+d}')
    k.e(f's_lshl_b32 s{st0}, s{srb}, 1')
    k.e(f's_add_u32 s{st0}, s{st0}, s{stq}')
    k.e(f's_lshl_b32 s{st2}, s{st0}, 12')
    k.e(f's_and_b32 s{sfl}, s{st0}, 7')
    k.e(f's_lshl_b32 s{sfl}, s{sfl}, 6')
    k.e(f's_lshl_b32 s{st0}, s{st0}, 15')
    k.e(f's_lshl_b32 s{st1}, s{scb}, 1')
    k.e(f's_add_u32 s{st1}, s{st1}, s{scq}')
    k.e(f's_lshl_b32 s{sit}, s{st1}, 11')
    k.e(f's_add_u32 s{st0}, s{st0}, s{sit}')
    k.e(f's_lshl_b32 s{sit}, s{st1}, 8')
    k.e(f's_add_u32 s{st2}, s{st2}, s{sit}')
    k.e(f's_lshl_b32 s{sit}, s{st1}, 2')
    k.e(f's_add_u32 s{sfl}, s{sfl}, s{sit}')
    k.e(f's_add_u32 s{sfl}, s{sfl}, {F3_O}')
    for r_ in range(0, 16, 2):
        k.e(f'v_pk_add_f32 {vr(U+r_,2)}, {vr(U+r_,2)}, {vr(ACC+r_,2)}')
    for q in range(8):
        k.e(f'v_cvt_pk_bf16_f32 v{OUT+q}, v{U+2*q}, v{U+2*q+1}')
    stores([f'buffer_store_dwordx4 {vr(OUT,4)}, v{vl16}, {sr(SB,4)}, s{st0} offen',
            f'buffer_store_dwordx4 {vr(OUT+4,4)}, v{vl16}, {sr(SB,4)}, s{st0} offen offset:1024'])
    SQ = ACC
    k.e(f'v_pk_mul_f32 {vr(SQ,2)}, {vr(U,2)}, {vr(U,2)}')
    for r_ in range(2, 16, 2):
        k.e(f'v_pk_fma_f32 {vr(SQ,2)}, {vr(U+r_,2)}, {vr(U+r_,2)}, {vr(SQ,2)}')
    for r_ in range(2, 16, 2):
        k.e(f'v_pk_add_f32 {vr(U,2)}, {vr(U,2)}, {vr(U+r_,2)}')
    k.e(f'v_add_f32 v{SQ+2}, v{U}, v{U+1}')
    k.e(f'v_add_f32 v{SQ+3}, v{SQ}, v{SQ+1}')
    k.e(f'v_mov_b32 v{SQ+4}, v{SQ+2}')
    k.e(f'v_mov_b32 v{SQ+5}, v{SQ+3}')
    k.e(f'v_lshlrev_b32 v{tmp+2}, 3, v{t}')
    k.e('s_nop 0')
    k.e(f'v_permlane32_swap_b32 v{SQ+2}, v{SQ+4}')
    k.e(f'v_permlane32_swap_b32 v{SQ+3}, v{SQ+5}')
    for q in range(8):
        k.e(f'v_accvgpr_write_b32 a{HK+q}, v{OUT+q}')
    k.e(f'v_pk_add_f32 {vr(SQ+2,2)}, {vr(SQ+2,2)}, {vr(SQ+4,2)}')
    stores([f'buffer_store_dwordx2 {vr(SQ+2,2)}, v{tmp+2}, {sr(SC,4)}, s{st2} offen'])
    a_ = L('w1')
    k.e(f's_cmp_ge_u32 s{sm}, 28')
    k.e(f's_cbranch_scc1 {k.lab(a_)}')
    w1_flush(0, W1E)
    k.label(a_)
    flag(sfl, 0)
    k.stamp('flag3')
    k.e(f's_cmp_ge_u32 s{sm}, 28')
    k.e(f's_cbranch_scc1 {k.lab("c5")}')

    k.vn = KEEP5
    w1_flush(W1E, 16)
    stb4, scb4 = sPB, sPB+1
    k.e(f's_cmp_ge_u32 s{sm}, 14')
    k.e(f's_cselect_b32 s{st1}, 1, 0')
    k.e(f's_lshl_b32 s{stb4}, s{st1}, 2')
    k.e(f's_add_u32 s{stb4}, s{stb4}, s{sr4}')
    k.e(f's_mul_i32 s{st1}, s{st1}, 14')
    k.e(f's_sub_u32 s{scb4}, s{sm}, s{st1}')
    bw = [k.v(), k.v()]
    k.e(f's_lshl_b32 s{st0}, s{scq}, 6')
    k.e(f'v_xor_b32 v{bw[0]}, s{st0}, v{awb[0]}')
    k.e(f'v_xor_b32 v{bw[1]}, 64, v{bw[0]}')
    nm = k.v(2)
    HV = k.v(32)
    WF = [[k.v(4) for b_ in range(2)] for p in range(3)]
    ACC4 = [k.v(16) for i in range(4)]
    CS = k.v(16)
    vfl, vcs = tmp+2, tmp+3
    k.e(f'v_lshlrev_b32 v{nm}, 3, v{t}')
    k.e(f'v_lshl_add_u32 v{nm}, v{h}, 11, v{nm}')
    k.e(f's_lshl_b32 s{st0}, s{sg}, 3')
    k.e(f's_add_u32 s{st0}, s{st0}, s{stb4}')
    k.e(f's_lshl_b32 s{st1}, s{st0}, 15')
    k.e(f's_add_u32 s{st1}, s{st1}, {HF}')
    srd(k, SA, sWS, sWS+1, 32768, f's{st1}')
    k.e(f's_lshl_b32 s{st1}, s{st0}, 12')
    k.e(f's_add_u32 s{st1}, s{st1}, {ST}')
    srd(k, SC, sWS, sWS+1, 4096, f's{st1}')
    k.e(f's_mul_i32 s{st1}, s{st0}, {112*1024}')
    k.e(f's_lshl_b32 s{st2}, s{scb4}, 13')
    k.e(f's_add_u32 s{st1}, s{st1}, s{st2}')
    k.e(f's_add_u32 s{st1}, s{st1}, {FF}')
    srd(k, SB, sWS, sWS+1, 8192, f's{st1}')
    k.e(f's_lshl_b32 s{sfl}, s{stb4}, 6')
    k.e(f's_lshl_b32 s{st0}, s{scb4}, 2')
    k.e(f's_add_u32 s{sfl}, s{sfl}, s{st0}')
    k.e(f's_add_u32 s{sfl}, s{sfl}, {F4_O}')
    w1_arrive()
    k.e(f's_lshl_b32 s{st0}, s{stb4}, 6')
    k.e(f's_add_u32 s{st0}, s{st0}, {F3_O}')
    poll(st0, 0xffff, 0, CS+8)
    k.stamp('poll3')
    VM = Cnt('vmcnt', 63); LG = Cnt('lgkmcnt', 15)
    hreg = lambda n: vr(HV+4*n, 4) if n < 8 else ar(AWO+4*(n-8), 4)
    def hload(n):
        if n % 4 == 0:
            k.e(f's_mov_b32 s{st2}, {n*1024}')
        VM.op(f'buffer_load_dwordx4 {hreg(n)}, v{vl16}, {sr(SA,4)}, s{st2} offen offset:{(n%4)*1024}{LD}', ('h', n))
    for n in range(HUP): hload(n)
    nh = [HUP]
    def rd4(g, b_):
        ps, n = g // 32, g % 32
        if g == 32:
            k.e(f'v_add_u32 v{bw[b_]}, 65536, v{bw[b_]}')
        for w2 in range(2):
            LG.op(f'ds_read_b64_tr_b16 {vr(WF[g%3][b_]+2*w2,2)}, v{bw[b_]} offset:{n*2048 + w2*1024}', ('w', g))
    w1_wait()
    k.e(f'v_lshlrev_b32 v{vcs}, 4, v{h}')
    k.e(f'v_add_u32 v{vcs}, {EX}, v{vcs}')
    k.e(f'v_lshlrev_b32 v{vfl}, 2, v{l}')
    k.stamp('p4:b0')
    for g in range(3):
        rd4(g, 0); rd4(g, 1)
    def csread(i, dst):
        for g_ in range(4):
            LG.op(f'ds_read_b128 {vr(dst+4*g_,4)}, v{vcs} offset:{i*128 + g_*32}', ('cs', i))
    def fstore(i):
        so = '0' if i < 2 else f's{st2}'
        stores([f'buffer_store_dwordx4 {vr(ACC4[i],4)}, v{vl16}, {sr(SB,4)}, {so} offen offset:{(i%2)*2048}',
                f'buffer_store_dwordx4 {vr(ACC4[i]+4,4)}, v{vl16}, {sr(SB,4)}, {so} offen offset:{(i%2)*2048+1024}'])
        VM.n += 2; VM.at[('f', i)] = VM.n
    fill = []
    for i, cs_ in ((0, CS), (1, HV)):
        fill.append(lambda i=i: wait(LG.need(('cs', i))))
        for r_ in range(16):
            fill.append(lambda i=i, r_=r_, cs_=cs_: k.e(f'v_fma_f32 v{ACC4[i]+r_}, v{cs_+r_}, v{nm}, v{ACC4[i]+r_}'))
        for q in range(8):
            fill.append(lambda i=i, q=q: k.e(f'v_cvt_pk_bf16_f32 v{ACC4[i]+q}, v{ACC4[i]+2*q}, v{ACC4[i]+2*q+1}'))
        for q in range(8):
            fill.append(lambda i=i, q=q: k.e(f'v_pk_max_i16 v{ACC4[i]+q}, v{ACC4[i]+q}, 0'))
        fill.append(lambda i=i: fstore(i))
    def p5_scalars():
        k.e(f's_lshl_b32 s{st0}, s{srb}, 1')
        k.e(f's_add_u32 s{st0}, s{st0}, s{stq}')
        k.e(f's_mul_i32 s{st1}, s{st0}, {112*1024}')
        k.e(f's_add_u32 s{st1}, s{st1}, {FF}')
        srd(k, SA, sWS, sWS+1, 112*1024, f's{st1}')
        k.e(f's_lshl_b32 s{st1}, s{st0}, 12')
        k.e(f's_add_u32 s{st1}, s{st1}, {ST}')
        srd(k, SC, sWS, sWS+1, 4096, f's{st1}')
        k.e(f's_and_b32 s{sd}, s{st0}, 7')
        k.e(f's_lshl_b32 s{sd}, s{sd}, 6')
        k.e(f's_add_u32 s{sd}, s{sd}, {F4_O}')
        k.e(f's_lshl_b32 s{sx5}, s{scq}, 11')
    NXR = 24
    XR5 = AWO
    sx5 = sPB
    def xload(n):
        hf, c, u = n // 28, (n % 28) // 2, n % 2
        if u == 0:
            k.e(f's_add_u32 s{st1}, s{sx5}, {c*8192 + hf*4096}')
        VM.op(f'buffer_load_dwordx4 {ar(XR5+4*(n % NXR),4)}, v{vl16}, {sr(SA,4)}, s{st1} offen offset:{u*1024}{LD}', n)
    nx = [0]
    def acheck():
        a_ = L('fa')
        wait(VM.need('fa'))
        k.e(f'v_cmp_eq_u32 vcc, 0, v{HV+16}')
        k.e(f's_and_b32 s{st0}, vcc_lo, 0x3fff')
        k.e(f's_cbranch_scc0 {k.lab(a_)}')
        poll(sd, 0x3fff, 0)
        k.label(a_)
    for g in range(64):
        ps, n = g // 32, g % 32
        if g in (8, 16, 32, 48): k.stamp(f'+p4g{g}')
        M = lambda b_: k.e(f'v_mfma_f32_32x32x16_bf16 {vr(ACC4[2*ps+b_],16)}, {vr(WF[g%3][b_],4)}, {hreg(n)}, {"0" if n == 0 else vr(ACC4[2*ps+b_],16)}')
        def F(nn):
            for _ in range(nn):
                if g >= 35 and fill: fill.pop(0)()
        wait(VM.need(('h', n)), LG.need(('w', g)))
        M(0)
        if g == 32:
            arrive(1, True); LG.n += 1
            LG.op(f'ds_read_b32 v{tmp+1}, v{tmp}', 'cnt')
        if g + 3 < 64: rd4(g + 3, 0)
        if nh[0] < 32 and g % 2 == 0:
            hload(nh[0]); nh[0] += 1
        F(FPS)
        M(1)
        if g + 3 < 64: rd4(g + 3, 1)
        if nh[0] < 32:
            hload(nh[0]); nh[0] += 1
        F(FPS)
        if g == 16:
            assert nh[0] == 32
            for q in range(8):
                VM.op(f'buffer_load_dword v{CS+q}, v{nm}, {sr(SC,4)}, 0 offen offset:{q*256}{LD}', 'st')
        if g == 27:
            wait(VM.need('st'))
            for z in range(4): k.e(f'v_add_f32 v{CS+z}, v{CS+z}, v{CS+z+4}')
        if g == 28:
            for q in (2, 1):
                for z in range(q): k.e(f'v_add_f32 v{CS+z}, v{CS+z}, v{CS+z+q}')
        if g == 29:
            half_sum(k, [CS], CS+2)
        if g == 30:
            k.e(f'v_mul_f32 v{nm}, {f32(-1/512)}, v{CS}')
            round_bf16(k, nm)
        if g == 33:
            a_ = L('cw')
            wait(LG.need('cnt'))
            k.e(f'v_cmp_gt_u32 vcc, 12, v{tmp+1}')
            k.e(f's_cbranch_vccz {k.lab(a_)}')
            lwait(0, 12)
            k.label(a_)
            csread(0, CS)
        if g == 36: csread(1, HV)
        if g == 50:
            assert not fill
            p5_scalars()
        if g == FLA:
            flag(sfl, VM.n - VM.at[('f', 1)]); VM.n += 1
            k.e(f's_add_u32 s{sfl}, s{sfl}, 512')
        if g == 62:
            csread(2, CS); csread(3, HV)
        if g == EVA: acheck()
        if g >= EVA:
            for _ in range(3):
                xload(nx[0]); nx[0] += 1
        if g == FCK:
            VM.op(f'buffer_load_dword v{HV+16}, v{vfl}, {sr(SFL,4)}, s{sd} offen sc1', 'fa')
    k.stamp('p4:end')
    k.stamp('@p4:end')
    wait(LG.all())
    if CB5:
        arrive(2, True)
    else:
        k.e('s_barrier')
    if EVA >= 64: acheck()
    k.stamp('poll4')
    NUPX = max(2*XUP, nx[0] + 2)
    NUPX += NUPX & 1
    while nx[0] < NUPX:
        xload(nx[0]); nx[0] += 1
    k.e(f's_mov_b32 s{st2}, 4096')
    for i, cs_ in ((2, CS), (3, HV)):
        for r_ in range(0, 16, 2):
            k.e(f'v_pk_fma_f32 {vr(ACC4[i]+r_,2)}, {vr(cs_+r_,2)}, {vr(nm,2)}, {vr(ACC4[i]+r_,2)} op_sel_hi:[1,0,1]')
        for q in range(8):
            k.e(f'v_cvt_pk_bf16_f32 v{ACC4[i]+q}, v{ACC4[i]+2*q}, v{ACC4[i]+2*q+1}')
        for q in range(8):
            k.e(f'v_pk_max_i16 v{ACC4[i]+q}, v{ACC4[i]+q}, 0')
        fstore(i)
    k.e(f's_branch {k.lab("c5b")}')
    k.label('c5')
    p5_scalars()
    poll(sd, 0x3fff, 0)
    if CB5:
        arrive(2)
    else:
        k.e('s_barrier')
    n_keep, at_keep = VM.n, dict(VM.at)
    for n in range(NUPX): xload(n)
    for q in range(4):
        k.e(f'buffer_load_dword v{tmp+2}, v{vl16}, {sr(SA,4)}, 0 offen')
    VM.n, VM.at = n_keep, at_keep
    k.label('c5b')
    k.vn = KEEP5
    aw5 = [[k.v() for b_ in range(2)] for s_ in range(3)]
    WF5 = [[k.v(4) for b_ in range(2)] for p in range(3)]
    AC5 = [k.v(16) for b_ in range(2)]
    vst5, vf5 = k.v(), k.v()
    assert k.vn <= ACC4[2]
    k.vn = max(k.vn, ACC4[3] + 16)
    mean5, rstd5 = k.v(2), k.v(2)
    ST5 = ACC4[2]; RES = ACC4[3]; U = WF5[0][0]; OUT = ACC4[2]
    k.e(f's_lshl_b32 s{st0}, s{scq}, 12')
    k.e(f'v_add_u32 v{aw5[0][0]}, s{st0}, v{awb[0]}')
    k.e(f'v_xor_b32 v{aw5[0][1]}, 64, v{aw5[0][0]}')
    for s_ in (1, 2):
        for b_ in range(2):
            k.e(f'v_add_u32 v{aw5[s_][b_]}, {65536*s_}, v{aw5[0][b_]}')
    if CB5:
        lwait(3, 4)
    LG = Cnt('lgkmcnt', 15)
    def rd5(n, b_):
        off = SLOTS[n // 2]*8192 + (n % 2)*2048
        for w2 in range(2):
            LG.op(f'ds_read_b64_tr_b16 {vr(WF5[n%3][b_]+2*w2,2)}, v{aw5[off//65536][b_]} offset:{off % 65536 + w2*1024}', n)
    for n in range(3):
        rd5(n, 0); rd5(n, 1)
    k.e(f'v_lshlrev_b32 v{vst5}, 3, v{t}')
    k.e(f'v_lshl_add_u32 v{vst5}, v{h}, 11, v{vst5}')
    k.e(f'v_lshlrev_b32 v{vf5}, 2, v{l}')
    k.e(f's_add_u32 s{sd}, s{sd}, 512')
    k.stamp('p5:c0')
    lim = [28]
    def xmore(n):
        if nx[0] < lim[0] and nx[0] - NXR < n:
            xload(nx[0]); nx[0] += 1
    for n in range(56):
        X = XR5 + 4*(n % NXR)
        if n in (8, 16, 28, 40): k.stamp(f'+p5k{n}')
        M = lambda b_: k.e(f'v_mfma_f32_32x32x16_bf16 {vr(AC5[b_],16)}, {vr(WF5[n%3][b_],4)}, {ar(X,4)}, {"0" if n == 0 else vr(AC5[b_],16)}')
        wait(VM.need(n), LG.need(n))
        M(0)
        if n in (19, 35):
            wait(LG.all())
            k.e('s_barrier')
        if n == WBN:
            k.e('s_barrier')
        if n + 3 < 56: rd5(n + 3, 0)
        xmore(n)
        M(1)
        if n + 3 < 56: rd5(n + 3, 1)
        xmore(n + 1)
        if n == FLB_:
            a_ = L('fb')
            k.e(f's_cmp_ge_u32 s{sm}, 28')
            k.e(f's_cbranch_scc1 {k.lab(a_)}')
            flag(sfl, VM.n - VM.at[('f', 3)])
            k.label(a_)
            k.e(f's_lshl_b32 s{st0}, s{srb}, 16')
            srd(k, SB, sOUT, sOUT+1, 65536, f's{st0}')
        if n == CKB - 5:
            VM.op(f'buffer_load_dword v{mean5}, v{vf5}, {sr(SFL,4)}, s{sd} offen sc1', 'fb')
        if n == CKB:
            a_ = L('fb')
            wait(VM.need('fb'))
            k.e(f'v_cmp_eq_u32 vcc, 0, v{mean5}')
            k.e(f's_and_b32 s{st0}, vcc_lo, 0x3fff')
            k.e(f's_cbranch_scc0 {k.lab(a_)}')
            poll(sd, 0x3fff, 0)
            k.label(a_)
            lim[0] = 56
        if n == STN:
            for q in range(8):
                VM.op(f'buffer_load_dwordx2 {vr(ST5+2*q,2)}, v{vst5}, {sr(SC,4)}, 0 offen offset:{q*256}{LD}', 'st')
        if n == 49:
            wait(VM.need('st'))
            for z in range(4):
                for e_ in range(2): k.e(f'v_add_f32 v{ST5+2*z+e_}, v{ST5+2*z+e_}, v{ST5+2*(z+4)+e_}')
        if n == 50:
            for q in (2, 1):
                for z in range(q):
                    for e_ in range(2): k.e(f'v_add_f32 v{ST5+2*z+e_}, v{ST5+2*z+e_}, v{ST5+2*(z+q)+e_}')
        if n == 51:
            half_sum(k, [ST5, ST5+1], ST5+2)
        if n == 53:
            ln_finish(k, ST5, ST5+1, mean5, rstd5)
        if n == 46:
            for d in range(8):
                k.e(f'v_accvgpr_read_b32 v{RES+d}, a{HK+d}')
    k.stamp('p5:end')
    k.stamp('@p5:end')
    RED = 5*8192
    k.e(f's_xor_b32 s{st0}, s{sr4}, 1')
    k.e(f's_lshl_b32 s{st0}, s{st0}, 12')
    k.e(f's_add_u32 s{st0}, s{st0}, 65536')
    k.e(f'v_add_u32 v{aw5[1][0]}, s{st0}, v{vl16}')
    k.e(f'v_xor_b32 v{aw5[0][0]}, 4096, v{aw5[1][0]}')
    vr_ = vst5
    k.e(f'v_lshlrev_b32 v{vr_}, 10, v{t}')
    k.e(f'v_lshl_add_u32 v{vr_}, v{h}, 4, v{vr_}')
    k.e(f's_lshl_b32 s{st0}, s{stq}, 15')
    k.e(f's_lshl_b32 s{st1}, s{scb}, 7')
    k.e(f's_add_u32 s{st0}, s{st0}, s{st1}')
    k.e(f's_lshl_b32 s{st1}, s{scq}, 6')
    k.e(f's_add_u32 s{st0}, s{st0}, s{st1}')
    for g_ in range(4):
        k.e(f'ds_write_b128 v{aw5[1][0]}, {vr(AC5[1]+4*g_,4)} offset:{g_*1024}')
    for d in range(8):
        k.e(f'v_lshlrev_b32 v{U+2*d}, 16, v{RES+d}')
        k.e(f'v_and_b32 v{U+2*d+1}, 0xffff0000, v{RES+d}')
    for r_ in range(0, 16, 2):
        k.e(f'v_pk_fma_f32 {vr(U+r_,2)}, {vr(AC5[0]+r_,2)}, {vr(rstd5,2)}, {vr(U+r_,2)} op_sel_hi:[1,0,1]')
    k.e('s_waitcnt lgkmcnt(0)')
    k.e('s_barrier')
    for g_ in range(4):
        k.e(f'ds_read_b128 {vr(AC5[1]+4*g_,4)}, v{aw5[0][0]} offset:{g_*1024}')
    for g_ in range(4):
        k.e(f's_waitcnt lgkmcnt({3-g_})')
        for r_ in (4*g_, 4*g_+2):
            k.e(f'v_pk_fma_f32 {vr(U+r_,2)}, {vr(AC5[1]+r_,2)}, {vr(rstd5,2)}, {vr(U+r_,2)} op_sel_hi:[1,0,1]')
    for q in range(8):
        k.e(f'v_cvt_pk_bf16_f32 v{OUT+q}, v{U+2*q}, v{U+2*q+1}')
    k.e('s_nop 1')
    for pz in range(2):
        k.e(f'v_permlane32_swap_b32 v{OUT+4*pz}, v{OUT+4*pz+2}')
        k.e(f'v_permlane32_swap_b32 v{OUT+4*pz+1}, v{OUT+4*pz+3}')
    k.e(f'buffer_store_dwordx4 {vr(OUT,4)}, v{vr_}, {sr(SB,4)}, s{st0} offen')
    k.e(f'buffer_store_dwordx4 {vr(OUT+4,4)}, v{vr_}, {sr(SB,4)}, s{st0} offen offset:32')
    k.label('done')
    k.label('end')
    k.e('s_endpgm')

    k.label('slow')
    k.e(f's_lshl_b32 s{st0}, s{shead}, 16')
    k.e(f's_add_u32 s{st0}, s{st0}, {KF}')
    k.e(f'v_mov_b32 v{tmp}, 0xff800000')
    k.e(f's_mov_b32 s{sit}, 0')
    k.label('slow1')
    k.e(f's_add_u32 s{st1}, s{st0}, s{sit}')
    k.e(f'buffer_load_dwordx4 {vr(KFr,4)}, v{vl16}, {sr(SA,4)}, s{st1} offen')
    k.e('s_waitcnt vmcnt(0)')
    k.e(f'v_mfma_f32_32x32x16_bf16 {vr(S[0],16)}, {vr(KFr,4)}, {vr(Q[0],4)}, 0')
    k.e('s_nop 15')
    rowmax16(S[0], tmp+2)
    k.e(f'v_max_f32 v{tmp}, v{tmp}, v{tmp+2}')
    k.e(f's_add_u32 s{sit}, s{sit}, 1024')
    k.e(f's_cmp_lt_u32 s{sit}, 65536')
    k.e(f's_cbranch_scc1 {k.lab("slow1")}')
    set_negm(tmp, NM[0])
    for r_ in range(16):
        k.e(f'v_mov_b32 v{O[0]+r_}, 0')
    k.e(f'v_and_b32 v{vv}, 15, v{l}')
    k.e(f'v_lshlrev_b32 v{vv}, 4, v{vv}')
    k.e(f'v_lshl_add_u32 v{vv}, v{h}, 8, v{vv}')
    k.e(f'v_bfe_u32 v{tmp+1}, v{l}, 4, 1')
    k.e(f'v_lshl_add_u32 v{vv}, v{tmp+1}, 25, v{vv}')
    k.e(f'v_and_b32 v{tmp}, 27, v{l}')
    k.e(f'v_cmp_eq_u32 vcc, 16, v{tmp}')
    k.e(f'v_mov_b32 v{tmp+1}, 0x3f803f80')
    k.e(f's_mov_b32 s{sit}, 0')
    k.e(f'v_cndmask_b32 v{vk}, 0, v{tmp+1}, vcc')
    k.label('slow2')
    k.e(f's_add_u32 s{st1}, s{st0}, s{sit}')
    k.e(f's_add_u32 s{st2}, s{st1}, {VF - KF}')
    k.e(f'buffer_load_dwordx4 {vr(KFr,4)}, v{vl16}, {sr(SA,4)}, s{st1} offen')
    k.e(f'buffer_load_dwordx4 {vr(V0,4)}, v{vv}, {sr(SA,4)}, s{st2} offen')
    k.e(f'buffer_load_dwordx4 {vr(V1,4)}, v{vv}, {sr(SA,4)}, s{st2} offen offset:512')
    k.e('s_waitcnt vmcnt(0)')
    k.e(f'v_mfma_f32_32x32x16_bf16 {vr(S[0],16)}, {vr(KFr,4)}, {vr(Q[0],4)}, {vr(NM[0],16)}')
    for d in range(4):
        k.e(f'v_or_b32 v{V0+d}, v{V0+d}, v{vk}')
        k.e(f'v_or_b32 v{V1+d}, v{V1+d}, v{vk}')
    k.e('s_nop 7')
    E(0, 0, 16)
    k.e('s_nop 0')
    C(0, 0, 8)
    k.e('s_nop 1')
    MP(0, 0)
    MP(0, 1)
    k.e(f's_add_u32 s{sit}, s{sit}, 1024')
    k.e(f's_cmp_lt_u32 s{sit}, 65536')
    k.e(f's_cbranch_scc1 {k.lab("slow2")}')
    k.e('s_nop 15')
    k.e(f's_branch {k.lab("fin")}')
    assert k.vmax <= ARCH, k.vmax
    assert k.an <= 256 - ARCH, k.an
    k.vmax = ARCH
    return k, (256, 512, 163840)
```

```python
from fw import *
from k1 import *

ARCH = 152
XT_O, FA_O, F3_O, F4_O = 0, 1024, 2048, 3072
POLL_LIMIT = 200000

def gen_mega(name='block_kernel', KVPOL='', SIDE0=8, TCH=1, CODE=0, LD=' sc1', PRE=12, W2POS=99, HEADMAP=0, KVFAST=0, SPT=1, HO0=21, W20=18, STEP=1, UPR=2, PRIO=1, XUP=4, HUP=12, KVB=1, SIDE2=8, CSL=1, WB=1, NT1=5, NT2=10, NPRE=26, THIN=3, FLA=52, FLB_=2, CKB=22, STN=12, WBN=46, FPS=3, FFIRST=1, W1E=3, NA=0, NB=0, PP=0, CB5=1, FCK=57, EVA=64, NOSIDE=0):
    k = Kern(name)
    sWS, sX, sWO, sOUT = k.s(2), k.s(2), k.s(2), k.s(2)
    sW12 = k.s(4)
    SA, SB, SC, SFL = k.s(4), k.s(4), k.s(4), k.s(4)
    sPA, sPB = k.s(2), k.s(2)
    sw, sr4, srole, sg, sm, sfast, st0, st1, st2, sit, sa, sb, sc_, sd = [k.s() for _ in range(14)]
    shead, sqb = 2, 3
    k.dbgreg = f's{sfast}'
    nl = [0]
    def L(p='x'):
        nl[0] += 1
        return f'{p}{nl[0]}'
    k.e('s_cmp_ge_u32 s2, 256')
    k.e(f's_cbranch_scc1 {k.lab("end")}')
    k.e(f's_load_dwordx2 {sr(sWS,2)}, s[0:1], 64')
    k.e(f's_load_dwordx2 {sr(sX,2)}, s[0:1], 0')
    k.e(f's_load_dwordx2 {sr(sWO,2)}, s[0:1], 16')
    k.e(f's_load_dwordx2 {sr(sOUT,2)}, s[0:1], 48')
    k.e(f's_load_dwordx4 {sr(sW12,4)}, s[0:1], 32')
    R = lane_regs(k)
    l, t, h = R['l'], R['t'], R['h']
    vl16 = k.v()
    tmp = k.v(4)
    BASE = k.vn
    k.e(f'v_lshrrev_b32 v{tmp}, 6, v0')
    k.e(f's_and_b32 s{sg}, s2, 7')
    k.e(f'v_readfirstlane_b32 s{sw}, v{tmp}')
    k.e(f's_lshr_b32 s{sm}, s2, 3')
    k.e(f's_getreg_b32 s{sfast}, hwreg(HW_REG_XCC_ID, 0, 4)')
    k.e(f's_lshr_b32 s{srole}, s{sw}, 2')
    k.e(f's_and_b32 s{sr4}, s{sw}, 3')
    k.e(f's_add_u32 s{sfast}, s{sfast}, 1')
    if HEADMAP:
        k.e(f's_and_b32 s{sqb}, s{sm}, 7')
        k.e(f's_lshr_b32 s{st0}, s{sm}, 3')
        k.e(f's_lshl_b32 s{shead}, s{sg}, 2')
        k.e(f's_add_u32 s{shead}, s{shead}, s{st0}')
    else:
        k.e(f's_mov_b32 s{sqb}, s{sg}')
        k.e(f's_mov_b32 s{shead}, s{sm}')
    k.e(f'v_lshlrev_b32 v{vl16}, 4, v{l}')

    def stores(lst, through=False):
        if through:
            for s_ in lst: k.e(s_ + ' sc1')
            return
        a, b = L('st'), L('st')
        k.e(f's_cmp_eq_u32 s{sfast}, 0')
        k.e(f's_cbranch_scc1 {k.lab(a)}')
        for s_ in lst: k.e(s_)
        k.e(f's_branch {k.lab(b)}')
        k.label(a)
        for s_ in lst: k.e(s_ + ' sc1')
        k.label(b)
    def flag(soff, nyounger=0, D=None, through=False):
        D = SFL if D is None else D
        k.e(f'v_mov_b32 v{tmp}, 0')
        k.e(f'v_mov_b32 v{tmp+1}, 1')
        k.e(f's_waitcnt vmcnt({nyounger})')
        k.e('s_mov_b64 exec, 1')
        stores([f'buffer_store_dword v{tmp+1}, v{tmp}, {sr(D,4)}, s{soff} offen'], through)
        k.e('s_mov_b64 exec, -1')
    def poll(soff, mask_lo, mask_hi, r2=None):
        a, b = L('pl'), L('pl')
        ld = lambda r_: k.e(f'buffer_load_dword v{r_}, v{tmp}, {sr(SFL,4)}, s{soff} offen sc1')
        k.e(f'v_lshlrev_b32 v{tmp}, 2, v{l}')
        k.e(f's_mov_b32 exec_lo, {mask_lo}')
        k.e(f's_mov_b32 exec_hi, {mask_hi}')
        k.e(f's_mov_b32 s{sit}, 0')
        if r2 is not None and PP:
            ld(tmp+1)
            k.e('s_sleep 3')
            k.label(a)
            for x, y in ((r2, tmp+1), (tmp+1, r2)):
                ld(x)
                k.e('s_waitcnt vmcnt(1)')
                k.e(f'v_cmp_eq_u32 vcc, 0, v{y}')
                k.e(f's_add_u32 s{sit}, s{sit}, 1')
                k.e(f's_cbranch_vccz {k.lab(b)}')
            k.e(f's_cmp_ge_u32 s{sit}, {POLL_LIMIT}')
            k.e(f's_cbranch_scc0 {k.lab(a)}')
        else:
            k.label(a)
            ld(tmp+1)
            k.e(f's_add_u32 s{sit}, s{sit}, 1')
            k.e('s_waitcnt vmcnt(0)')
            k.e(f'v_cmp_eq_u32 vcc, 0, v{tmp+1}')
            k.e(f's_cmp_ge_u32 s{sit}, {POLL_LIMIT}')
            k.e(f's_cbranch_vccz {k.lab(b)}')
            k.e(f's_cbranch_scc0 {k.lab(a)}')
        k.label(b)
        k.e('s_mov_b64 exec, -1')

    KB, VB, ONES = 0, 65536, 131072
    UN = 4
    EXA = ONES + UN*1024
    XRES = 155648
    stb, sla, sga = sa, sb, sc_
    k.e(f's_lshl_b32 s{stb}, s{sqb}, 3')
    k.e(f's_lshl_b32 s{st1}, s{sr4}, 1')
    k.e(f's_add_u32 s{stb}, s{stb}, s{st1}')
    k.e(f's_add_u32 s{stb}, s{stb}, s{srole}')
    Q = [k.v(4), k.v(4)]
    vk, vv, vinc, vxt, dummy = k.v(), k.v(), k.v(), k.v(), k.v()
    S = [k.v(16), k.v(16)]
    NM = [k.v(16), k.v(16)]
    O = [k.v(16), k.v(16)]
    P = [k.v(8), k.v(8)]
    KFr = k.v(4); V0 = k.v(4); V1 = k.v(4)
    k.e(f's_lshl_b32 s{st0}, s{shead}, 16')
    k.e(f's_and_b32 s{st1}, s{sw}, 1')
    k.e(f's_lshl_b32 s{sla}, s{st1}, 16')
    k.e(f's_lshl_b32 s{sga}, s{st1}, 21')
    k.e(f's_bfe_u32 s{st1}, s{sw}, 0x10001')
    k.e(f's_lshl_b32 s{st1}, s{st1}, 15')
    k.e(f's_lshl_b32 s{st2}, s{srole}, 10')
    k.e(f's_add_u32 s{st1}, s{st1}, s{st2}')
    k.e(f's_add_u32 s{sla}, s{sla}, s{st1}')
    k.e(f's_add_u32 s{sga}, s{sga}, s{st1}')
    k.e(f's_add_u32 s{sga}, s{sga}, s{st0}')
    k.e(f's_add_u32 s{sga}, s{sga}, {KF}')
    k.e(f's_lshl_b32 s{st1}, s{stb}, 10')
    k.e(f's_add_u32 s{st1}, s{st1}, s{st0}')
    k.e(f's_xor_b32 s{st2}, s{st1}, 1024')
    k.e(f's_lshl_b32 s{sit}, s{sg}, 12')
    k.e(f's_add_u32 s{sit}, s{sit}, {FL}')
    k.e('s_waitcnt lgkmcnt(0)')
    k.stamp('karg')
    srd(k, SA, sWS, sWS+1, FL)
    nvm = [0]; done = {}
    def vm(txt, tag=None):
        k.e(txt); nvm[0] += 1
        if tag is not None: done[tag] = nvm[0]
    def kv_round(r):
        k.e(f's_add_u32 m0, s{sla}, {r*2048}')
        k.e(f's_add_u32 s{st0}, s{sga}, {r*2048}')
        vm(f'buffer_load_dwordx4 v{vl16}, {sr(SA,4)}, s{st0} offen{KVPOL} lds', ('kv', r))
    vm(f'buffer_load_dwordx4 {vr(Q[0],4)}, v{vl16}, {sr(SA,4)}, s{st1} offen')
    vm(f'buffer_load_dwordx4 {vr(Q[1],4)}, v{vl16}, {sr(SA,4)}, s{st2} offen')
    k.e(f'v_lshlrev_b32 v{tmp}, 2, v{t}')
    for s_, so in ((0, st1), (1, st2)):
        k.e(f's_lshr_b32 s{so}, s{so}, 3')
        k.e(f's_add_u32 s{so}, s{so}, {DG}')
        vm(f'buffer_load_dword v{NM[s_]}, v{tmp}, {sr(SA,4)}, s{so} offen')
    for r in range(UPR): kv_round(r)
    srd(k, SFL, sWS, sWS+1, 4096, f's{sit}')
    ON = S[0]
    k.e(f'v_and_b32 v{tmp}, 11, v0')
    k.e(f'v_cmp_eq_u32 vcc, 0, v{tmp}')
    k.e(f'v_mov_b32 v{tmp+1}, 0x3f803f80')
    k.e(f'v_lshlrev_b32 v{tmp}, 4, v0')
    k.e(f'v_cndmask_b32 v{ON}, 0, v{tmp+1}, vcc')
    k.e(f'v_and_b32 v{tmp}, {UN*1024-1}, v{tmp}')
    for d in range(1, 4):
        k.e(f'v_mov_b32 v{ON+d}, v{ON}')
    k.e(f'v_add_u32 v{tmp}, {ONES}, v{tmp}')
    k.e(f'ds_write_b128 v{tmp}, {vr(ON,4)}')
    CNT = 154112
    k.e(f'v_mov_b32 v{tmp}, {CNT}')
    k.e(f'v_mov_b32 v{tmp+2}, 0')
    k.e(f'v_mov_b32 v{tmp+3}, 0')
    k.e(f'ds_write_b64 v{tmp}, {vr(tmp+2,2)}')
    k.e(f'ds_write_b64 v{tmp}, {vr(tmp+2,2)} offset:8')
    HK = k.a(8); AWO = k.a(32); AW1 = k.a(64)
    swoA, sw1A = sPA, sPA+1
    srd(k, SB, sWO, sWO+1, 512*1024)
    srd(k, SC, sW12, sW12+1, 512*3584)
    k.e(f's_lshl_b32 s{swoA}, s{sr4}, 15')
    k.e(f's_lshl_b32 s{st0}, s{srole}, 18')
    k.e(f's_add_u32 s{swoA}, s{swoA}, s{st0}')
    k.e(f's_and_b32 s{st0}, s{sm}, 7')
    k.e(f's_lshl_b32 s{st0}, s{st0}, 7')
    k.e(f's_add_u32 s{swoA}, s{swoA}, s{st0}')
    k.e(f's_cmp_ge_u32 s{sm}, 14')
    k.e(f's_cselect_b32 s{st1}, 14, 0')
    k.e(f's_sub_u32 s{st1}, s{sm}, s{st1}')
    k.e(f's_lshl_b32 s{sw1A}, s{st1}, 8')
    k.e(f's_mul_i32 s{st1}, s{sr4}, {128*3584}')
    k.e(f's_add_u32 s{sw1A}, s{sw1A}, s{st1}')
    k.e(f's_xor_b32 s{st1}, s{srole}, 1')
    k.e(f's_lshl_b32 s{st1}, s{st1}, 7')
    k.e(f's_add_u32 s{sw1A}, s{sw1A}, s{st1}')
    k.e(f's_mul_i32 s{st0}, s{sm}, 57344')
    k.e(f's_min_u32 s{st1}, s{sw}, 6')
    k.e(f's_lshl_b32 s{st1}, s{st1}, 13')
    k.e(f's_add_u32 s{st0}, s{st0}, s{st1}')
    k.e(f's_add_u32 s{sPB}, s{sW12+2}, s{st0}')
    k.e(f's_addc_u32 s{sPB+1}, s{sW12+3}, 0')
    k.e(f's_lshl_b32 s{st0}, s{srole}, 15')
    k.e(f'v_add_u32 v{vk}, s{st0}, v{vl16}')
    k.e(f'v_and_b32 v{tmp}, 15, v{l}')
    k.e(f'v_lshlrev_b32 v{tmp}, 4, v{tmp}')
    k.e(f'v_lshl_add_u32 v{tmp}, v{h}, 8, v{tmp}')
    k.e(f'v_bfe_u32 v{tmp+1}, v{l}, 4, 1')
    k.e(f'v_xor_b32 v{tmp+2}, 1, v{tmp+1}')
    k.e(f'v_lshlrev_b32 v{vinc}, 12, v{tmp+2}')
    k.e(f'v_mul_u32_u24 v{tmp+2}, s{st0}, v{tmp+2}')
    k.e(f'v_lshl_add_u32 v{vv}, v{tmp+1}, 16, v{tmp}')
    k.e(f'v_add_u32 v{vv}, v{vv}, v{tmp+2}')
    k.e(f'v_add_u32 v{vv}, {VB}, v{vv}')
    for s_ in range(2):
        for r_ in range(16):
            k.e(f'v_mov_b32 v{O[s_]+r_}, 0')
        for d in range(4):
            k.e(f'v_mov_b32 v{P[s_]+4+d}, 0')
    gwo, gw1, gx = tmp+2, tmp+3, tmp+1
    k.e(f'v_bfe_u32 v{tmp}, v{l}, 4, 1')
    k.e(f'v_lshlrev_b32 v{tmp}, 2, v{tmp}')
    k.e(f'v_and_b32 v{gx}, 7, v{l}')
    k.e(f'v_xor_b32 v{tmp}, v{tmp}, v{gx}')
    k.e(f'v_lshlrev_b32 v{tmp}, 4, v{tmp}')
    k.e(f'v_lshrrev_b32 v{vxt}, 3, v{l}')
    k.e(f'v_lshl_add_u32 v{gwo}, v{vxt}, 10, v{tmp}')
    k.e(f'v_mul_u32_u24 v{gw1}, 3584, v{vxt}')
    k.e(f'v_add_u32 v{gw1}, v{gw1}, v{tmp}')
    k.e(f'v_lshrrev_b32 v{tmp}, 4, v{l}')
    k.e(f'v_xor_b32 v{gx}, v{gx}, v{tmp}')
    k.e(f's_and_b32 s{st0}, s{sw}, 1')
    k.e(f's_lshl_b32 s{st0}, s{st0}, 2')
    k.e(f'v_xor_b32 v{gx}, s{st0}, v{gx}')
    k.e(f'v_lshlrev_b32 v{gx}, 4, v{gx}')
    k.e(f'v_lshl_add_u32 v{gx}, v{vxt}, 10, v{gx}')
    def kvsync(r):
        k.e(f's_waitcnt vmcnt({nvm[0] - done[("kv", r)]})' + (' lgkmcnt(0)' if r == 0 else ''))
        k.e('s_barrier')
    kvsync(0)
    k.stamp('first')
    for r in range(UPR, 4): kv_round(r)
    k.e(f'ds_read_b128 {vr(KFr,4)}, v{vk}')
    k.e(f'ds_read_b128 {vr(V1,4)}, v{vv} offset:512')
    k.e(f'ds_read_b128 {vr(V0,4)}, v{vv}')
    for s_ in range(2):
        k.e(f'v_mov_b32 v{NM[s_]+1}, v{NM[s_]}')
        for r_ in range(2, 16, 2):
            k.e(f'v_pk_mov_b32 {vr(NM[s_]+r_,2)}, {vr(NM[s_],2)}, {vr(NM[s_],2)}')
        if s_ == 0:
            k.e('s_waitcnt lgkmcnt(2)')
            k.e('s_nop 0')
            k.e(f'v_mfma_f32_32x32x16_bf16 {vr(S[0],16)}, {vr(KFr,4)}, {vr(Q[0],4)}, {vr(NM[0],16)}')
    def rowmax16(src, dst):
        k.e(f'v_max3_f32 v{dst}, v{src}, v{src+1}, v{src+2}')
        for q in range(3, 15, 2):
            k.e(f'v_max3_f32 v{dst}, v{dst}, v{src+q}, v{src+q+1}')
        k.e(f'v_max_f32 v{dst}, v{dst}, v{src+15}')
    def set_negm(m, nm):
        k.e(f'v_mov_b32 v{m+1}, v{m}')
        k.e('s_nop 1')
        k.e(f'v_permlane32_swap_b32 v{m}, v{m+1}')
        k.e('s_nop 1')
        k.e(f'v_max_f32 v{m}, v{m}, v{m+1}')
        for r_ in range(16):
            k.e(f'v_sub_f32 v{nm+r_}, 0, v{m}')
    k.e('s_waitcnt lgkmcnt(0)')
    k.e('s_nop 0')
    k.stamp('loop')
    k.stamp('@loop')
    def MQK(s_): k.e(f'v_mfma_f32_32x32x16_bf16 {vr(S[s_],16)}, {vr(KFr,4)}, {vr(Q[s_],4)}, {vr(NM[s_],16)}')
    def MP(s_, u): k.e(f'v_mfma_f32_32x32x16_bf16 {vr(O[s_],16)}, {vr(V1 if u else V0,4)}, {vr(P[s_]+4*u,4)}, {vr(O[s_],16)}')
    def E(s_, a_, b_):
        for r_ in range(a_, b_): k.e(f'v_exp_f32 v{S[s_]+r_}, v{S[s_]+r_}')
    def C(s_, a_, b_):
        for q in range(a_, b_): k.e(f'v_cvt_pk_bf16_f32 v{P[s_]+q}, v{S[s_]+2*q}, v{S[s_]+2*q+1}')
    side = []
    for q in range(8):
        side.append(lambda q=q: (k.e(f's_add_u32 s{st0}, s{swoA}, {(q//4)*131072 + (q%4)*8192}'),
                                 vm(f'buffer_load_dwordx4 {ar(AWO+4*q,4)}, v{gwo}, {sr(SB,4)}, s{st0} offen')))
    for q in range(16):
        side.append(lambda q=q: (k.e(f's_add_u32 s{st0}, s{sw1A}, {q*8*3584}'),
                                 vm(f'buffer_load_dwordx4 {ar(AW1+4*q,4)}, v{gw1}, {sr(SC,4)}, s{st0} offen')))
    def xres_copy():
        k.e(f's_lshr_b32 s{st0}, s{sm}, 3')
        k.e(f's_lshl_b32 s{st1}, s{sg}, 2')
        k.e(f's_add_u32 s{st0}, s{st0}, s{st1}')
        k.e(f's_lshl_b32 s{st0}, s{st0}, 16')
        srd(k, SB, sX, sX+1, 65536, f's{st0}')
        k.e(f's_lshl_b32 s{st0}, s{sw}, 10')
        k.e(f's_add_u32 m0, s{st0}, {XRES}')
        k.e(f's_lshl_b32 s{st0}, s{sw}, 13')
        k.e(f's_and_b32 s{st1}, s{sm}, 7')
        k.e(f's_lshl_b32 s{st1}, s{st1}, 7')
        k.e(f's_add_u32 s{st0}, s{st0}, s{st1}')
        vm(f'buffer_load_dwordx4 v{gx}, {sr(SB,4)}, s{st0} offen lds')
        srd(k, SB, sWS, sWS+1, 2*MB, OF)
    side.append(xres_copy)
    def w2_touch():
        k.e(f'v_lshlrev_b32 v{tmp}, 7, v{l}')
        vm(f'global_load_dword v{dummy}, v{tmp}, {sr(sPB,2)}')
    def ho_touch():
        sbs, ssh, ssr, smk = st0, st1, st2, sit
        k.e(f's_lshr_b32 s{sd}, s{sm}, 3')
        k.e(f's_lshl_b32 s{ssh}, s{sg}, 2')
        k.e(f's_add_u32 s{sd}, s{sd}, s{ssh}')
        k.e(f's_and_b32 s{smk}, s{sm}, 7')
        k.e(f's_lshl_b32 s{sbs}, s{sd}, 13')
        k.e(f's_lshl_b32 s{ssh}, s{smk}, 9')
        k.e(f's_add_u32 s{sbs}, s{sbs}, s{ssh}')
        k.e(f's_add_u32 s{sbs}, s{sbs}, {ST}')
        k.e(f's_lshl_b32 s{sd}, s{sd}, 16')
        k.e(f's_lshl_b32 s{smk}, s{smk}, 12')
        k.e(f's_add_u32 s{sd}, s{sd}, s{smk}')
        k.e(f's_add_u32 s{sd}, s{sd}, {HF}')
        k.e(f's_cmp_eq_u32 s{sw}, 4')
        k.e(f's_cselect_b32 s{sbs}, s{sd}, s{sbs}')
        k.e(f's_cselect_b32 s{smk}, 31, 3')
        k.e(f's_cselect_b32 s{ssr}, 15, 12')
        k.e(f's_mov_b32 s{ssh}, 5')
        k.e(f's_lshl_b32 s{sd}, s{sg}, 8')
        k.e(f's_add_u32 s{sd}, s{sd}, s{sm}')
        k.e(f's_lshl_b32 s{sd}, s{sd}, 10')
        k.e(f's_add_u32 s{sd}, s{sd}, {OF}')
        k.e(f's_cmp_eq_u32 s{sw}, {15 if HEADMAP else 5}')
        k.e(f's_cselect_b32 s{sbs}, s{sd}, s{sbs}')
        k.e(f's_cselect_b32 s{smk}, 7, s{smk}')
        k.e(f's_cselect_b32 s{ssr}, 15, s{ssr}')
        k.e(f's_cselect_b32 s{ssh}, 3, s{ssh}')
        k.e(f'v_lshrrev_b32 v{tmp}, s{ssh}, v{l}')
        k.e(f'v_lshlrev_b32 v{tmp}, s{ssr}, v{tmp}')
        k.e(f's_cmp_ge_u32 s{sm}, 14')
        k.e(f's_cselect_b32 s{ssh}, 4, 0')
        k.e(f's_cselect_b32 s{ssr}, 14, 0')
        k.e(f's_lshl_b32 s{sd}, s{sg}, 3')
        k.e(f's_add_u32 s{sd}, s{sd}, s{ssh}')
        k.e(f's_add_u32 s{sd}, s{sd}, s{sr4}')
        k.e(f's_mul_i32 s{sd}, s{sd}, {112*1024}')
        k.e(f's_sub_u32 s{ssr}, s{sm}, s{ssr}')
        k.e(f's_min_u32 s{ssr}, s{ssr}, 13')
        k.e(f's_lshl_b32 s{ssr}, s{ssr}, 13')
        k.e(f's_add_u32 s{sd}, s{sd}, s{ssr}')
        k.e(f's_add_u32 s{sd}, s{sd}, {FF}')
        k.e(f's_cmp_eq_u32 s{srole}, 0')
        k.e(f's_cselect_b32 s{sbs}, s{sd}, s{sbs}')
        k.e(f's_cselect_b32 s{smk}, 63, s{smk}')
        k.e(f's_cselect_b32 s{ssr}, 0, -1')
        k.e(f'v_and_b32 v{tmp}, s{ssr}, v{tmp}')
        k.e(f'v_and_b32 v{vxt}, s{smk}, v{l}')
        k.e(f'v_lshl_add_u32 v{tmp}, v{vxt}, 7, v{tmp}')
        k.e(f'v_add_u32 v{vxt}, s{sbs}, v{tmp}')
        k.e(f'v_lshlrev_b32 v{tmp}, 7, v{l}')
    def staggered(j):
        for j0, txt in ((HO0, f'global_load_dword v{dummy}, v{vxt}, {sr(sWS,2)}'), (W20, f'global_load_dword v{dummy}, v{tmp}, {sr(sPB,2)}')):
            if j0 is not None and j >= j0 and (j - j0) % STEP == 0 and (j - j0) // STEP < 8:
                a_ = L('tc')
                k.e(f's_cmp_lg_u32 s{sw}, {(j - j0) // STEP}')
                k.e(f's_cbranch_scc1 {k.lab(a_)}')
                k.e(txt)
                k.label(a_)
    def code_touch():
        a_ = L('pc')
        k.e(f's_getpc_b64 {sr(sPB,2)}')
        k.label(a_)
        k.e(f's_add_u32 s{sPB}, s{sPB}, {k.lab("fin")}-{k.lab(a_)}')
        k.e(f's_addc_u32 s{sPB+1}, s{sPB+1}, 0')
        k.e(f's_lshl_b32 s{st0}, s{sw}, 13')
        k.e(f's_min_u32 s{st0}, s{st0}, {k.lab("slow")}-{k.lab("fin")}-8192')
        k.e(f'v_lshlrev_b32 v{tmp}, 7, v{l}')
        k.e(f'v_add_u32 v{tmp}, s{st0}, v{tmp}')
        vm(f'global_load_dword v{dummy}, v{tmp}, {sr(sPB,2)}')
    if CODE:
        side.append(code_touch)
    def xt_store():
        a_ = L('xt')
        k.e(f's_cmp_lg_u32 s{sw}, 0')
        k.e(f's_cbranch_scc1 {k.lab(a_)}')
        k.e(f'v_mov_b32 v{tmp}, 0')
        k.e(f'v_mov_b32 v{vxt}, s{sfast}')
        k.e(f's_lshl_b32 s{st0}, s{sm}, 2')
        k.e('s_mov_b64 exec, 1')
        k.e(f'buffer_store_dword v{vxt}, v{tmp}, {sr(SFL,4)}, s{st0} offen sc1')
        k.e('s_mov_b64 exec, -1')
        k.label(a_)
    def xt_load():
        k.e(f'v_lshlrev_b32 v{tmp}, 2, v{t}')
        vm(f'buffer_load_dword v{vxt}, v{tmp}, {sr(SFL,4)}, 0 offen sc1')
    if NOSIDE: side = side[24:]
    for j in range(32):
        i = j % UN
        k.c(f'key tile {j}')
        if KVB and j >= 15:
            if j in (15, 19, 23, 28): k.e(f's_setprio {3 - (15, 19, 23, 28).index(j)}')
        elif not KVFAST:
            k.e(f's_setprio {(2 - i) & 3}')
        elif j % 8 == 0:
            k.e(f's_setprio {3 - j // 8}')
        MQK(1)
        E(0, 0, 3)
        MP(1, 1)
        k.e(f'ds_read_b128 {vr(V1,4)}, v{vv} offset:{i*1024+512}')
        k.e(f'ds_read_b128 {vr(KFr,4)}, v{vk} offset:{(j+1)*1024}')
        E(0, 3, 8)
        C(0, 0, 4)
        if KVB:
            if j + 4 < 16: kv_round(j + 4)
        elif KVFAST:
            for r in (2*j + 4, 2*j + 5):
                if r < 16: kv_round(r)
        elif j % 2 == 0 and j // 2 + 4 < 16:
            kv_round(j // 2 + 4)
        E(0, 8, 11)
        k.e('s_waitcnt lgkmcnt(2)')
        MP(0, 0)
        E(0, 11, 16)
        C(0, 4, 8)
        k.e('s_waitcnt lgkmcnt(0)')
        E(1, 0, 2)
        MQK(0)
        E(1, 2, 5)
        MP(0, 1)
        E(1, 5, 8)
        C(1, 0, 4)
        for _ in range(2 if j >= SIDE2 else SPT):
            if side and j >= SIDE0:
                side.pop(0)()
        if j == 29:
            xt_load()
        if j == 2:
            xt_store()
        if j == 3:
            ho_touch()
        staggered(j)
        E(1, 8, 11)
        MP(1, 0)
        if i == UN - 1:
            k.e(f'v_add_u32 v{vv}, v{vv}, v{vinc}')
            k.e(f'ds_read_b128 {vr(V0,4)}, v{vv}')
        else:
            k.e(f'ds_read_b128 {vr(V0,4)}, v{vv} offset:{(i+1)*1024}')
        E(1, 11, 16)
        C(1, 4, 8)
        if j == 0:
            kvsync(1)
        elif KVB:
            if j in (2, 6, 10): kvsync((j + 5) // 2)
            if j == 14: kvsync(15)
        elif KVFAST:
            if j == 2: kvsync(3)
            if j == 6: kvsync(15)
        elif i == 2 and j + 2 < 32:
            kvsync((j + 5) // 2)
    assert not side
    k.stamp('loopend')
    k.e('s_setprio 0')
    MP(1, 1)
    k.e(f's_mul_i32 s{st0}, s{sw}, 2304')
    k.e(f's_add_u32 s{st0}, s{st0}, {EXA}')
    k.e(f'v_add_u32 v{tmp}, s{st0}, v{vl16}')
    k.e(f's_xor_b32 s{st1}, s{sw}, 4')
    k.e(f's_mul_i32 s{st1}, s{st1}, 2304')
    k.e(f's_add_u32 s{st1}, s{st1}, {EXA}')
    k.e(f'v_add_u32 v{tmp+1}, s{st1}, v{vl16}')
    k.e(f'v_lshlrev_b32 v{tmp+2}, 2, v{l}')
    k.e(f'v_add_u32 v{tmp+3}, s{st1}, v{tmp+2}')
    k.e(f'v_add_u32 v{tmp+2}, s{st0}, v{tmp+2}')
    k.e('s_waitcnt vmcnt(0)')
    k.e(f'v_cmp_ne_u32 vcc, s{sfast}, v{vxt}')
    k.e(f'ds_write_b128 v{tmp}, {vr(O[1],4)}')
    k.e(f'ds_write_b128 v{tmp}, {vr(O[1]+4,4)} offset:1024')
    k.e(f'ds_write_b32 v{tmp+2}, v{O[1]+8} offset:2048')
    k.e('s_cmp_eq_u64 vcc, 0')
    k.e(f's_cselect_b32 s{sfast}, 1, 0')
    k.e('s_waitcnt lgkmcnt(0)')
    k.e('s_barrier')
    k.e(f'ds_read_b32 v{S[0]+8}, v{tmp+3} offset:2048')
    k.e(f'ds_read_b128 {vr(S[0],4)}, v{tmp+1}')
    k.e(f'ds_read_b128 {vr(S[0]+4,4)}, v{tmp+1} offset:1024')
    k.e(f's_mov_b32 s{st0}, {f32(2.0**40)}')
    k.e('s_waitcnt lgkmcnt(0)')
    for r_ in (8, 0, 1, 2, 3, 4, 5, 6, 7):
        k.e(f'v_add_f32 v{O[0]+r_}, v{O[0]+r_}, v{S[0]+r_}')
    k.e(f'v_cmp_nlt_f32 vcc, v{O[0]+8}, s{st0}')
    k.e(f's_mov_b32 s{st1}, {f32(2.0**-40)}')
    k.e(f's_cbranch_vccnz {k.lab("slow")}')
    k.e(f'v_cmp_ngt_f32 vcc, v{O[0]+8}, s{st1}')
    k.e('s_nop 0')
    k.e(f's_cbranch_vccnz {k.lab("slow")}')
    k.label('fin')
    k.e(f'v_rcp_f32 v{tmp}, v{O[0]+8}')
    k.e(f's_lshl_b32 s{st0}, s{stb}, 15')
    k.e(f's_lshl_b32 s{st1}, s{shead}, 10')
    k.e(f's_add_u32 s{st0}, s{st0}, s{st1}')
    for r_ in range(8):
        k.e(f'v_mul_f32 v{O[0]+r_}, v{O[0]+r_}, v{tmp}')
    for q in range(4):
        k.e(f'v_cvt_pk_bf16_f32 v{P[0]+q}, v{O[0]+2*q}, v{O[0]+2*q+1}')
    stores([f'buffer_store_dwordx4 {vr(P[0],4)}, v{vl16}, {sr(SB,4)}, s{st0} offen'], HEADMAP)
    slow_regs = dict(Q=Q, S=S, NM=NM, O=O, P=P, KFr=KFr, V0=V0, V1=V1, vk=vk, vv=vv)
    sfl = sb
    k.e(f's_lshl_b32 s{sfl}, s{sr4}, 8')
    k.e(f's_lshl_b32 s{st0}, s{shead}, 3')
    k.e(f's_add_u32 s{sfl}, s{sfl}, s{st0}')
    k.e(f's_lshl_b32 s{st0}, s{srole}, 2')
    k.e(f's_add_u32 s{sfl}, s{sfl}, s{st0}')
    k.e(f's_add_u32 s{sfl}, s{sfl}, {FA_O}')
    srb, scb = sa, sc_
    k.e(f's_lshr_b32 s{srb}, s{sm}, 3')
    k.e(f's_lshl_b32 s{st0}, s{sg}, 2')
    k.e(f's_add_u32 s{srb}, s{srb}, s{st0}')
    k.e(f's_and_b32 s{scb}, s{sm}, 7')
    if not FFIRST:
        k.e(f's_lshl_b32 s{st0}, s{sr4}, 12')
        k.e(f's_lshl_b32 s{st1}, s{srole}, 15')
        k.e(f's_add_u32 s{st0}, s{st0}, s{st1}')
        k.e(f'v_add_u32 v{tmp+2}, s{st0}, v{vl16}')
        for q in range(8):
            k.e(f'ds_write_b128 v{tmp+2}, {ar(AWO+4*q,4)} offset:{(q//4)*16384 + (q%4)*1024}')
    if HEADMAP:
        k.e(f's_lshl_b32 s{st0}, s{sqb}, 12')
        k.e(f's_add_u32 s{st0}, s{st0}, {FL}')
        srd(k, SC, sWS, sWS+1, 4096, f's{st0}')
        flag(sfl, 0, SC, True)
    else:
        flag(sfl, 0)
    k.stamp('flagA')
    k.stamp('@flagA')
    if FFIRST:
        k.e(f's_lshl_b32 s{st0}, s{sr4}, 12')
        k.e(f's_lshl_b32 s{st1}, s{srole}, 15')
        k.e(f's_add_u32 s{st0}, s{st0}, s{st1}')
        k.e(f'v_add_u32 v{tmp+2}, s{st0}, v{vl16}')
        for q in range(8):
            k.e(f'ds_write_b128 v{tmp+2}, {ar(AWO+4*q,4)} offset:{(q//4)*16384 + (q%4)*1024}')
    def w1_flush(q0=0, q1=16):
        if q0 == 0:
            k.e(f's_lshl_b32 s{st0}, s{sr4}, 14')
            k.e(f's_xor_b32 s{st1}, s{srole}, 1')
            k.e(f's_lshl_b32 s{st1}, s{st1}, 16')
            k.e(f's_add_u32 s{st0}, s{st0}, s{st1}')
            k.e(f'v_add_u32 v{tmp+3}, s{st0}, v{vl16}')
        for q in range(q0, q1):
            k.e(f'ds_write_b128 v{tmp+3}, {ar(AW1+4*q,4)} offset:{q*1024}')
    def arrive(word, drained=False):
        k.e(f'v_mov_b32 v{tmp}, {CNT}')
        k.e(f'v_mov_b32 v{tmp+1}, 1')
        if not drained: k.e('s_waitcnt lgkmcnt(0)')
        k.e('s_mov_b64 exec, 1')
        k.e(f'ds_add_u32 v{tmp}, v{tmp+1} offset:{4*word}')
        k.e('s_mov_b64 exec, -1')
    def lwait(word, target):
        a_ = L('wc')
        k.e(f'v_mov_b32 v{tmp}, {CNT}')
        k.label(a_)
        k.e(f'ds_read_b32 v{tmp+1}, v{tmp} offset:{4*word}')
        k.e('s_waitcnt lgkmcnt(0)')
        k.e(f'v_cmp_gt_u32 vcc, {target}, v{tmp+1}')
        k.e(f's_cbranch_vccnz {k.lab(a_)}')
    w1_arrive = lambda: arrive(0)
    w1_wait = lambda: lwait(0, 8)
    def tr_base(dst, sblk):
        k.e(f'v_bfe_u32 v{tmp}, v{l}, 2, 2')
        k.e(f'v_lshl_add_u32 v{tmp+1}, v{h}, 2, v{tmp}')
        k.e(f'v_lshlrev_b32 v{tmp+1}, 7, v{tmp+1}')
        k.e(f'v_lshrrev_b32 v{tmp}, 1, v{tmp}')
        k.e(f'v_xor_b32 v{tmp}, s{sblk}, v{tmp}')
        k.e(f'v_lshl_add_u32 v{tmp+1}, v{tmp}, 6, v{tmp+1}')
        k.e(f'v_bfe_u32 v{tmp}, v{l}, 4, 1')
        k.e(f'v_lshl_add_u32 v{tmp+1}, v{tmp}, 5, v{tmp+1}')
        k.e(f'v_and_b32 v{tmp}, 3, v{l}')
        k.e(f'v_lshl_add_u32 v{dst}, v{tmp}, 3, v{tmp+1}')
    class Cnt:
        def __init__(self, name, cap): self.n = 0; self.at = {}; self.name = name; self.cap = cap; self.floor = 0
        def op(self, txt, tag=None):
            k.e(txt); self.n += 1
            if tag is not None: self.at[tag] = self.n
        def need(self, tag):
            if self.at[tag] <= self.floor: return None
            self.floor = self.at[tag]
            return f'{self.name}({min(self.cap, self.n - self.at[tag])})'
        def all(self):
            self.floor = self.n
            return f'{self.name}(0)'
    def wait(*parts):
        parts = [p_ for p_ in parts if p_]
        if parts: k.e('s_waitcnt ' + ' '.join(parts))
    EX = 153600
    SLOTS = [16, 17, 19, 0, 1, 2, 3, 4, 5, 6, 7, 8, 9, 10, 11, 12, 13, 14, 15, 18, 16, 17, 19, 0, 1, 2, 3, 4]
    k.e(f's_cmp_eq_u32 s{srole}, 0')
    k.e(f's_cbranch_scc1 {k.lab("comp")}')

    k.vn = BASE
    vow = [k.v() for _ in range(2)]
    WR = k.v(112, 4)
    law = k.v()
    k.e(f's_and_b32 s{st2}, s{sr4}, 1')
    tr_base(law, st2)
    k.e(f's_lshr_b32 s{st2}, s{sr4}, 1')
    k.e(f's_lshl_b32 s{st2}, s{st2}, 16')
    k.e(f'v_add_u32 v{law}, s{st2}, v{law}')
    LSEL = selector(k, l, tmp)
    LWF = [k.v(4) for _ in range(3)]
    LCS = k.v(4)
    k.e(f'v_bfe_u32 v{tmp}, v{l}, 4, 1')
    k.e(f'v_lshlrev_b32 v{tmp}, 2, v{tmp}')
    k.e(f'v_and_b32 v{tmp+1}, 7, v{l}')
    k.e(f'v_xor_b32 v{tmp}, v{tmp}, v{tmp+1}')
    k.e(f'v_lshlrev_b32 v{tmp}, 4, v{tmp}')
    k.e(f'v_lshrrev_b32 v{tmp+2}, 3, v{l}')
    k.e(f'v_lshl_add_u32 v{vow[0]}, v{tmp+2}, 10, v{tmp}')
    k.e(f'v_add_u32 v{vow[1]}, 8192, v{vow[0]}')
    swo, smw = sPA, sPA+1
    k.e(f's_lshl_b32 s{swo}, s{sr4}, 14')
    k.e(f's_lshl_b32 s{st0}, s{scb}, 7')
    k.e(f's_add_u32 s{swo}, s{swo}, s{st0}')
    k.e(f's_lshl_b32 s{smw}, s{sr4}, 11')
    sxo, smx = sPB, sPB+1
    k.e(f's_lshl_b32 s{sxo}, s{srb}, 16')
    k.e(f's_lshr_b32 s{st0}, s{sr4}, 1')
    k.e(f's_lshl_b32 s{st0}, s{st0}, 15')
    k.e(f's_and_b32 s{st1}, s{sr4}, 1')
    k.e(f's_lshl_b32 s{st1}, s{st1}, 12')
    k.e(f's_add_u32 s{smx}, s{st0}, s{st1}')
    k.e(f's_add_u32 s{sxo}, s{sxo}, s{smx}')
    srd(k, SA, sW12+2, sW12+3, 1792*1024)
    VM = Cnt('vmcnt', 63)
    def wreg(q, i):
        q = q - 26 if q >= 26 else q
        return vr(WR+8*q+4*i, 4) if q < 14 else ar(AWO+8*(q-14)+4*i, 4)
    def wload(q, thin=False):
        c, hf = (q, 0) if q < 14 else (q - 14, 1)
        k.e(f's_add_u32 s{st0}, s{swo}, {c*131072 + hf*65536}')
        for i in range(2):
            VM.op(f'buffer_load_dwordx4 {wreg(q,i)}, v{vow[i]}, {sr(SA,4)}, s{st0} offen', q)
        if thin: k.e(f's_waitcnt vmcnt({THIN})')
    wa = [k.v() for _ in range(3)]
    k.e(f'v_add_u32 v{wa[0]}, s{smw}, v{vl16}')
    k.e(f'v_add_u32 v{wa[1]}, 65536, v{wa[0]}')
    k.e(f'v_add_u32 v{wa[2]}, 131072, v{wa[0]}')
    def wflush(q):
        wait(VM.need(q))
        for i in range(2):
            off = SLOTS[q]*8192 + i*1024
            k.e(f'ds_write_b128 v{wa[off//65536]}, {wreg(q,i)} offset:{off % 65536}')
    for q in range(NA): wload(q)
    k.e(f's_lshr_b32 s{st0}, s{sm}, 3')
    k.e(f's_lshl_b32 s{st0}, s{st0}, 8')
    k.e(f's_add_u32 s{st0}, s{st0}, {FA_O}')
    poll(st0, -1, -1, LCS)
    k.stamp('L:pollA')
    def ochunk(c):
        k.e(f's_add_u32 m0, s{smx}, {65536 + c*8192}')
        k.e(f's_add_u32 s{st0}, s{sxo}, {c*8192}')
        for i in range(4):
            k.e(f'buffer_load_dwordx4 v{vl16}, {sr(SB,4)}, s{st0} offen offset:{i*1024}{LD} lds')
    ochunk(0); ochunk(1)
    k.e('s_waitcnt vmcnt(4) lgkmcnt(0)')
    k.e('s_barrier')
    ochunk(2); ochunk(3)
    for q in range(NA, NA + NB): wload(q)
    for c in range(1, 4):
        k.e(f's_waitcnt vmcnt({4*(3-c) + 2*NB})')
        k.e('s_barrier')
    k.e('s_barrier')
    k.stamp('L:b3end')
    a_, b_ = L('ld'), L('ld')
    k.e(f's_cmp_ge_u32 s{sm}, 28')
    k.e(f's_cbranch_scc1 {k.lab(a_)}')
    w1_flush()
    w1_arrive()
    k.label(a_)
    NT1 += NA + NB
    assert NT1 <= 14
    for q in range(NA + NB, NT1): wload(q, True)
    k.e(f's_cmp_ge_u32 s{sm}, 28')
    k.e(f's_cbranch_scc1 {k.lab(b_)}')
    w1_wait()
    for n in range(32):
        if n == 0:
            for n2 in range(2):
                for w2 in range(2):
                    k.e(f'ds_read_b64_tr_b16 {vr(LWF[n2]+2*w2,2)}, v{law} offset:{n2*2048 + w2*1024}')
        if n + 2 < 32:
            for w2 in range(2):
                k.e(f'ds_read_b64_tr_b16 {vr(LWF[(n+2)%3]+2*w2,2)}, v{law} offset:{(n+2)*2048 + w2*1024}')
        k.e(f's_waitcnt lgkmcnt({min(4, 2*(31-n))})')
        k.e(f'v_mfma_f32_16x16x32_bf16 {vr(LCS,4)}, {vr(LSEL,4)}, {vr(LWF[n%3],4)}, {"0" if n == 0 else vr(LCS,4)}')
    k.e(f's_lshl_b32 s{st0}, s{sr4}, 7')
    k.e(f's_add_u32 s{st0}, s{st0}, {EX}')
    k.e(f'v_lshlrev_b32 v{tmp}, 2, v{t}')
    k.e(f'v_add_u32 v{tmp}, s{st0}, v{tmp}')
    k.e('s_nop 3')
    k.e(f'ds_write_b32 v{tmp}, v{LCS}')
    arrive(0)
    k.stamp('+L:cs')
    k.label(b_)
    for q in range(NT1, NT1 + NT2): wload(q, True)
    b_ = L('ld')
    k.e(f's_cmp_ge_u32 s{sm}, 28')
    k.e(f's_cbranch_scc1 {k.lab(b_)}')
    lwait(1, 4)
    k.label(b_)
    fl_ = list(range(11))
    for q in range(NT1 + NT2, NPRE):
        wload(q)
        if fl_ and fl_[0] < NT1 + NT2: wflush(fl_.pop(0))
    k.stamp('+L:w2iss')
    for q in fl_: wflush(q)
    if CB5:
        arrive(3)
        k.stamp('L:w2')
        for q in range(NPRE, 28): wload(q)
        lwait(2, 4)
    else:
        k.e('s_waitcnt lgkmcnt(0)')
        k.stamp('L:w2')
        k.e('s_barrier')
        for q in range(NPRE, 28): wload(q)
    for q in range(11, 19): wflush(q)
    k.e('s_waitcnt lgkmcnt(0)')
    k.e('s_barrier')
    for q in range(19, 28): wflush(q)
    k.e('s_waitcnt lgkmcnt(0)')
    k.e('s_barrier')
    k.e('s_barrier')
    if WB:
        a_ = L('wb')
        k.e(f's_lshl_b32 s{st0}, s{sm}, 2')
        k.e(f's_add_u32 s{st0}, s{st0}, s{sr4}')
        k.e(f's_cmp_lg_u32 s{st0}, 0')
        k.e(f's_cbranch_scc1 {k.lab(a_)}')
        k.e('buffer_wbl2 sc1')
        k.label(a_)
    k.e('s_barrier')
    k.e(f's_branch {k.lab("done")}')

    k.label('comp')
    if PRIO: k.e('s_setprio 3')
    k.vn = BASE
    stq, scq = sPA, sPA+1
    k.e(f's_lshr_b32 s{stq}, s{sr4}, 1')
    k.e(f's_and_b32 s{scq}, s{sr4}, 1')
    awb = [k.v()]
    KEEP5 = k.vn
    axb = k.v()
    axr = [k.v() for _ in range(4)]
    k.e(f's_lshl_b32 s{st0}, s{stq}, 15')
    k.e(f's_add_u32 s{st0}, s{st0}, 65536')
    k.e(f'v_add_u32 v{axb}, s{st0}, v{vl16}')
    tr_base(awb[0], scq)
    k.e(f'v_bfe_u32 v{tmp}, v{t}, 1, 3')
    k.e(f's_lshl_b32 s{st0}, s{scq}, 2')
    k.e(f'v_xor_b32 v{tmp}, s{st0}, v{tmp}')
    k.e(f'v_lshlrev_b32 v{tmp+1}, 7, v{t}')
    k.e(f'v_lshl_add_u32 v{tmp+1}, v{h}, 3, v{tmp+1}')
    k.e(f's_lshl_b32 s{st0}, s{stq}, 12')
    k.e(f's_add_u32 s{st0}, s{st0}, {XRES}')
    k.e(f'v_add_u32 v{tmp+1}, s{st0}, v{tmp+1}')
    for g_ in range(4):
        k.e(f'v_xor_b32 v{tmp+2}, {g_}, v{tmp}')
        k.e(f'v_lshl_add_u32 v{axr[g_]}, v{tmp+2}, 4, v{tmp+1}')
    DEPTH = 4
    XF = [k.v(4) for _ in range(DEPTH)]
    WF = [k.v(4) for _ in range(DEPTH)]
    ACC = k.v(16)
    RES = k.v(8, 4); U = k.v(16); OUT = k.v(8, 4)
    srd(k, SB, sWS, sWS+1, 2*MB, HF)
    srd(k, SC, sWS, sWS+1, 256*1024, ST)
    def gemm64(NKS, xaddr, waddr, tag, extra=None):
        def reads(n):
            p = n % DEPTH
            xa, xo = xaddr(n); wa, wo = waddr(n)
            k.e(f'ds_read_b128 {vr(XF[p],4)}, v{xa} offset:{xo}')
            for w2 in range(2):
                k.e(f'ds_read_b64_tr_b16 {vr(WF[p]+2*w2,2)}, v{wa} offset:{wo + w2*1024}')
        k.e('s_waitcnt lgkmcnt(0)')
        k.e('s_barrier')
        k.stamp(tag + ':c0')
        reads(0); reads(1)
        for n in range(NKS):
            if n + 2 < NKS:
                if (n + 2) % 8 == 0:
                    k.e('s_waitcnt lgkmcnt(0)')
                    k.e('s_barrier')
                    reads(n + 2)
                else:
                    reads(n + 2)
                    if (n + 2) % 8 != 1:
                        k.e('s_waitcnt lgkmcnt(6)')
            else:
                k.e(f's_waitcnt lgkmcnt({3*(NKS-1-n)})')
            Cop = '0' if n == 0 else vr(ACC, 16)
            p = n % DEPTH
            k.e(f'v_mfma_f32_32x32x16_bf16 {vr(ACC,16)}, {vr(WF[p],4)}, {vr(XF[p],4)}, {Cop}')
            if extra: extra(n)
    def extra3(n):
        if n == 28:
            for g_ in range(4):
                k.e(f'ds_read_b64 {vr(RES+2*g_,2)}, v{axr[g_]}')
    gemm64(32, lambda n: (axb, n*1024), lambda n: (awb[0], n*2048), 'p3', extra3)
    k.e('s_barrier')
    k.stamp('p3:end')
    k.stamp('@p3:end')
    for d in range(8):
        k.e(f'v_lshlrev_b32 v{U+2*d}, 16, v{RES+d}')
        k.e(f'v_and_b32 v{U+2*d+1}, 0xffff0000, v{RES+d}')
    k.e(f's_lshl_b32 s{st0}, s{srb}, 1')
    k.e(f's_add_u32 s{st0}, s{st0}, s{stq}')
    k.e(f's_lshl_b32 s{st2}, s{st0}, 12')
    k.e(f's_and_b32 s{sfl}, s{st0}, 7')
    k.e(f's_lshl_b32 s{sfl}, s{sfl}, 6')
    k.e(f's_lshl_b32 s{st0}, s{st0}, 15')
    k.e(f's_lshl_b32 s{st1}, s{scb}, 1')
    k.e(f's_add_u32 s{st1}, s{st1}, s{scq}')
    k.e(f's_lshl_b32 s{sit}, s{st1}, 11')
    k.e(f's_add_u32 s{st0}, s{st0}, s{sit}')
    k.e(f's_lshl_b32 s{sit}, s{st1}, 8')
    k.e(f's_add_u32 s{st2}, s{st2}, s{sit}')
    k.e(f's_lshl_b32 s{sit}, s{st1}, 2')
    k.e(f's_add_u32 s{sfl}, s{sfl}, s{sit}')
    k.e(f's_add_u32 s{sfl}, s{sfl}, {F3_O}')
    for r_ in range(0, 16, 2):
        k.e(f'v_pk_add_f32 {vr(U+r_,2)}, {vr(U+r_,2)}, {vr(ACC+r_,2)}')
    for q in range(8):
        k.e(f'v_cvt_pk_bf16_f32 v{OUT+q}, v{U+2*q}, v{U+2*q+1}')
    stores([f'buffer_store_dwordx4 {vr(OUT,4)}, v{vl16}, {sr(SB,4)}, s{st0} offen',
            f'buffer_store_dwordx4 {vr(OUT+4,4)}, v{vl16}, {sr(SB,4)}, s{st0} offen offset:1024'])
    SQ = ACC
    k.e(f'v_pk_mul_f32 {vr(SQ,2)}, {vr(U,2)}, {vr(U,2)}')
    for r_ in range(2, 16, 2):
        k.e(f'v_pk_fma_f32 {vr(SQ,2)}, {vr(U+r_,2)}, {vr(U+r_,2)}, {vr(SQ,2)}')
    for r_ in range(2, 16, 2):
        k.e(f'v_pk_add_f32 {vr(U,2)}, {vr(U,2)}, {vr(U+r_,2)}')
    k.e(f'v_add_f32 v{SQ+2}, v{U}, v{U+1}')
    k.e(f'v_add_f32 v{SQ+3}, v{SQ}, v{SQ+1}')
    k.e(f'v_mov_b32 v{SQ+4}, v{SQ+2}')
    k.e(f'v_mov_b32 v{SQ+5}, v{SQ+3}')
    k.e(f'v_lshlrev_b32 v{tmp+2}, 3, v{t}')
    k.e('s_nop 0')
    k.e(f'v_permlane32_swap_b32 v{SQ+2}, v{SQ+4}')
    k.e(f'v_permlane32_swap_b32 v{SQ+3}, v{SQ+5}')
    for q in range(8):
        k.e(f'v_accvgpr_write_b32 a{HK+q}, v{OUT+q}')
    k.e(f'v_pk_add_f32 {vr(SQ+2,2)}, {vr(SQ+2,2)}, {vr(SQ+4,2)}')
    stores([f'buffer_store_dwordx2 {vr(SQ+2,2)}, v{tmp+2}, {sr(SC,4)}, s{st2} offen'])
    a_ = L('w1')
    k.e(f's_cmp_ge_u32 s{sm}, 28')
    k.e(f's_cbranch_scc1 {k.lab(a_)}')
    w1_flush(0, W1E)
    k.label(a_)
    flag(sfl, 0)
    k.stamp('flag3')
    k.e(f's_cmp_ge_u32 s{sm}, 28')
    k.e(f's_cbranch_scc1 {k.lab("c5")}')

    k.vn = KEEP5
    w1_flush(W1E, 16)
    stb4, scb4 = sPB, sPB+1
    k.e(f's_cmp_ge_u32 s{sm}, 14')
    k.e(f's_cselect_b32 s{st1}, 1, 0')
    k.e(f's_lshl_b32 s{stb4}, s{st1}, 2')
    k.e(f's_add_u32 s{stb4}, s{stb4}, s{sr4}')
    k.e(f's_mul_i32 s{st1}, s{st1}, 14')
    k.e(f's_sub_u32 s{scb4}, s{sm}, s{st1}')
    bw = [k.v(), k.v()]
    k.e(f's_lshl_b32 s{st0}, s{scq}, 6')
    k.e(f'v_xor_b32 v{bw[0]}, s{st0}, v{awb[0]}')
    k.e(f'v_xor_b32 v{bw[1]}, 64, v{bw[0]}')
    nm = k.v(2)
    HV = k.v(32)
    WF = [[k.v(4) for b_ in range(2)] for p in range(3)]
    ACC4 = [k.v(16) for i in range(4)]
    CS = k.v(16)
    vfl, vcs = tmp+2, tmp+3
    k.e(f'v_lshlrev_b32 v{nm}, 3, v{t}')
    k.e(f'v_lshl_add_u32 v{nm}, v{h}, 11, v{nm}')
    k.e(f's_lshl_b32 s{st0}, s{sg}, 3')
    k.e(f's_add_u32 s{st0}, s{st0}, s{stb4}')
    k.e(f's_lshl_b32 s{st1}, s{st0}, 15')
    k.e(f's_add_u32 s{st1}, s{st1}, {HF}')
    srd(k, SA, sWS, sWS+1, 32768, f's{st1}')
    k.e(f's_lshl_b32 s{st1}, s{st0}, 12')
    k.e(f's_add_u32 s{st1}, s{st1}, {ST}')
    srd(k, SC, sWS, sWS+1, 4096, f's{st1}')
    k.e(f's_mul_i32 s{st1}, s{st0}, {112*1024}')
    k.e(f's_lshl_b32 s{st2}, s{scb4}, 13')
    k.e(f's_add_u32 s{st1}, s{st1}, s{st2}')
    k.e(f's_add_u32 s{st1}, s{st1}, {FF}')
    srd(k, SB, sWS, sWS+1, 8192, f's{st1}')
    k.e(f's_lshl_b32 s{sfl}, s{stb4}, 6')
    k.e(f's_lshl_b32 s{st0}, s{scb4}, 2')
    k.e(f's_add_u32 s{sfl}, s{sfl}, s{st0}')
    k.e(f's_add_u32 s{sfl}, s{sfl}, {F4_O}')
    w1_arrive()
    k.e(f's_lshl_b32 s{st0}, s{stb4}, 6')
    k.e(f's_add_u32 s{st0}, s{st0}, {F3_O}')
    poll(st0, 0xffff, 0, CS+8)
    k.stamp('poll3')
    VM = Cnt('vmcnt', 63); LG = Cnt('lgkmcnt', 15)
    hreg = lambda n: vr(HV+4*n, 4) if n < 8 else ar(AWO+4*(n-8), 4)
    def hload(n):
        if n % 4 == 0:
            k.e(f's_mov_b32 s{st2}, {n*1024}')
        VM.op(f'buffer_load_dwordx4 {hreg(n)}, v{vl16}, {sr(SA,4)}, s{st2} offen offset:{(n%4)*1024}{LD}', ('h', n))
    for n in range(HUP): hload(n)
    nh = [HUP]
    def rd4(g, b_):
        ps, n = g // 32, g % 32
        if g == 32:
            k.e(f'v_add_u32 v{bw[b_]}, 65536, v{bw[b_]}')
        for w2 in range(2):
            LG.op(f'ds_read_b64_tr_b16 {vr(WF[g%3][b_]+2*w2,2)}, v{bw[b_]} offset:{n*2048 + w2*1024}', ('w', g))
    w1_wait()
    k.e(f'v_lshlrev_b32 v{vcs}, 4, v{h}')
    k.e(f'v_add_u32 v{vcs}, {EX}, v{vcs}')
    k.e(f'v_lshlrev_b32 v{vfl}, 2, v{l}')
    k.stamp('p4:b0')
    for g in range(3):
        rd4(g, 0); rd4(g, 1)
    def csread(i, dst):
        for g_ in range(4):
            LG.op(f'ds_read_b128 {vr(dst+4*g_,4)}, v{vcs} offset:{i*128 + g_*32}', ('cs', i))
    def fstore(i):
        so = '0' if i < 2 else f's{st2}'
        stores([f'buffer_store_dwordx4 {vr(ACC4[i],4)}, v{vl16}, {sr(SB,4)}, {so} offen offset:{(i%2)*2048}',
                f'buffer_store_dwordx4 {vr(ACC4[i]+4,4)}, v{vl16}, {sr(SB,4)}, {so} offen offset:{(i%2)*2048+1024}'])
        VM.n += 2; VM.at[('f', i)] = VM.n
    fill = []
    for i, cs_ in ((0, CS), (1, HV)):
        fill.append(lambda i=i: wait(LG.need(('cs', i))))
        for r_ in range(16):
            fill.append(lambda i=i, r_=r_, cs_=cs_: k.e(f'v_fma_f32 v{ACC4[i]+r_}, v{cs_+r_}, v{nm}, v{ACC4[i]+r_}'))
        for q in range(8):
            fill.append(lambda i=i, q=q: k.e(f'v_cvt_pk_bf16_f32 v{ACC4[i]+q}, v{ACC4[i]+2*q}, v{ACC4[i]+2*q+1}'))
        for q in range(8):
            fill.append(lambda i=i, q=q: k.e(f'v_pk_max_i16 v{ACC4[i]+q}, v{ACC4[i]+q}, 0'))
        fill.append(lambda i=i: fstore(i))
    def p5_scalars():
        k.e(f's_lshl_b32 s{st0}, s{srb}, 1')
        k.e(f's_add_u32 s{st0}, s{st0}, s{stq}')
        k.e(f's_mul_i32 s{st1}, s{st0}, {112*1024}')
        k.e(f's_add_u32 s{st1}, s{st1}, {FF}')
        srd(k, SA, sWS, sWS+1, 112*1024, f's{st1}')
        k.e(f's_lshl_b32 s{st1}, s{st0}, 12')
        k.e(f's_add_u32 s{st1}, s{st1}, {ST}')
        srd(k, SC, sWS, sWS+1, 4096, f's{st1}')
        k.e(f's_and_b32 s{sd}, s{st0}, 7')
        k.e(f's_lshl_b32 s{sd}, s{sd}, 6')
        k.e(f's_add_u32 s{sd}, s{sd}, {F4_O}')
        k.e(f's_lshl_b32 s{sx5}, s{scq}, 11')
    NXR = 24
    XR5 = AWO
    sx5 = sPB
    def xload(n):
        hf, c, u = n // 28, (n % 28) // 2, n % 2
        if u == 0:
            k.e(f's_add_u32 s{st1}, s{sx5}, {c*8192 + hf*4096}')
        VM.op(f'buffer_load_dwordx4 {ar(XR5+4*(n % NXR),4)}, v{vl16}, {sr(SA,4)}, s{st1} offen offset:{u*1024}{LD}', n)
    nx = [0]
    def acheck():
        a_ = L('fa')
        wait(VM.need('fa'))
        k.e(f'v_cmp_eq_u32 vcc, 0, v{HV+16}')
        k.e(f's_and_b32 s{st0}, vcc_lo, 0x3fff')
        k.e(f's_cbranch_scc0 {k.lab(a_)}')
        poll(sd, 0x3fff, 0)
        k.label(a_)
    for g in range(64):
        ps, n = g // 32, g % 32
        if g in (8, 16, 32, 48): k.stamp(f'+p4g{g}')
        M = lambda b_: k.e(f'v_mfma_f32_32x32x16_bf16 {vr(ACC4[2*ps+b_],16)}, {vr(WF[g%3][b_],4)}, {hreg(n)}, {"0" if n == 0 else vr(ACC4[2*ps+b_],16)}')
        def F(nn):
            for _ in range(nn):
                if g >= 35 and fill: fill.pop(0)()
        wait(VM.need(('h', n)), LG.need(('w', g)))
        M(0)
        if g == 32:
            arrive(1, True); LG.n += 1
            LG.op(f'ds_read_b32 v{tmp+1}, v{tmp}', 'cnt')
        if g + 3 < 64: rd4(g + 3, 0)
        if nh[0] < 32 and g % 2 == 0:
            hload(nh[0]); nh[0] += 1
        F(FPS)
        M(1)
        if g + 3 < 64: rd4(g + 3, 1)
        if nh[0] < 32:
            hload(nh[0]); nh[0] += 1
        F(FPS)
        if g == 16:
            assert nh[0] == 32
            for q in range(8):
                VM.op(f'buffer_load_dword v{CS+q}, v{nm}, {sr(SC,4)}, 0 offen offset:{q*256}{LD}', 'st')
        if g == 27:
            wait(VM.need('st'))
            for z in range(4): k.e(f'v_add_f32 v{CS+z}, v{CS+z}, v{CS+z+4}')
        if g == 28:
            for q in (2, 1):
                for z in range(q): k.e(f'v_add_f32 v{CS+z}, v{CS+z}, v{CS+z+q}')
        if g == 29:
            half_sum(k, [CS], CS+2)
        if g == 30:
            k.e(f'v_mul_f32 v{nm}, {f32(-1/512)}, v{CS}')
            round_bf16(k, nm)
        if g == 33:
            a_ = L('cw')
            wait(LG.need('cnt'))
            k.e(f'v_cmp_gt_u32 vcc, 12, v{tmp+1}')
            k.e(f's_cbranch_vccz {k.lab(a_)}')
            lwait(0, 12)
            k.label(a_)
            csread(0, CS)
        if g == 36: csread(1, HV)
        if g == 50:
            assert not fill
            p5_scalars()
        if g == FLA:
            flag(sfl, VM.n - VM.at[('f', 1)]); VM.n += 1
            k.e(f's_add_u32 s{sfl}, s{sfl}, 512')
        if g == 62:
            csread(2, CS); csread(3, HV)
        if g == EVA: acheck()
        if g >= EVA:
            for _ in range(3):
                xload(nx[0]); nx[0] += 1
        if g == FCK:
            VM.op(f'buffer_load_dword v{HV+16}, v{vfl}, {sr(SFL,4)}, s{sd} offen sc1', 'fa')
    k.stamp('p4:end')
    k.stamp('@p4:end')
    wait(LG.all())
    if CB5:
        arrive(2, True)
    else:
        k.e('s_barrier')
    if EVA >= 64: acheck()
    k.stamp('poll4')
    NUPX = max(2*XUP, nx[0] + 2)
    NUPX += NUPX & 1
    while nx[0] < NUPX:
        xload(nx[0]); nx[0] += 1
    k.e(f's_mov_b32 s{st2}, 4096')
    for i, cs_ in ((2, CS), (3, HV)):
        for r_ in range(0, 16, 2):
            k.e(f'v_pk_fma_f32 {vr(ACC4[i]+r_,2)}, {vr(cs_+r_,2)}, {vr(nm,2)}, {vr(ACC4[i]+r_,2)} op_sel_hi:[1,0,1]')
        for q in range(8):
            k.e(f'v_cvt_pk_bf16_f32 v{ACC4[i]+q}, v{ACC4[i]+2*q}, v{ACC4[i]+2*q+1}')
        for q in range(8):
            k.e(f'v_pk_max_i16 v{ACC4[i]+q}, v{ACC4[i]+q}, 0')
        fstore(i)
    k.e(f's_branch {k.lab("c5b")}')
    k.label('c5')
    p5_scalars()
    poll(sd, 0x3fff, 0)
    if CB5:
        arrive(2)
    else:
        k.e('s_barrier')
    n_keep, at_keep = VM.n, dict(VM.at)
    for n in range(NUPX): xload(n)
    for q in range(4):
        k.e(f'buffer_load_dword v{tmp+2}, v{vl16}, {sr(SA,4)}, 0 offen')
    VM.n, VM.at = n_keep, at_keep
    k.label('c5b')
    k.vn = KEEP5
    aw5 = [[k.v() for b_ in range(2)] for s_ in range(3)]
    WF5 = [[k.v(4) for b_ in range(2)] for p in range(3)]
    AC5 = [k.v(16) for b_ in range(2)]
    vst5, vf5 = k.v(), k.v()
    assert k.vn <= ACC4[2]
    k.vn = max(k.vn, ACC4[3] + 16)
    mean5, rstd5 = k.v(2), k.v(2)
    ST5 = ACC4[2]; RES = ACC4[3]; U = WF5[0][0]; OUT = ACC4[2]
    k.e(f's_lshl_b32 s{st0}, s{scq}, 12')
    k.e(f'v_add_u32 v{aw5[0][0]}, s{st0}, v{awb[0]}')
    k.e(f'v_xor_b32 v{aw5[0][1]}, 64, v{aw5[0][0]}')
    for s_ in (1, 2):
        for b_ in range(2):
            k.e(f'v_add_u32 v{aw5[s_][b_]}, {65536*s_}, v{aw5[0][b_]}')
    if CB5:
        lwait(3, 4)
    LG = Cnt('lgkmcnt', 15)
    def rd5(n, b_):
        off = SLOTS[n // 2]*8192 + (n % 2)*2048
        for w2 in range(2):
            LG.op(f'ds_read_b64_tr_b16 {vr(WF5[n%3][b_]+2*w2,2)}, v{aw5[off//65536][b_]} offset:{off % 65536 + w2*1024}', n)
    for n in range(3):
        rd5(n, 0); rd5(n, 1)
    k.e(f'v_lshlrev_b32 v{vst5}, 3, v{t}')
    k.e(f'v_lshl_add_u32 v{vst5}, v{h}, 11, v{vst5}')
    k.e(f'v_lshlrev_b32 v{vf5}, 2, v{l}')
    k.e(f's_add_u32 s{sd}, s{sd}, 512')
    k.stamp('p5:c0')
    lim = [28]
    def xmore(n):
        if nx[0] < lim[0] and nx[0] - NXR < n:
            xload(nx[0]); nx[0] += 1
    for n in range(56):
        X = XR5 + 4*(n % NXR)
        if n in (8, 16, 28, 40): k.stamp(f'+p5k{n}')
        M = lambda b_: k.e(f'v_mfma_f32_32x32x16_bf16 {vr(AC5[b_],16)}, {vr(WF5[n%3][b_],4)}, {ar(X,4)}, {"0" if n == 0 else vr(AC5[b_],16)}')
        wait(VM.need(n), LG.need(n))
        M(0)
        if n in (19, 35):
            wait(LG.all())
            k.e('s_barrier')
        if n == WBN:
            k.e('s_barrier')
        if n + 3 < 56: rd5(n + 3, 0)
        xmore(n)
        M(1)
        if n + 3 < 56: rd5(n + 3, 1)
        xmore(n + 1)
        if n == FLB_:
            a_ = L('fb')
            k.e(f's_cmp_ge_u32 s{sm}, 28')
            k.e(f's_cbranch_scc1 {k.lab(a_)}')
            flag(sfl, VM.n - VM.at[('f', 3)])
            k.label(a_)
            k.e(f's_lshl_b32 s{st0}, s{srb}, 16')
            srd(k, SB, sOUT, sOUT+1, 65536, f's{st0}')
        if n == CKB - 5:
            VM.op(f'buffer_load_dword v{mean5}, v{vf5}, {sr(SFL,4)}, s{sd} offen sc1', 'fb')
        if n == CKB:
            a_ = L('fb')
            wait(VM.need('fb'))
            k.e(f'v_cmp_eq_u32 vcc, 0, v{mean5}')
            k.e(f's_and_b32 s{st0}, vcc_lo, 0x3fff')
            k.e(f's_cbranch_scc0 {k.lab(a_)}')
            poll(sd, 0x3fff, 0)
            k.label(a_)
            lim[0] = 56
        if n == STN:
            for q in range(8):
                VM.op(f'buffer_load_dwordx2 {vr(ST5+2*q,2)}, v{vst5}, {sr(SC,4)}, 0 offen offset:{q*256}{LD}', 'st')
        if n == 49:
            wait(VM.need('st'))
            for z in range(4):
                for e_ in range(2): k.e(f'v_add_f32 v{ST5+2*z+e_}, v{ST5+2*z+e_}, v{ST5+2*(z+4)+e_}')
        if n == 50:
            for q in (2, 1):
                for z in range(q):
                    for e_ in range(2): k.e(f'v_add_f32 v{ST5+2*z+e_}, v{ST5+2*z+e_}, v{ST5+2*(z+q)+e_}')
        if n == 51:
            half_sum(k, [ST5, ST5+1], ST5+2)
        if n == 53:
            ln_finish(k, ST5, ST5+1, mean5, rstd5)
        if n == 46:
            for d in range(8):
                k.e(f'v_accvgpr_read_b32 v{RES+d}, a{HK+d}')
    k.stamp('p5:end')
    k.stamp('@p5:end')
    RED = 5*8192
    k.e(f's_xor_b32 s{st0}, s{sr4}, 1')
    k.e(f's_lshl_b32 s{st0}, s{st0}, 12')
    k.e(f's_add_u32 s{st0}, s{st0}, 65536')
    k.e(f'v_add_u32 v{aw5[1][0]}, s{st0}, v{vl16}')
    k.e(f'v_xor_b32 v{aw5[0][0]}, 4096, v{aw5[1][0]}')
    vr_ = vst5
    k.e(f'v_lshlrev_b32 v{vr_}, 10, v{t}')
    k.e(f'v_lshl_add_u32 v{vr_}, v{h}, 4, v{vr_}')
    k.e(f's_lshl_b32 s{st0}, s{stq}, 15')
    k.e(f's_lshl_b32 s{st1}, s{scb}, 7')
    k.e(f's_add_u32 s{st0}, s{st0}, s{st1}')
    k.e(f's_lshl_b32 s{st1}, s{scq}, 6')
    k.e(f's_add_u32 s{st0}, s{st0}, s{st1}')
    for g_ in range(4):
        k.e(f'ds_write_b128 v{aw5[1][0]}, {vr(AC5[1]+4*g_,4)} offset:{g_*1024}')
    for d in range(8):
        k.e(f'v_lshlrev_b32 v{U+2*d}, 16, v{RES+d}')
        k.e(f'v_and_b32 v{U+2*d+1}, 0xffff0000, v{RES+d}')
    for r_ in range(0, 16, 2):
        k.e(f'v_pk_fma_f32 {vr(U+r_,2)}, {vr(AC5[0]+r_,2)}, {vr(rstd5,2)}, {vr(U+r_,2)} op_sel_hi:[1,0,1]')
    k.e('s_waitcnt lgkmcnt(0)')
    k.e('s_barrier')
    for g_ in range(4):
        k.e(f'ds_read_b128 {vr(AC5[1]+4*g_,4)}, v{aw5[0][0]} offset:{g_*1024}')
    for g_ in range(4):
        k.e(f's_waitcnt lgkmcnt({3-g_})')
        for r_ in (4*g_, 4*g_+2):
            k.e(f'v_pk_fma_f32 {vr(U+r_,2)}, {vr(AC5[1]+r_,2)}, {vr(rstd5,2)}, {vr(U+r_,2)} op_sel_hi:[1,0,1]')
    for q in range(8):
        k.e(f'v_cvt_pk_bf16_f32 v{OUT+q}, v{U+2*q}, v{U+2*q+1}')
    k.e('s_nop 1')
    for pz in range(2):
        k.e(f'v_permlane32_swap_b32 v{OUT+4*pz}, v{OUT+4*pz+2}')
        k.e(f'v_permlane32_swap_b32 v{OUT+4*pz+1}, v{OUT+4*pz+3}')
    k.e(f'buffer_store_dwordx4 {vr(OUT,4)}, v{vr_}, {sr(SB,4)}, s{st0} offen')
    k.e(f'buffer_store_dwordx4 {vr(OUT+4,4)}, v{vr_}, {sr(SB,4)}, s{st0} offen offset:32')
    k.label('done')
    k.label('end')
    k.e('s_endpgm')

    k.label('slow')
    k.e(f's_lshl_b32 s{st0}, s{shead}, 16')
    k.e(f's_add_u32 s{st0}, s{st0}, {KF}')
    k.e(f'v_mov_b32 v{tmp}, 0xff800000')
    k.e(f's_mov_b32 s{sit}, 0')
    k.label('slow1')
    k.e(f's_add_u32 s{st1}, s{st0}, s{sit}')
    k.e(f'buffer_load_dwordx4 {vr(KFr,4)}, v{vl16}, {sr(SA,4)}, s{st1} offen')
    k.e('s_waitcnt vmcnt(0)')
    k.e(f'v_mfma_f32_32x32x16_bf16 {vr(S[0],16)}, {vr(KFr,4)}, {vr(Q[0],4)}, 0')
    k.e('s_nop 15')
    rowmax16(S[0], tmp+2)
    k.e(f'v_max_f32 v{tmp}, v{tmp}, v{tmp+2}')
    k.e(f's_add_u32 s{sit}, s{sit}, 1024')
    k.e(f's_cmp_lt_u32 s{sit}, 65536')
    k.e(f's_cbranch_scc1 {k.lab("slow1")}')
    set_negm(tmp, NM[0])
    for r_ in range(16):
        k.e(f'v_mov_b32 v{O[0]+r_}, 0')
    k.e(f'v_and_b32 v{vv}, 15, v{l}')
    k.e(f'v_lshlrev_b32 v{vv}, 4, v{vv}')
    k.e(f'v_lshl_add_u32 v{vv}, v{h}, 8, v{vv}')
    k.e(f'v_bfe_u32 v{tmp+1}, v{l}, 4, 1')
    k.e(f'v_lshl_add_u32 v{vv}, v{tmp+1}, 25, v{vv}')
    k.e(f'v_and_b32 v{tmp}, 27, v{l}')
    k.e(f'v_cmp_eq_u32 vcc, 16, v{tmp}')
    k.e(f'v_mov_b32 v{tmp+1}, 0x3f803f80')
    k.e(f's_mov_b32 s{sit}, 0')
    k.e(f'v_cndmask_b32 v{vk}, 0, v{tmp+1}, vcc')
    k.label('slow2')
    k.e(f's_add_u32 s{st1}, s{st0}, s{sit}')
    k.e(f's_add_u32 s{st2}, s{st1}, {VF - KF}')
    k.e(f'buffer_load_dwordx4 {vr(KFr,4)}, v{vl16}, {sr(SA,4)}, s{st1} offen')
    k.e(f'buffer_load_dwordx4 {vr(V0,4)}, v{vv}, {sr(SA,4)}, s{st2} offen')
    k.e(f'buffer_load_dwordx4 {vr(V1,4)}, v{vv}, {sr(SA,4)}, s{st2} offen offset:512')
    k.e('s_waitcnt vmcnt(0)')
    k.e(f'v_mfma_f32_32x32x16_bf16 {vr(S[0],16)}, {vr(KFr,4)}, {vr(Q[0],4)}, {vr(NM[0],16)}')
    for d in range(4):
        k.e(f'v_or_b32 v{V0+d}, v{V0+d}, v{vk}')
        k.e(f'v_or_b32 v{V1+d}, v{V1+d}, v{vk}')
    k.e('s_nop 7')
    E(0, 0, 16)
    k.e('s_nop 0')
    C(0, 0, 8)
    k.e('s_nop 1')
    MP(0, 0)
    MP(0, 1)
    k.e(f's_add_u32 s{sit}, s{sit}, 1024')
    k.e(f's_cmp_lt_u32 s{sit}, 65536')
    k.e(f's_cbranch_scc1 {k.lab("slow2")}')
    k.e('s_nop 15')
    k.e(f's_branch {k.lab("fin")}')
    assert k.vmax <= ARCH, k.vmax
    assert k.an <= 256 - ARCH, k.an
    k.vmax = ARCH
    return k, (256, 512, 163840)
```

```python
import sys
from fw import *
from k1 import gen_k1
from k2 import gen_k2
from k35 import gen_k35
from k4 import gen_k4
from mega import gen_mega
NAME = 'sequential_preLN__mha_block__dense_activation_relu__prompt'
DOC = '''; Hand-designed gfx950 kernels, emitted by my own generator scripts (gen/*.py). Two launches:
'''
def build(out, ks=None, instr=False, todebug=None):
    if ks is None:
        ks = [gen_k1(), gen_mega()]
    if instr:
        for i, (k, _) in enumerate(ks):
            assert k.vmax <= 250 or True
            k.instrument(i, todebug[i] if todebug else None)
            print(k.tags)
    ref = open(f'cdna_kernels/{NAME}.s.ref').read().split('\n')
    head = [l for l in ref[:10]]
    s = '\n'.join(head) + '\n'
    s += DOC
    for k, (g, b, lds) in ks:
        s += f'; @launch kernel={k.name} grid=({g},1,1) block=({b},1,1) lds={lds}\n'
    s += '.amdgcn_target "amdgcn-amd-amdhsa--gfx950"\n.text\n'
    seen = []
    for k, _ in ks:
        if k.name in seen: continue
        seen.append(k.name)
        s += k.text()
    s += '.section .rodata,"a"\n'
    seen = []
    for k, _ in ks:
        if k.name in seen: continue
        seen.append(k.name)
        s += k.desc()
    s = '\n'.join(x for x in s.split('\n') if ';@STAMP' not in x)
    open(out, 'w').write(s)
    for k, cfg in ks:
        print(k.name, cfg, 'vgpr', k.vmax, 'sgpr', k.smax, 'lines', len(k.L))
if __name__ == '__main__':
    build(f'cdna_kernels/{NAME}.s')
    build('instr.s', instr=True)
```
